```python
import torch

def _softmax(x, axis=-1):
    return torch.softmax(x, dim=axis)

def _gelu(x):
    return torch.nn.functional.gelu(x, approximate='tanh')

def _silu(x):
    return torch.nn.functional.silu(x)

def _sigmoid(x):
    return torch.sigmoid(x)

def _layernorm(x, axis=-1, eps=1e-05):
    m = x.mean(dim=axis, keepdim=True)
    v = x.var(dim=axis, keepdim=True, unbiased=False)
    return (x - m) / torch.sqrt(v + eps)

def _scatter_add(tgt, idx, src, axis=0):
    return tgt.clone().index_add_(axis, idx, src)

def _segment_sum(src, seg, n):
    out = torch.zeros((n,) + src.shape[1:], dtype=src.dtype)
    return out.index_add_(0, seg, src)

def _pad(x, pw):
    flat = tuple((v for pair in reversed(pw) for v in pair))
    return torch.nn.functional.pad(x, flat)
kernel_name = 'standalone__tensor_product_equiv_equiformer__graph'

def setup_inputs():

    _w = lambda a: (lambda t: t.to(torch.bfloat16) if t.is_floating_point() else t)(torch.as_tensor(a))
    N, deg, C, De = (10000, 32, 128, max(0, 1))
    E = N * deg
    src = (lambda lo, hi, *s: torch.randint(lo, hi, s))(0, N, E).to(torch.int64)
    dst = (lambda lo, hi, *s: torch.randint(lo, hi, s))(0, N, E).to(torch.int64)
    rvec = (lambda *s: torch.randn(*s, dtype=torch.bfloat16) * 0.05)(E, 3).to(float)
    rn = (torch.linalg.norm(rvec, dim=-1, keepdim=True) + 1e-06).to(float)
    rhat = (rvec / rn).to(float)
    eps = torch.zeros((3, 3, 3), dtype=float)
    eps[0, 1, 2] = eps[1, 2, 0] = eps[2, 0, 1] = 1.0
    eps[0, 2, 1] = eps[2, 1, 0] = eps[1, 0, 2] = -1.0
    return {'x': _w((lambda *s: torch.randn(*s, dtype=torch.bfloat16) * 0.4)(N, 4 * C).to(float)), 'rhat': _w(rhat), 'e_attr': _w((lambda *s: torch.randn(*s, dtype=torch.bfloat16) * 0.4)(E, De).to(float)), 'src': _w(src), 'dst': _w(dst), 'w_rad': _w((lambda *s: torch.randn(*s, dtype=torch.bfloat16) * 0.4)(De, 5 * C).to(float)), 'w_si0': _w((lambda *s: torch.randn(*s, dtype=torch.bfloat16) * 0.4)(2 * C, C).to(float)), 'w_si1': _w((lambda *s: torch.randn(*s, dtype=torch.bfloat16) * 0.05)(3 * C, C).to(float)), 'cg_eps': _w(eps)}

def reference(x, rhat, e_attr, src, dst, w_rad, w_si0, w_si1, cg_eps):
    N = x.shape[0]
    C = w_si0.shape[1]
    E = rhat.shape[0]
    x0 = x[:, :C].clone()
    x1 = x[:, C:].reshape(N, 3, C)
    R = (e_attr @ w_rad).reshape(E, 5, C)
    f0 = x0[src]
    f1 = x1[src]
    Y1 = rhat
    p00_0 = f0 * R[:, 0, :]
    p11_0 = torch.einsum('ejc,ej->ec', f1, Y1) * R[:, 1, :]
    p01_1 = torch.einsum('ec,ej->ejc', f0, Y1) * R[:, 2, :][:, None, :]
    p10_1 = f1 * R[:, 3, :][:, None, :]
    p11_1 = torch.einsum('ijk,ekc,ej->eic', cg_eps, f1, Y1) * R[:, 4, :][:, None, :]
    m0 = torch.concatenate([p00_0, p11_0], axis=-1) @ w_si0
    m1 = torch.einsum('ejp,pc->ejc', torch.concatenate([p01_1, p10_1, p11_1], axis=-1), w_si1)
    agg0 = _segment_sum(m0, dst, N)
    agg1 = _segment_sum(m1.reshape(E, 3 * C), dst, N).reshape(N, 3, C)
    gate = _sigmoid(agg0)
    out1 = agg1 * gate[:, None, :]
    return torch.concatenate([agg0, out1.reshape(N, 3 * C)], axis=-1)
```

```python
import re, sys

N=10000; E=320000
NPROD=128; EPW=2500
NB=250; NPB=40
TAB_OFF=0; WF_OFF=131072; REC_OFF=294912
WS_USED=REC_OFF+NPROD*EPW*12
XBYTES=N*1024
OOB=0x40000000
CAP=192
RING=12288
S_OFF=10*RING
S_T=5136; S_KS=2560
IDX_OFF=S_OFF+4*S_T
GC_OFF=IDX_OFF+10*768
PREF_OFF=GC_OFF+64
K2_LDS=PREF_OFF+512
K1_CNT=30016; K1_START=31040; K1_LDS=32064

K1="eqf_bin_kernel"
K2="standalone__tensor_product_equiv_equiformer__graph_kernel"

class A:
    def __init__(s): s.L=[]; s.n=0
    def __call__(s, txt):
        for ln in txt.split("\n"):
            ln=ln.strip()
            if ln: s.L.append(ln)
    def lab(s, base):
        s.n+=1; return f"{base}_{s.n}"
    def text(s):
        out=[]
        for l in s.L:
            out.append(l if l.endswith(":") or l.startswith(".") else "    "+l)
        return "\n".join(out)

def vr(a,n): return f"v[{a}:{a+n-1}]"
def sr(a,n): return f"s[{a}:{a+n-1}]"

def srd(e, d, plo, nbytes):
    e(f"s_mov_b32 s{d}, s{plo}\ns_mov_b32 s{d+1}, s{plo+1}\ns_mov_b32 s{d+2}, {nbytes}\ns_mov_b32 s{d+3}, 0x20000")

def gen_k1(opt):
    e=A()
    e(f".globl {K1}\n.p2align 8\n.type {K1},@function\n{K1}:")
    e(f"s_cmp_ge_u32 s2, 256\ns_cbranch_scc1 K1_done")
    e("s_load_dwordx4 s[4:7], s[0:1], 0")
    e("s_load_dwordx4 s[8:11], s[0:1], 16")
    e("s_load_dwordx4 s[12:15], s[0:1], 32")
    e("s_load_dwordx4 s[16:19], s[0:1], 48")
    e("s_load_dwordx2 s[20:21], s[0:1], 88")
    e("s_cmp_ge_u32 s2, 128\ns_cbranch_scc1 K1_helper")
    e("v_lshlrev_b32 v1, 2, v0\nv_mov_b32 v2, 0")
    e("v_cmp_gt_u32 vcc, 0x100, v0\ns_and_saveexec_b64 s[22:23], vcc")
    e(f"ds_write_b32 v1, v2 offset:{K1_CNT}")
    e("s_mov_b64 exec, s[22:23]")
    e("v_lshlrev_b32 v1, 4, v0")
    e("v_mul_u32_u24 v2, 24, v0")
    e("v_lshlrev_b32 v3, 3, v0")
    e("s_mul_i32 s44, s2, 10000\ns_mul_i32 s45, s2, 15000\ns_mul_i32 s46, s2, 5000")
    e("v_cmp_gt_u32 vcc, 0x271, v0")
    e("s_waitcnt lgkmcnt(0)")
    srd(e,24,10,E*4)
    srd(e,28,12,E*4)
    srd(e,32,6,E*6)
    srd(e,36,8,E*2)
    srd(e,40,20,WS_USED)
    e("s_and_saveexec_b64 s[48:49], vcc")
    e("s_mov_b64 s[50:51], exec")
    e("buffer_load_dwordx4 v[8:11], v1, s[28:31], s44 offen")
    e("buffer_load_dwordx4 v[4:7], v1, s[24:27], s44 offen")
    e("buffer_load_dwordx2 v[18:19], v3, s[36:39], s46 offen")
    e("buffer_load_dwordx4 v[12:15], v2, s[32:35], s45 offen")
    e("buffer_load_dwordx2 v[16:17], v2, s[32:35], s45 offen offset:16")
    e("s_barrier")
    e("v_mov_b32 v3, 1")
    e("s_mov_b32 s47, 52429")
    e("s_waitcnt vmcnt(4)")
    for r in range(4):
        e(f"v_mul_u32_u24 v{20+r}, s47, v{8+r}")
        e(f"v_lshrrev_b32 v{20+r}, 21, v{20+r}")
        e(f"v_mul_u32_u24 v{24+r}, 40, v{20+r}")
        e(f"v_sub_u32 v{24+r}, v{8+r}, v{24+r}")
        e(f"v_lshlrev_b32 v{20+r}, 2, v{20+r}")
        e(f"ds_add_rtn_u32 v{28+r}, v{20+r}, v3 offset:{K1_CNT}")
    e("s_waitcnt vmcnt(0)")
    ylo=lambda d,s: e(f"v_lshlrev_b32 v{d}, 16, v{s}")
    yhi=lambda d,s: e(f"v_and_b32 v{d}, 0xffff0000, v{s}")
    ys=[]
    for k in range(12): ys.append((12+k//2, k&1))
    for r in range(4):
        e(f"v_lshl_or_b32 v{32+4*r}, v{4+r}, 10, v{24+r}")
        (yhi if r&1 else ylo)(48, 18+r//2)
        for j in range(3):
            reg,hi=ys[3*r+j]
            (yhi if hi else ylo)(49+j, reg)
        for j in range(3):
            e(f"v_mul_f32 v{49+j}, v48, v{49+j}")
        e(f"v_cvt_pk_bf16_f32 v{33+4*r}, v48, v49")
        e(f"v_cvt_pk_bf16_f32 v{34+4*r}, v50, v51")
    e("s_mov_b64 exec, s[48:49]")
    e("s_waitcnt lgkmcnt(0)\ns_barrier")
    e("v_mbcnt_lo_u32_b32 v52, -1, 0\nv_mbcnt_hi_u32_b32 v52, -1, v52")
    e("v_lshlrev_b32 v53, 4, v52")
    e(f"ds_read_b128 v[56:59], v53 offset:{K1_CNT}")
    e("s_waitcnt lgkmcnt(0)")
    e("v_add_u32 v61, v56, v57\nv_add_u32 v62, v61, v58\nv_add_u32 v63, v62, v59")
    e("v_mov_b32 v54, v63")
    for sh in (1,2,4,8):
        e("s_nop 1")
        e(f"v_add_u32_dpp v54, v54, v54 row_shr:{sh} row_mask:0xf bank_mask:0xf bound_ctrl:0")
    e("s_nop 1\nv_add_u32_dpp v54, v54, v54 row_bcast:15 row_mask:0xa bank_mask:0xf")
    e("s_nop 1\nv_add_u32_dpp v54, v54, v54 row_bcast:31 row_mask:0xc bank_mask:0xf")
    e("v_sub_u32 v64, v54, v63")
    e("v_add_u32 v65, v64, v56\nv_add_u32 v66, v64, v61\nv_add_u32 v67, v64, v62")
    e(f"ds_write_b128 v53, v[64:67] offset:{K1_START}")
    e("v_readfirstlane_b32 s52, v0")
    for r in range(4):
        e(f"v_lshl_or_b32 v{68+r}, v{56+r}, 16, v{64+r}")
    e("s_cmp_lg_u32 s52, 0\ns_cbranch_scc1 K1_notab")
    e(f"s_lshl_b32 s53, s2, 10")
    e(f"buffer_store_dwordx4 v[68:71], v53, s[40:43], s53 offen")
    e("K1_notab:")
    e("s_mov_b64 exec, s[50:51]")
    e("s_waitcnt lgkmcnt(0)")
    for r in range(4):
        e(f"ds_read_b32 v{56+r}, v{20+r} offset:{K1_START}")
    e("s_waitcnt lgkmcnt(0)")
    for r in range(4):
        e(f"v_add_u32 v{56+r}, v{56+r}, v{28+r}")
        e(f"v_mul_u32_u24 v{56+r}, 12, v{56+r}")
        e(f"ds_write2_b32 v{56+r}, v{32+4*r}, v{33+4*r} offset0:0 offset1:1")
        e(f"ds_write_b32 v{56+r}, v{34+4*r} offset:8")
    e("s_mov_b64 exec, s[48:49]")
    e("s_waitcnt lgkmcnt(0)\ns_barrier")
    e("v_lshlrev_b32 v1, 4, v0")
    e(f"s_mul_i32 s53, s2, {EPW*12}\ns_add_u32 s53, s53, {REC_OFF}")
    e("ds_read_b128 v[4:7], v1\nds_read_b128 v[8:11], v1 offset:10240\nds_read_b128 v[12:15], v1 offset:20480")
    e("v_add_u32 v2, 10240, v1\nv_add_u32 v3, 20480, v1")
    e(f"v_cmp_gt_u32 vcc, {1875-1280}, v0")
    e("s_waitcnt lgkmcnt(2)\nbuffer_store_dwordx4 v[4:7], v1, s[40:43], s53 offen")
    e("s_waitcnt lgkmcnt(1)\nbuffer_store_dwordx4 v[8:11], v2, s[40:43], s53 offen")
    e("s_and_saveexec_b64 s[22:23], vcc")
    e("s_cbranch_execz K1_pend")
    e("s_waitcnt lgkmcnt(0)\nbuffer_store_dwordx4 v[12:15], v3, s[40:43], s53 offen")
    e("K1_pend:")
    e("s_waitcnt vmcnt(0) lgkmcnt(0)\ns_endpgm")
    e("K1_helper:")
    e("s_sub_u32 s22, s2, 128")
    e("v_lshrrev_b32 v1, 6, v0\nv_and_b32 v2, 63, v0")
    e("s_mul_i32 s23, s22, 640\nv_add_u32 v3, s23, v0\nv_lshlrev_b32 v3, 7, v3")
    e("v_readfirstlane_b32 s44, v1")
    e("s_lshr_b32 s23, s22, 3\ns_mul_i32 s23, s23, 625\nv_add_u32 v4, s23, v0\nv_lshlrev_b32 v4, 10, v4")
    e("s_waitcnt lgkmcnt(0)")
    srd(e,24,4,XBYTES)
    e("s_cmp_ge_u32 s22, 16\ns_cbranch_scc1 K1_pf")
    srd(e,28,14,1280)
    srd(e,32,16,256*256)
    srd(e,36,18,384*256)
    srd(e,40,20,WS_USED)
    e("s_mul_i32 s45, s22, 10\ns_add_u32 s45, s45, s44")
    e("s_and_b32 s46, s45, 1")
    e("s_lshr_b32 s47, s45, 1")
    e("s_mul_i32 s48, s47, 52429\ns_lshr_b32 s48, s48, 18")
    e("s_mul_i32 s49, s48, 5\ns_sub_u32 s49, s47, s49")
    e("s_and_b32 s50, s48, 7\ns_lshr_b32 s51, s48, 3")
    e("s_lshl_b32 s52, s51, 6\ns_lshl_b32 s53, s46, 5\ns_add_u32 s52, s52, s53")
    e("v_lshrrev_b32 v5, 4, v2\nv_and_b32 v6, 15, v2")
    e("v_lshlrev_b32 v7, 10, v5\nv_lshl_add_u32 v7, v6, 1, v7")
    e("v_lshlrev_b32 v8, 3, v5")
    e("s_lshl_b32 s53, s49, 7\ns_add_u32 s53, s53, s52\ns_lshl_b32 s53, s53, 1")
    e("buffer_load_dwordx2 v[10:11], v8, s[28:31], s53 offen")
    e("buffer_load_dwordx2 v[12:13], v8, s[28:31], s53 offen offset:32")
    e("s_cmp_ge_u32 s49, 2\ns_cbranch_scc1 K1_w1")
    for (lab,sub,R) in (("",0,32),("K1_w1:",2,36)):
        if lab: e(lab)
        e(f"s_sub_u32 s54, s49, {sub}\ns_lshl_b32 s54, s54, 7\ns_add_u32 s54, s54, s52\ns_lshl_b32 s54, s54, 8")
        e("s_lshl_b32 s55, s50, 5\ns_add_u32 s54, s54, s55\ns_add_u32 s55, s54, 4096")
        for j in range(4): e(f"buffer_load_ushort v{16+j}, v7, s[{R}:{R+3}], s54 offen offset:{j*256}")
        for j in range(4): e(f"buffer_load_ushort v{20+j}, v7, s[{R}:{R+3}], s55 offen offset:{j*256}")
        if not lab: e("s_branch K1_wj")
    e("K1_wj:")
    e("buffer_load_dword v30, v3, s[24:27], 0 offen")
    if opt.get('pf2',True): e("buffer_load_dword v31, v3, s[24:27], 0 offen offset:64")
    e("buffer_load_dword v32, v4, s[24:27], 0 offen")
    if opt.get('pf2',True): e("buffer_load_dword v33, v4, s[24:27], 0 offen offset:64")
    npf=4 if opt.get('pf2',True) else 2
    e(f"s_waitcnt vmcnt({npf})")
    for j in range(8):
        src=10+j//2
        if j&1: e(f"v_and_b32 v24, 0xffff0000, v{src}")
        else:   e(f"v_lshlrev_b32 v24, 16, v{src}")
        e(f"v_lshlrev_b32 v{16+j}, 16, v{16+j}")
        e(f"v_mul_f32 v{16+j}, v24, v{16+j}")
    for k in range(4): e(f"v_cvt_pk_bf16_f32 v{40+k}, v{16+2*k}, v{17+2*k}")
    e(f"s_lshl_b32 s54, s45, 10\ns_add_u32 s54, s54, {WF_OFF}")
    e("v_lshlrev_b32 v9, 4, v2")
    e("buffer_store_dwordx4 v[40:43], v9, s[40:43], s54 offen")
    e("s_waitcnt vmcnt(0)\ns_endpgm")
    e("K1_pf:")
    e("buffer_load_dword v30, v3, s[24:27], 0 offen")
    if opt.get('pf2',True): e("buffer_load_dword v31, v3, s[24:27], 0 offen offset:64")
    e("buffer_load_dword v32, v4, s[24:27], 0 offen")
    if opt.get('pf2',True): e("buffer_load_dword v33, v4, s[24:27], 0 offen offset:64")
    e("s_waitcnt vmcnt(0)")
    e("K1_done:\ns_endpgm")
    return e.text()

vT=4; vI=8; vIB=12; vP=13; vSW=15; vSR=16; vTmp=17; vQN=18
vXA=20; vA1=36; vCF=52; vW=76; vA2=116; NV=164
sXR=8; sWS=12; sOUT=16
sWave=20; sNch=21; sRing=22; sSlot=23; sSoff=24; sCi=25; sSi=26; sN128=27; sS=28; sWp=29; sM=30; sDel=31
sRend=33; sLo=34; sMode=35; sTot=36; sT0=37; sT1=38; sFirst=39
sK4096=50; sKm8192=51; sB=52; sWo=53

def gen_k2(opt):
    e=A()
    dbg=opt.get('dbg')
    e(f".globl {K2}\n.p2align 8\n.type {K2},@function\n{K2}:")
    e(f"s_cmp_ge_u32 s2, {NB}\ns_cbranch_scc1 K2_done")
    e(f"s_load_dwordx2 s[{sXR}:{sXR+1}], s[0:1], 0")
    e(f"s_load_dwordx2 s[{sWS}:{sWS+1}], s[0:1], 88")
    e(f"s_load_dwordx2 s[{sOUT}:{sOUT+1}], s[0:1], 72")
    e("v_lshrrev_b32 v1, 6, v0")
    e(f"s_mov_b32 s{sB}, s2")
    e(f"v_readfirstlane_b32 s{sWave}, v1")
    e(f"s_mov_b32 s{sK4096}, 4096\ns_mov_b32 s{sKm8192}, -8192")
    e(f"s_mov_b32 s{sMode}, 0\ns_mov_b32 s{sLo}, 0\ns_mov_b32 s{sTot}, 0")
    e(f"s_mov_b32 s{sXR+3}, 0x20000\ns_mov_b32 s{sWS+2}, {WS_USED}\ns_mov_b32 s{sWS+3}, 0x20000")
    e(f"s_mov_b32 s{sOUT+2}, {XBYTES}\ns_mov_b32 s{sOUT+3}, 0x20000")
    for r in range(48): e(f"v_mov_b32 v{vA2+r}, 0")
    e(f"s_mul_i32 s{sRing}, s{sWave}, {RING}\ns_add_u32 s{sRend}, s{sRing}, {RING}")
    e("s_waitcnt lgkmcnt(0)")
    e("K2_round:")
    L,TID,P,SUB,TABV,RB,II,HI=2,3,1,19,0,60,61,62
    e(f"v_mbcnt_lo_u32_b32 v{L}, -1, 0\nv_mbcnt_hi_u32_b32 v{L}, -1, v{L}")
    e(f"s_lshl_b32 s{sT0}, s{sWave}, 6\nv_add_u32 v{TID}, s{sT0}, v{L}")
    e(f"s_mov_b32 s{sT1}, 52429\nv_mul_u32_u24 v{P}, s{sT1}, v{TID}\nv_lshrrev_b32 v{P}, 18, v{P}")
    e(f"v_lshlrev_b32 v{vTmp}, 10, v{P}\ns_lshl_b32 s{sT0}, s{sB}, 2")
    e(f"buffer_load_dword v{TABV}, v{vTmp}, s[{sWS}:{sWS+3}], s{sT0} offen")
    e(f"v_mul_u32_u24 v{SUB}, 5, v{P}\nv_sub_u32 v{SUB}, v{TID}, v{SUB}")
    Z=vXA
    for r in range(4): e(f"v_mov_b32 v{Z+r}, 0")
    e(f"v_lshlrev_b32 v{vTmp}, 4, v{L}\nv_add_u32 v{vTmp}, s{sRing}, v{vTmp}")
    for k in range(6): e(f"ds_write_b128 v{vTmp}, {vr(Z,4)} offset:{k*1024}")
    e(f"s_mul_i32 s{sT0}, s{sWave}, 768\ns_add_u32 s{sT0}, s{sT0}, {IDX_OFF}")
    e(f"v_lshlrev_b32 v{Z+4}, 2, v{L}\nv_add_u32 v{Z+4}, s{sT0}, v{Z+4}\nv_mov_b32 v{Z+5}, {OOB}")
    for k in range(3): e(f"ds_write_b32 v{Z+4}, v{Z+5} offset:{k*256}")
    e(f"v_and_b32 v{Z+6}, 15, v{L}\nv_lshlrev_b32 v{Z+6}, 2, v{Z+6}\nv_add_u32 v{Z+6}, {GC_OFF}, v{Z+6}")
    e(f"ds_write_b32 v{Z+6}, v{Z}")
    i16,G,r_,cc,t0,t1=Z+8,Z+9,Z+10,Z+11,Z+12,Z+13
    e(f"v_and_b32 v{i16}, 15, v{L}\nv_lshrrev_b32 v{G}, 4, v{L}\nv_lshrrev_b32 v{r_}, 2, v{i16}\nv_and_b32 v{cc}, 3, v{L}")
    e(f"v_lshl_add_u32 v{t0}, v{G}, 3, v{r_}")
    e(f"v_lshlrev_b32 v{t0}, 7, v{t0}\nv_lshl_add_u32 v{t0}, v{cc}, 3, v{t0}\nv_add_u32 v{t0}, s{sRing}, v{t0}")
    e(f"v_lshrrev_b32 v{t1}, 1, v{r_}\nv_and_b32 v{vTmp}, 1, v{G}\nv_lshl_add_u32 v{t1}, v{vTmp}, 1, v{t1}")
    e(f"v_lshl_add_u32 v{vT}, v{t1}, 5, v{t0}")
    for ct in range(1,4): e(f"v_xor_b32 v{vT+ct}, {ct*32}, v{vT}")
    e(f"v_lshrrev_b32 v{t0}, 3, v{L}\nv_lshlrev_b32 v{t0}, 2, v{t0}\nv_add_u32 v{vIB}, s{sT0}, v{t0}")
    e(f"v_and_b32 v{t0}, 7, v{L}\nv_and_b32 v{t1}, 1, v{G}\nv_lshlrev_b32 v{t1}, 1, v{t1}\nv_xor_b32 v{t0}, v{t0}, v{t1}")
    e(f"v_lshlrev_b32 v{vP}, 4, v{t0}\nv_xor_b32 v{vP+1}, 64, v{vP}")
    e(f"s_lshl_b32 s{sT1}, s{sWave}, 2\nv_add_u32 v{t0}, s{sT1}, v{r_}")
    e(f"v_and_b32 v{t1}, 8, v{t0}\nv_lshrrev_b32 v{t1}, 2, v{t1}\nv_xor_b32 v{t1}, v{t1}, v{G}")
    e(f"v_lshlrev_b32 v{t0}, 6, v{t0}\nv_lshl_add_u32 v{t0}, v{t1}, 4, v{t0}")
    e(f"v_mul_u32_u24 v{t1}, {S_T}, v{cc}\nv_add_u32 v{t0}, v{t0}, v{t1}\nv_add_u32 v{vSW}, {S_OFF}, v{t0}")
    e(f"v_and_b32 v{t1}, 8, v{i16}\nv_lshrrev_b32 v{t1}, 2, v{t1}\nv_xor_b32 v{t1}, v{t1}, v{G}")
    e(f"v_lshlrev_b32 v{t0}, 6, v{i16}\nv_lshl_add_u32 v{t0}, v{t1}, 4, v{t0}\nv_add_u32 v{vSR}, {S_OFF}, v{t0}")
    e(f"v_lshlrev_b32 v{t0}, 2, v{cc}\ns_mov_b32 s{sT1}, 0x2137\nv_lshrrev_b32 v{vQN}, v{t0}, s{sT1}\nv_and_b32 v{vQN}, 15, v{vQN}")
    CA=Z+14
    e(f"v_lshlrev_b32 v{CA}, 8, v{G}\nv_lshl_add_u32 v{CA}, v{i16}, 3, v{CA}\nv_add_u32 v{CA}, s{sRing}, v{CA}")
    e("s_waitcnt vmcnt(0)")
    CNT=63
    e(f"v_lshrrev_b32 v{CNT}, 16, v{TABV}\nv_and_b32 v{RB}, 0xffff, v{TABV}")
    e(f"v_mul_u32_u24 v{t0}, {EPW}, v{P}\nv_add_u32 v{RB}, v{RB}, v{t0}\nv_mul_u32_u24 v{RB}, 12, v{RB}")
    e(f"s_cmp_eq_u32 s{sMode}, 0\ns_cbranch_scc0 K2_slowwin")
    e(f"v_mov_b32 v{II}, v{SUB}\nv_mov_b32 v{HI}, v{CNT}")
    e("s_branch K2_winok")
    e("K2_slowwin:")
    e(f"v_lshlrev_b32 v{t0}, 2, v{P}\nv_add_u32 v{t0}, {PREF_OFF}, v{t0}\nds_read_b32 v{t0}, v{t0}")
    e("s_waitcnt lgkmcnt(0)")
    e(f"v_sub_u32 v{t0}, s{sLo}, v{t0}")
    e(f"v_add_u32 v{t1}, {CAP}, v{t0}")
    e(f"v_med3_i32 v{t0}, v{t0}, 0, v{CNT}\nv_med3_i32 v{HI}, v{t1}, 0, v{CNT}")
    e(f"v_add_u32 v{II}, v{t0}, v{SUB}")
    e("K2_winok:")
    e(f"s_mov_b32 s{sFirst}, 1")
    R=36
    e("K2_bin:")
    for r in range(5):
        e(f"v_add_u32 v{t0}, {5*r}, v{II}")
        e(f"v_cmp_lt_u32 vcc, v{t0}, v{HI}")
        e(f"v_mul_u32_u24 v{t0}, 12, v{t0}\nv_add_u32 v{t0}, v{t0}, v{RB}")
        e(f"s_mov_b64 s[{40+2*r}:{41+2*r}], vcc")
        e(f"v_mov_b32 v{t1}, {OOB}\nv_cndmask_b32 v{R+4*r+3}, v{t1}, v{t0}, vcc")
    e(f"s_mov_b32 s{sT0}, {REC_OFF}")
    for r in range(5):
        e(f"buffer_load_dwordx3 v[{R+4*r}:{R+4*r+2}], v{R+4*r+3}, s[{sWS}:{sWS+3}], s{sT0} offen")
    e(f"s_cmp_eq_u32 s{sFirst}, 0\ns_cbranch_scc1 K2_bin_w0")
    e(f"s_mov_b32 s{sFirst}, 0")
    e(f"s_cmp_ge_u32 s{sWave}, 8\ns_cbranch_scc1 K2_bin_now")
    def wload(h):
        e(f"s_mul_i32 s{sWo}, s{sWave}, 10240\ns_add_u32 s{sWo}, s{sWo}, {WF_OFF+h*81920}")
        e(f"v_mbcnt_lo_u32_b32 v{vTmp}, -1, 0\nv_mbcnt_hi_u32_b32 v{vTmp}, -1, v{vTmp}\nv_lshlrev_b32 v{vTmp}, 4, v{vTmp}")
        for k in range(10):
            if k in (4,8): e(f"s_add_u32 s{sWo}, s{sWo}, 4096")
            e(f"buffer_load_dwordx4 {vr(vW+4*k,4)}, v{vTmp}, s[{sWS}:{sWS+3}], s{sWo} offen offset:{(k%4)*1024}")
    wload(0)
    e("s_waitcnt lgkmcnt(0)\ns_barrier\ns_waitcnt vmcnt(10)\ns_branch K2_bin_go")
    e("K2_bin_now:")
    e("s_waitcnt lgkmcnt(0)\ns_barrier")
    e("K2_bin_w0:")
    e("s_waitcnt vmcnt(0)")
    e("K2_bin_go:")
    e(f"v_mov_b32 v{t1}, 1\ns_mov_b32 s{sT1}, {GC_OFF}")
    assert GC_OFF%64==0
    for r in range(5):
        lab=e.lab("K2_ba")
        e(f"s_mov_b64 exec, s[{40+2*r}:{41+2*r}]\ns_cbranch_execz {lab}")
        e(f"v_and_or_b32 v{t0}, v{R+4*r}, 60, s{sT1}")
        e(f"ds_add_rtn_u32 v{R+4*r+3}, v{t0}, v{t1}")
        e(f"{lab}:")
    e("s_mov_b64 exec, -1\ns_waitcnt lgkmcnt(0)")
    e(f"s_movk_i32 s{sT1}, {CAP}")
    for r in range(5):
        lab=e.lab("K2_bw")
        w0=R+4*r; rk=w0+3
        e(f"s_mov_b64 exec, s[{40+2*r}:{41+2*r}]\ns_cbranch_execz {lab}")
        e(f"v_cmp_gt_u32 vcc, s{sT1}, v{rk}\ns_and_b64 exec, exec, vcc")
        e(f"v_bfe_u32 v{t0}, v{w0}, 2, 4")
        e(f"v_mul_u32_u24 v{t1}, 768, v{t0}\nv_lshl_add_u32 v{t1}, v{rk}, 2, v{t1}")
        e(f"v_mul_u32_u24 v{t0}, {RING}, v{t0}\nv_lshl_add_u32 v{t0}, v{rk}, 5, v{t0}")
        e(f"v_and_b32 v{rk}, 3, v{w0}\nv_lshl_add_u32 v{t0}, v{rk}, 3, v{t0}")
        e(f"v_and_b32 v{w0}, 0xfffffc00, v{w0}")
        e(f"v_add_u32 v{t1}, {IDX_OFF}, v{t1}\nds_write_b32 v{t1}, v{w0}")
        e(f"ds_write2_b32 v{t0}, v{w0+1}, v{w0+2} offset0:0 offset1:1")
        e(f"{lab}:")
    e("s_mov_b64 exec, -1")
    e(f"v_add_u32 v{II}, 25, v{II}\nv_cmp_lt_u32 vcc, v{II}, v{HI}")
    e("s_cbranch_vccnz K2_bin")
    e("s_waitcnt lgkmcnt(0)\ns_barrier")
    e(f"v_and_b32 v{t0}, 15, v{L}\nv_lshlrev_b32 v{t0}, 2, v{t0}\nv_add_u32 v{t0}, {GC_OFF}, v{t0}\nds_read_b32 v{t0}, v{t0}")
    e("s_waitcnt lgkmcnt(0)")
    e(f"v_cmp_lt_u32 vcc, {CAP}, v{t0}")
    e(f"v_readlane_b32 s{sNch}, v{t0}, s{sWave}")
    e("s_cbranch_vccnz K2_overflow")
    e("K2_nover:")
    e(f"s_add_u32 s{sNch}, s{sNch}, 31\ns_lshr_b32 s{sNch}, s{sNch}, 5\ns_max_u32 s{sNch}, s{sNch}, 1\ns_lshl_b32 s{sN128}, s{sNch}, 7")
    for c in range(6):
        e(f"ds_read_b64_tr_b16 {vr(vCF+4*c,2)}, v{CA} offset:{c*1024}")
        e(f"ds_read_b64_tr_b16 {vr(vCF+4*c+2,2)}, v{CA} offset:{c*1024+128}")
    e(f"s_mov_b32 s{sCi}, 0\ns_mov_b32 s{sSi}, 0\ns_mov_b32 s{sSoff}, 0\ns_mov_b32 s{sXR+2}, {XBYTES}")
    e(f"s_mov_b32 s{sS}, 0\ns_mov_b32 s{sWp}, 0\ns_mov_b32 s{sSlot}, s{sRing}")
    def advance():
        lab=e.lab("K2_adv")
        e(f"s_add_u32 s{sCi}, s{sCi}, 128\ns_cmp_lg_u32 s{sCi}, s{sN128}\ns_cbranch_scc1 {lab}")
        e(f"s_mov_b32 s{sCi}, 0\ns_add_u32 s{sSi}, s{sSi}, 1")
        e(f"s_and_b32 s{sT0}, s{sSi}, 3\ns_lshl_b32 s{sSoff}, s{sT0}, 8\ns_lshr_b32 s{sT0}, s{sSi}, 2\ns_lshl_b32 s{sT0}, s{sT0}, 7\ns_add_u32 s{sSoff}, s{sSoff}, s{sT0}")
        e(f"s_cmp_lt_u32 s{sSi}, 8\ns_cselect_b32 s{sXR+2}, s{sXR+2}, 0")
        e(f"{lab}:")
    def readidx(dst):
        e(f"v_add_u32 v{vTmp}, s{sCi}, v{vIB}")
        for i in range(4): e(f"ds_read_b32 v{dst+i}, v{vTmp} offset:{i*32}")
    so=[44,45,46]
    for k in range(3):
        readidx(vA1+4*k)
        e(f"s_mov_b32 s{so[k]}, s{sSoff}")
        advance()
    readidx(vI)
    e("s_waitcnt lgkmcnt(4)")
    for k in range(3):
        for i in range(4): e(f"v_add_u32 v{vA1+4*k+i}, v{vA1+4*k+i}, v{vP+(i&1)}")
    for k in range(3):
        e(f"s_add_u32 s{sM}, s{sRing}, {k*4096}")
        for i in range(4):
            e(f"s_mov_b32 m0, s{sM}\ns_add_u32 s{sM}, s{sM}, 1024")
            e(f"buffer_load_dwordx4 v{vA1+4*k+i}, s[{sXR}:{sXR+3}], s{so[k]} offen lds")
    e("K2_blk0:")
    for c in range(6):
        l8=e.lab("K2_w8"); l9=e.lab("K2_w9")
        e(f"s_cmp_eq_u32 s{sWp}, 0\ns_cbranch_scc1 {l8}")
        e(f"s_sub_u32 s{sWp}, s{sWp}, 1\ns_waitcnt vmcnt(18)\ns_branch {l9}")
        e(f"{l8}:\ns_waitcnt vmcnt(8)\n{l9}:")
        for ct in range(4):
            e(f"ds_read_b64_tr_b16 {vr(vXA+4*ct,2)}, v{vT+ct}")
            e(f"ds_read_b64_tr_b16 {vr(vXA+4*ct+2,2)}, v{vT+ct} offset:512")
        e("s_waitcnt lgkmcnt(8)")
        for i in range(4): e(f"v_add_u32 v{vI+i}, v{vI+i}, v{vP+(i&1)}")
        e(f"s_mov_b32 s{sM}, s{sSlot}")
        e("s_waitcnt lgkmcnt(0)")
        for i in range(4):
            e(f"s_mov_b32 m0, s{sM}\ns_add_u32 s{sM}, s{sM}, 1024")
            e(f"buffer_load_dwordx4 v{vI+i}, s[{sXR}:{sXR+3}], s{sSoff} offen lds")
        advance()
        readidx(vI)
        for ct in range(4):
            C = "0" if c==0 else vr(vA1+4*ct,4)
            e(f"v_mfma_f32_16x16x32_bf16 {vr(vA1+4*ct,4)}, {vr(vXA+4*ct,4)}, {vr(vCF+4*c,4)}, {C}")
        e(f"s_add_u32 s{sSlot}, s{sSlot}, 4096\ns_cmp_eq_u32 s{sSlot}, s{sRend}")
        e(f"s_cselect_b32 s{sDel}, s{sKm8192}, s{sK4096}\ns_cselect_b32 s{sSlot}, s{sRing}, s{sSlot}")
        for ct in range(4): e(f"v_add_u32 v{vT+ct}, s{sDel}, v{vT+ct}")
        if c<5:
            e(f"s_cmp_eq_u32 s{sNch}, {c+1}\ns_cbranch_scc1 K2_send")
    e("K2_send:")
    e(f"s_and_b32 s{sT0}, s{sS}, 3")
    e(f"v_cmp_eq_u32 vcc, s{sT0}, v{vQN}")
    e(f"v_mov_b32 v{vTmp}, 0x80008000")
    e("s_nop 3")
    e(f"v_cndmask_b32 v{vTmp}, 0, v{vTmp}, vcc")
    e("s_nop 1")
    for ks in range(2):
        for hh in range(2):
            a=vA1+4*(2*ks+hh)
            e(f"v_cvt_pk_bf16_f32 v{vXA+4*ks+2*hh}, v{a}, v{a+1}")
            e(f"v_cvt_pk_bf16_f32 v{vXA+4*ks+2*hh+1}, v{a+2}, v{a+3}")
    for k in range(8): e(f"v_xor_b32 v{vXA+k}, v{vXA+k}, v{vTmp}")
    e("s_barrier")
    e(f"ds_write_b128 v{vSW}, {vr(vXA,4)}")
    e(f"ds_write_b128 v{vSW}, {vr(vXA+4,4)} offset:{S_KS}")
    e("s_waitcnt lgkmcnt(0)\ns_barrier")
    e(f"s_cmp_ge_u32 s{sWave}, 8\ns_cbranch_scc1 K2_next")
    e(f"s_cmp_lg_u32 s{sS}, 4\ns_cbranch_scc1 K2_g2sel")
    e(f"s_cmp_ge_u32 s{sNch}, 3\ns_cbranch_scc1 K2_g2w12")
    e(f"s_waitcnt vmcnt(0)\ns_mov_b32 s{sWp}, 0\ns_branch K2_g2sel")
    e("K2_g2w12:\ns_waitcnt vmcnt(12)")
    e("K2_g2sel:")
    e(f"s_cmp_eq_u32 s{sT0}, 1\ns_cbranch_scc1 K2_g2_1")
    e(f"s_cmp_eq_u32 s{sT0}, 2\ns_cbranch_scc1 K2_g2_2")
    e(f"s_cmp_eq_u32 s{sT0}, 3\ns_cbranch_scc1 K2_g2_3")
    bufs=[vXA+4*k for k in range(4)]+[vA1+4*k for k in range(4)]
    for q in range(4):
        e(f"K2_g2_{q}:")
        if q==0: plan=[(0,0,0),(1,2,1),(2,2,2),(3,2,3)]
        else:
            k=q-1; plan=[(0,3,q),(q,1,0)]
            for j in range(3):
                if j!=k: plan.append((1+j,4,1+(3-j-k)))
        items=[(t,m,o,ks,mt) for (t,m,o) in plan for ks in range(2) for mt in range(3)]
        n=len(items); assert n==24
        def rd(i):
            t,m,o,ks,mt=items[i]
            e(f"ds_read_b128 {vr(bufs[i%8],4)}, v{vSR} offset:{t*S_T+ks*S_KS+mt*1024}")
        for i in range(7): rd(i)
        for i in range(n):
            t,m,o,ks,mt=items[i]
            e(f"s_waitcnt lgkmcnt({min(6,n-1-i)})")
            acc=vA2+(o*3+mt)*4
            e(f"v_mfma_f32_16x16x32_bf16 {vr(acc,4)}, {vr(vW+(m*2+ks)*4,4)}, {vr(bufs[i%8],4)}, {vr(acc,4)}")
            if i+7<n: rd(i+7)
        if q<3: e("s_branch K2_g2done")
    e("K2_g2done:")
    e(f"s_cmp_lg_u32 s{sS}, 3\ns_cbranch_scc1 K2_next")
    wload(1)
    e(f"s_mov_b32 s{sWp}, 3")
    e("K2_next:")
    e(f"s_add_u32 s{sS}, s{sS}, 1\ns_cmp_lt_u32 s{sS}, 8\ns_cbranch_scc1 K2_blk0")
    e(f"s_cmp_eq_u32 s{sMode}, 0\ns_cbranch_scc1 K2_epi")
    e(f"s_add_u32 s{sLo}, s{sLo}, {CAP}\ns_cmp_ge_u32 s{sLo}, s{sTot}\ns_cbranch_scc1 K2_epi")
    e("s_waitcnt vmcnt(0)\ns_branch K2_round")
    e("K2_epi:")
    e(f"s_cmp_ge_u32 s{sWave}, 8\ns_cbranch_scc1 K2_fin")
    e(f"v_mbcnt_lo_u32_b32 v2, -1, 0\nv_mbcnt_hi_u32_b32 v2, -1, v2")
    e(f"v_and_b32 v3, 15, v2\nv_lshrrev_b32 v1, 4, v2\nv_lshlrev_b32 v1, 3, v1\nv_lshl_add_u32 v1, v3, 10, v1")
    e(f"v_mov_b32 v0, {OOB}\nv_cmp_gt_u32 vcc, 8, v3\ns_mul_i32 s{sT0}, s{sB}, {NPB*1024}\ns_lshl_b32 s{sT1}, s{sWave}, 5\ns_add_u32 s40, s{sT0}, s{sT1}")
    e(f"v_cndmask_b32 v0, v0, v1, vcc")
    e("s_add_u32 s41, s40, 16384\ns_add_u32 s42, s41, 16384")
    e("s_mov_b32 s43, 0xbfb8aa3b")
    for mt in range(3):
        a0=vA2+mt*4
        g=vXA
        for r in range(4): e(f"v_mul_f32 v{g+r}, s43, v{a0+r}")
        for r in range(4): e(f"v_exp_f32 v{g+r}, v{g+r}")
        e("s_nop 0")
        for r in range(4): e(f"v_add_f32 v{g+r}, 1.0, v{g+r}")
        for r in range(4): e(f"v_rcp_f32 v{g+r}, v{g+r}")
        pk=vA1+mt*8 if mt<2 else vCF
        e(f"v_cvt_pk_bf16_f32 v{pk}, v{a0}, v{a0+1}\nv_cvt_pk_bf16_f32 v{pk+1}, v{a0+2}, v{a0+3}")
        for o in range(1,4):
            a=vA2+(o*3+mt)*4
            for r in range(4): e(f"v_mul_f32 v{a+r}, v{a+r}, v{g+r}")
            e(f"v_cvt_pk_bf16_f32 v{pk+2*o}, v{a}, v{a+1}\nv_cvt_pk_bf16_f32 v{pk+2*o+1}, v{a+2}, v{a+3}")
        for o in range(4):
            e(f"buffer_store_dwordx2 {vr(pk+2*o,2)}, v{0 if mt==2 else 1}, s[{sOUT}:{sOUT+3}], s{40+mt} offen offset:{o*256}")
    e("K2_fin:")
    e("s_waitcnt vmcnt(0) lgkmcnt(0)\ns_endpgm")
    e("K2_overflow:")
    e(f"s_cmp_lg_u32 s{sMode}, 0\ns_cbranch_scc1 K2_nover")
    e(f"s_mov_b32 s{sMode}, 1\ns_mov_b32 s{sLo}, 0")
    e(f"v_lshlrev_b32 v{t0}, 2, v{P}\nv_add_u32 v{t0}, {PREF_OFF}, v{t0}")
    e(f"ds_write_b32 v{t0}, v{CNT}")
    e("s_waitcnt lgkmcnt(0)\ns_barrier")
    e(f"v_mov_b32 v{RB}, 0\nv_mov_b32 v{HI}, 0\ns_mov_b32 s{sT0}, 0")
    e("K2_pl:")
    e(f"s_lshl_b32 s{sT1}, s{sT0}, 2\ns_add_u32 s{sT1}, s{sT1}, {PREF_OFF}\nv_mov_b32 v{t1}, s{sT1}\nds_read_b32 v{t1}, v{t1}")
    e(f"v_cmp_lt_u32 vcc, s{sT0}, v{P}")
    e("s_waitcnt lgkmcnt(0)")
    e(f"v_add_u32 v{HI}, v{HI}, v{t1}\nv_cndmask_b32 v{t1}, 0, v{t1}, vcc\nv_add_u32 v{RB}, v{RB}, v{t1}")
    e(f"s_add_u32 s{sT0}, s{sT0}, 1\ns_cmp_lt_u32 s{sT0}, 128\ns_cbranch_scc1 K2_pl")
    e("s_barrier")
    e(f"ds_write_b32 v{t0}, v{RB}")
    e(f"v_readfirstlane_b32 s{sTot}, v{HI}")
    e("s_waitcnt vmcnt(0) lgkmcnt(0)\ns_barrier\ns_branch K2_round")
    e("K2_done:\ns_endpgm")
    return e.text()

HEADER=open("standalone__tensor_product_equiv_equiformer__graph.s.ref").read().split("; Override launch geometry")[0]

def desc(name,nv,ns):
    return f""".p2align 6
.amdhsa_kernel {name}
  .amdhsa_next_free_vgpr {nv}
  .amdhsa_next_free_sgpr {ns}
  .amdhsa_accum_offset {(nv+3)//4*4}
  .amdhsa_group_segment_fixed_size 0
  .amdhsa_kernarg_size 96
  .amdhsa_user_sgpr_count 2
  .amdhsa_user_sgpr_kernarg_segment_ptr 1
  .amdhsa_system_sgpr_workgroup_id_x 1
.end_amdhsa_kernel"""

def build(opt={}):
    s=HEADER
    s+=f"; Two launches: (1) bin edges by destination + fold weights + prefetch, (2) gather/aggregate + GEMM + gate.\n"
    s+=f"; @launch kernel={K1} grid=(256,1,1) block=(640,1,1) lds={K1_LDS}\n"
    s+=f"; @launch kernel={K2} grid=({NB},1,1) block=(640,1,1) lds={K2_LDS}\n"
    s+='.amdgcn_target "amdgcn-amd-amdhsa--gfx950"\n.text\n'
    s+=gen_k1(opt)+"\n"+gen_k2(opt)+"\n"
    s+='.section .rodata,"a"\n'+desc(K1,72,64)+"\n"+desc(K2,NV,64)+"\n"
    for m in re.finditer(r"buffer_\w+ .*offset:(\d+)", s):
        assert int(m.group(1))<4096, m.group(0)
    for m in re.finditer(r"ds_\w+ .*offset:(\d+)", s):
        assert int(m.group(1))<65536, m.group(0)
    return s

if __name__=="__main__":
    out=sys.argv[1] if len(sys.argv)>1 else "standalone__tensor_product_equiv_equiformer__graph.s"
    opt={}
    for a in sys.argv[2:]:
        k,v=a.split("="); opt[k]=eval(v)
    open(out,"w").write(build(opt))
    print("wrote",out)
```

```python
import re, sys

N=10000; E=320000
NPROD=128; EPW=2500
NB=250; NPB=40
TAB_OFF=0; WF_OFF=131072; REC_OFF=294912
WS_USED=REC_OFF+NPROD*EPW*12
XBYTES=N*1024
OOB=0x40000000
CAP=192
RING=12288
S_OFF=10*RING
S_T=5136; S_KS=2560
IDX_OFF=S_OFF+4*S_T
GC_OFF=IDX_OFF+10*768
PREF_OFF=GC_OFF+64
K2_LDS=PREF_OFF+512
K1_CNT=30016; K1_START=31040; K1_LDS=32064

K1="eqf_bin_kernel"
K2="standalone__tensor_product_equiv_equiformer__graph_kernel"

class A:
    def __init__(s): s.L=[]; s.n=0
    def __call__(s, txt):
        for ln in txt.split("\n"):
            ln=ln.strip()
            if ln: s.L.append(ln)
    def lab(s, base):
        s.n+=1; return f"{base}_{s.n}"
    def text(s):
        out=[]
        for l in s.L:
            out.append(l if l.endswith(":") or l.startswith(".") else "    "+l)
        return "\n".join(out)

def vr(a,n): return f"v[{a}:{a+n-1}]"
def sr(a,n): return f"s[{a}:{a+n-1}]"

def srd(e, d, plo, nbytes):
    e(f"s_mov_b32 s{d}, s{plo}\ns_mov_b32 s{d+1}, s{plo+1}\ns_mov_b32 s{d+2}, {nbytes}\ns_mov_b32 s{d+3}, 0x20000")

def gen_k1(opt):
    e=A()
    e(f".globl {K1}\n.p2align 8\n.type {K1},@function\n{K1}:")
    e(f"s_cmp_ge_u32 s2, 256\ns_cbranch_scc1 K1_done")
    e("s_load_dwordx4 s[4:7], s[0:1], 0")
    e("s_load_dwordx4 s[8:11], s[0:1], 16")
    e("s_load_dwordx4 s[12:15], s[0:1], 32")
    e("s_load_dwordx4 s[16:19], s[0:1], 48")
    e("s_load_dwordx2 s[20:21], s[0:1], 88")
    e("s_cmp_ge_u32 s2, 128\ns_cbranch_scc1 K1_helper")
    e("v_lshlrev_b32 v1, 2, v0\nv_mov_b32 v2, 0")
    e("v_cmp_gt_u32 vcc, 0x100, v0\ns_and_saveexec_b64 s[22:23], vcc")
    e(f"ds_write_b32 v1, v2 offset:{K1_CNT}")
    e("s_mov_b64 exec, s[22:23]")
    e("v_lshlrev_b32 v1, 4, v0")
    e("v_mul_u32_u24 v2, 24, v0")
    e("v_lshlrev_b32 v3, 3, v0")
    e("s_mul_i32 s44, s2, 10000\ns_mul_i32 s45, s2, 15000\ns_mul_i32 s46, s2, 5000")
    e("v_cmp_gt_u32 vcc, 0x271, v0")
    e("s_waitcnt lgkmcnt(0)")
    srd(e,24,10,E*4)
    srd(e,28,12,E*4)
    srd(e,32,6,E*6)
    srd(e,36,8,E*2)
    srd(e,40,20,WS_USED)
    e("s_and_saveexec_b64 s[48:49], vcc")
    e("s_mov_b64 s[50:51], exec")
    e("buffer_load_dwordx4 v[8:11], v1, s[28:31], s44 offen")
    e("buffer_load_dwordx4 v[4:7], v1, s[24:27], s44 offen")
    e("buffer_load_dwordx2 v[18:19], v3, s[36:39], s46 offen")
    e("buffer_load_dwordx4 v[12:15], v2, s[32:35], s45 offen")
    e("buffer_load_dwordx2 v[16:17], v2, s[32:35], s45 offen offset:16")
    e("s_barrier")
    e("v_mov_b32 v3, 1")
    e("s_mov_b32 s47, 52429")
    e("s_waitcnt vmcnt(4)")
    for r in range(4):
        e(f"v_mul_u32_u24 v{20+r}, s47, v{8+r}")
        e(f"v_lshrrev_b32 v{20+r}, 21, v{20+r}")
        e(f"v_mul_u32_u24 v{24+r}, 40, v{20+r}")
        e(f"v_sub_u32 v{24+r}, v{8+r}, v{24+r}")
        e(f"v_lshlrev_b32 v{20+r}, 2, v{20+r}")
        e(f"ds_add_rtn_u32 v{28+r}, v{20+r}, v3 offset:{K1_CNT}")
    e("s_waitcnt vmcnt(0)")
    ylo=lambda d,s: e(f"v_lshlrev_b32 v{d}, 16, v{s}")
    yhi=lambda d,s: e(f"v_and_b32 v{d}, 0xffff0000, v{s}")
    ys=[]
    for k in range(12): ys.append((12+k//2, k&1))
    for r in range(4):
        e(f"v_lshl_or_b32 v{32+4*r}, v{4+r}, 10, v{24+r}")
        (yhi if r&1 else ylo)(48, 18+r//2)
        for j in range(3):
            reg,hi=ys[3*r+j]
            (yhi if hi else ylo)(49+j, reg)
        for j in range(3):
            e(f"v_mul_f32 v{49+j}, v48, v{49+j}")
        e(f"v_cvt_pk_bf16_f32 v{33+4*r}, v48, v49")
        e(f"v_cvt_pk_bf16_f32 v{34+4*r}, v50, v51")
    e("s_mov_b64 exec, s[48:49]")
    e("s_waitcnt lgkmcnt(0)\ns_barrier")
    e("v_mbcnt_lo_u32_b32 v52, -1, 0\nv_mbcnt_hi_u32_b32 v52, -1, v52")
    e("v_lshlrev_b32 v53, 4, v52")
    e(f"ds_read_b128 v[56:59], v53 offset:{K1_CNT}")
    e("s_waitcnt lgkmcnt(0)")
    e("v_add_u32 v61, v56, v57\nv_add_u32 v62, v61, v58\nv_add_u32 v63, v62, v59")
    e("v_mov_b32 v54, v63")
    for sh in (1,2,4,8):
        e("s_nop 1")
        e(f"v_add_u32_dpp v54, v54, v54 row_shr:{sh} row_mask:0xf bank_mask:0xf bound_ctrl:0")
    e("s_nop 1\nv_add_u32_dpp v54, v54, v54 row_bcast:15 row_mask:0xa bank_mask:0xf")
    e("s_nop 1\nv_add_u32_dpp v54, v54, v54 row_bcast:31 row_mask:0xc bank_mask:0xf")
    e("v_sub_u32 v64, v54, v63")
    e("v_add_u32 v65, v64, v56\nv_add_u32 v66, v64, v61\nv_add_u32 v67, v64, v62")
    e(f"ds_write_b128 v53, v[64:67] offset:{K1_START}")
    e("v_readfirstlane_b32 s52, v0")
    for r in range(4):
        e(f"v_lshl_or_b32 v{68+r}, v{56+r}, 16, v{64+r}")
    e("s_cmp_lg_u32 s52, 0\ns_cbranch_scc1 K1_notab")
    e(f"s_lshl_b32 s53, s2, 10")
    e(f"buffer_store_dwordx4 v[68:71], v53, s[40:43], s53 offen")
    e("K1_notab:")
    e("s_mov_b64 exec, s[50:51]")
    e("s_waitcnt lgkmcnt(0)")
    for r in range(4):
        e(f"ds_read_b32 v{56+r}, v{20+r} offset:{K1_START}")
    e("s_waitcnt lgkmcnt(0)")
    for r in range(4):
        e(f"v_add_u32 v{56+r}, v{56+r}, v{28+r}")
        e(f"v_mul_u32_u24 v{56+r}, 12, v{56+r}")
        e(f"ds_write2_b32 v{56+r}, v{32+4*r}, v{33+4*r} offset0:0 offset1:1")
        e(f"ds_write_b32 v{56+r}, v{34+4*r} offset:8")
    e("s_mov_b64 exec, s[48:49]")
    e("s_waitcnt lgkmcnt(0)\ns_barrier")
    e("v_lshlrev_b32 v1, 4, v0")
    e(f"s_mul_i32 s53, s2, {EPW*12}\ns_add_u32 s53, s53, {REC_OFF}")
    e("ds_read_b128 v[4:7], v1\nds_read_b128 v[8:11], v1 offset:10240\nds_read_b128 v[12:15], v1 offset:20480")
    e("v_add_u32 v2, 10240, v1\nv_add_u32 v3, 20480, v1")
    e(f"v_cmp_gt_u32 vcc, {1875-1280}, v0")
    e("s_waitcnt lgkmcnt(2)\nbuffer_store_dwordx4 v[4:7], v1, s[40:43], s53 offen")
    e("s_waitcnt lgkmcnt(1)\nbuffer_store_dwordx4 v[8:11], v2, s[40:43], s53 offen")
    e("s_and_saveexec_b64 s[22:23], vcc")
    e("s_cbranch_execz K1_pend")
    e("s_waitcnt lgkmcnt(0)\nbuffer_store_dwordx4 v[12:15], v3, s[40:43], s53 offen")
    e("K1_pend:")
    e("s_waitcnt vmcnt(0) lgkmcnt(0)\ns_endpgm")
    e("K1_helper:")
    e("s_sub_u32 s22, s2, 128")
    e("v_lshrrev_b32 v1, 6, v0\nv_and_b32 v2, 63, v0")
    e("s_mul_i32 s23, s22, 640\nv_add_u32 v3, s23, v0\nv_lshlrev_b32 v3, 7, v3")
    e("v_readfirstlane_b32 s44, v1")
    e("s_lshr_b32 s23, s22, 3\ns_mul_i32 s23, s23, 625\nv_add_u32 v4, s23, v0\nv_lshlrev_b32 v4, 10, v4")
    e("s_waitcnt lgkmcnt(0)")
    srd(e,24,4,XBYTES)
    e("s_cmp_ge_u32 s22, 16\ns_cbranch_scc1 K1_pf")
    srd(e,28,14,1280)
    srd(e,32,16,256*256)
    srd(e,36,18,384*256)
    srd(e,40,20,WS_USED)
    e("s_mul_i32 s45, s22, 10\ns_add_u32 s45, s45, s44")
    e("s_and_b32 s46, s45, 1")
    e("s_lshr_b32 s47, s45, 1")
    e("s_mul_i32 s48, s47, 52429\ns_lshr_b32 s48, s48, 18")
    e("s_mul_i32 s49, s48, 5\ns_sub_u32 s49, s47, s49")
    e("s_and_b32 s50, s48, 7\ns_lshr_b32 s51, s48, 3")
    e("s_lshl_b32 s52, s51, 6\ns_lshl_b32 s53, s46, 5\ns_add_u32 s52, s52, s53")
    e("v_lshrrev_b32 v5, 4, v2\nv_and_b32 v6, 15, v2")
    e("v_lshlrev_b32 v7, 10, v5\nv_lshl_add_u32 v7, v6, 1, v7")
    e("v_lshlrev_b32 v8, 3, v5")
    e("s_lshl_b32 s53, s49, 7\ns_add_u32 s53, s53, s52\ns_lshl_b32 s53, s53, 1")
    e("buffer_load_dwordx2 v[10:11], v8, s[28:31], s53 offen")
    e("buffer_load_dwordx2 v[12:13], v8, s[28:31], s53 offen offset:32")
    e("s_cmp_ge_u32 s49, 2\ns_cbranch_scc1 K1_w1")
    for (lab,sub,R) in (("",0,32),("K1_w1:",2,36)):
        if lab: e(lab)
        e(f"s_sub_u32 s54, s49, {sub}\ns_lshl_b32 s54, s54, 7\ns_add_u32 s54, s54, s52\ns_lshl_b32 s54, s54, 8")
        e("s_lshl_b32 s55, s50, 5\ns_add_u32 s54, s54, s55\ns_add_u32 s55, s54, 4096")
        for j in range(4): e(f"buffer_load_ushort v{16+j}, v7, s[{R}:{R+3}], s54 offen offset:{j*256}")
        for j in range(4): e(f"buffer_load_ushort v{20+j}, v7, s[{R}:{R+3}], s55 offen offset:{j*256}")
        if not lab: e("s_branch K1_wj")
    e("K1_wj:")
    e("buffer_load_dword v30, v3, s[24:27], 0 offen")
    if opt.get('pf2',True): e("buffer_load_dword v31, v3, s[24:27], 0 offen offset:64")
    e("buffer_load_dword v32, v4, s[24:27], 0 offen")
    if opt.get('pf2',True): e("buffer_load_dword v33, v4, s[24:27], 0 offen offset:64")
    npf=4 if opt.get('pf2',True) else 2
    e(f"s_waitcnt vmcnt({npf})")
    for j in range(8):
        src=10+j//2
        if j&1: e(f"v_and_b32 v24, 0xffff0000, v{src}")
        else:   e(f"v_lshlrev_b32 v24, 16, v{src}")
        e(f"v_lshlrev_b32 v{16+j}, 16, v{16+j}")
        e(f"v_mul_f32 v{16+j}, v24, v{16+j}")
    for k in range(4): e(f"v_cvt_pk_bf16_f32 v{40+k}, v{16+2*k}, v{17+2*k}")
    e(f"s_lshl_b32 s54, s45, 10\ns_add_u32 s54, s54, {WF_OFF}")
    e("v_lshlrev_b32 v9, 4, v2")
    e("buffer_store_dwordx4 v[40:43], v9, s[40:43], s54 offen")
    e("s_waitcnt vmcnt(0)\ns_endpgm")
    e("K1_pf:")
    e("buffer_load_dword v30, v3, s[24:27], 0 offen")
    if opt.get('pf2',True): e("buffer_load_dword v31, v3, s[24:27], 0 offen offset:64")
    e("buffer_load_dword v32, v4, s[24:27], 0 offen")
    if opt.get('pf2',True): e("buffer_load_dword v33, v4, s[24:27], 0 offen offset:64")
    e("s_waitcnt vmcnt(0)")
    e("K1_done:\ns_endpgm")
    return e.text()

vT=4; vI=8; vIB=12; vP=13; vSW=15; vSR=16; vTmp=17; vQN=18
vXA=20; vA1=36; vCF=52; vW=76; vA2=116; NV=164
sXR=8; sWS=12; sOUT=16
sWave=20; sNch=21; sRing=22; sSlot=23; sSoff=24; sCi=25; sSi=26; sN128=27; sS=28; sWp=29; sM=30; sDel=31
sRend=33; sLo=34; sMode=35; sTot=36; sT0=37; sT1=38; sFirst=39
sK4096=50; sKm8192=51; sB=52; sWo=53

def gen_k2(opt):
    e=A()
    dbg=opt.get('dbg')
    e(f".globl {K2}\n.p2align 8\n.type {K2},@function\n{K2}:")
    e(f"s_cmp_ge_u32 s2, {NB}\ns_cbranch_scc1 K2_done")
    e(f"s_load_dwordx2 s[{sXR}:{sXR+1}], s[0:1], 0")
    e(f"s_load_dwordx2 s[{sWS}:{sWS+1}], s[0:1], 88")
    e(f"s_load_dwordx2 s[{sOUT}:{sOUT+1}], s[0:1], 72")
    e("v_lshrrev_b32 v1, 6, v0")
    e(f"s_mov_b32 s{sB}, s2")
    e(f"v_readfirstlane_b32 s{sWave}, v1")
    e(f"s_mov_b32 s{sK4096}, 4096\ns_mov_b32 s{sKm8192}, -8192")
    e(f"s_mov_b32 s{sMode}, 0\ns_mov_b32 s{sLo}, 0\ns_mov_b32 s{sTot}, 0")
    e(f"s_mov_b32 s{sXR+3}, 0x20000\ns_mov_b32 s{sWS+2}, {WS_USED}\ns_mov_b32 s{sWS+3}, 0x20000")
    e(f"s_mov_b32 s{sOUT+2}, {XBYTES}\ns_mov_b32 s{sOUT+3}, 0x20000")
    for r in range(48): e(f"v_mov_b32 v{vA2+r}, 0")
    e(f"s_mul_i32 s{sRing}, s{sWave}, {RING}\ns_add_u32 s{sRend}, s{sRing}, {RING}")
    e("s_waitcnt lgkmcnt(0)")
    e("K2_round:")
    L,TID,P,SUB,TABV,RB,II,HI=2,3,1,19,0,60,61,62
    e(f"v_mbcnt_lo_u32_b32 v{L}, -1, 0\nv_mbcnt_hi_u32_b32 v{L}, -1, v{L}")
    e(f"s_lshl_b32 s{sT0}, s{sWave}, 6\nv_add_u32 v{TID}, s{sT0}, v{L}")
    e(f"s_mov_b32 s{sT1}, 52429\nv_mul_u32_u24 v{P}, s{sT1}, v{TID}\nv_lshrrev_b32 v{P}, 18, v{P}")
    e(f"v_lshlrev_b32 v{vTmp}, 10, v{P}\ns_lshl_b32 s{sT0}, s{sB}, 2")
    e(f"buffer_load_dword v{TABV}, v{vTmp}, s[{sWS}:{sWS+3}], s{sT0} offen")
    e(f"v_mul_u32_u24 v{SUB}, 5, v{P}\nv_sub_u32 v{SUB}, v{TID}, v{SUB}")
    Z=vXA
    for r in range(4): e(f"v_mov_b32 v{Z+r}, 0")
    e(f"v_lshlrev_b32 v{vTmp}, 4, v{L}\nv_add_u32 v{vTmp}, s{sRing}, v{vTmp}")
    for k in range(6): e(f"ds_write_b128 v{vTmp}, {vr(Z,4)} offset:{k*1024}")
    e(f"s_mul_i32 s{sT0}, s{sWave}, 768\ns_add_u32 s{sT0}, s{sT0}, {IDX_OFF}")
    e(f"v_lshlrev_b32 v{Z+4}, 2, v{L}\nv_add_u32 v{Z+4}, s{sT0}, v{Z+4}\nv_mov_b32 v{Z+5}, {OOB}")
    for k in range(3): e(f"ds_write_b32 v{Z+4}, v{Z+5} offset:{k*256}")
    e(f"v_and_b32 v{Z+6}, 15, v{L}\nv_lshlrev_b32 v{Z+6}, 2, v{Z+6}\nv_add_u32 v{Z+6}, {GC_OFF}, v{Z+6}")
    e(f"ds_write_b32 v{Z+6}, v{Z}")
    i16,G,r_,cc,t0,t1=Z+8,Z+9,Z+10,Z+11,Z+12,Z+13
    e(f"v_and_b32 v{i16}, 15, v{L}\nv_lshrrev_b32 v{G}, 4, v{L}\nv_lshrrev_b32 v{r_}, 2, v{i16}\nv_and_b32 v{cc}, 3, v{L}")
    e(f"v_lshl_add_u32 v{t0}, v{G}, 3, v{r_}")
    e(f"v_lshlrev_b32 v{t0}, 7, v{t0}\nv_lshl_add_u32 v{t0}, v{cc}, 3, v{t0}\nv_add_u32 v{t0}, s{sRing}, v{t0}")
    e(f"v_lshrrev_b32 v{t1}, 1, v{r_}\nv_and_b32 v{vTmp}, 1, v{G}\nv_lshl_add_u32 v{t1}, v{vTmp}, 1, v{t1}")
    e(f"v_lshl_add_u32 v{vT}, v{t1}, 5, v{t0}")
    for ct in range(1,4): e(f"v_xor_b32 v{vT+ct}, {ct*32}, v{vT}")
    e(f"v_lshrrev_b32 v{t0}, 3, v{L}\nv_lshlrev_b32 v{t0}, 2, v{t0}\nv_add_u32 v{vIB}, s{sT0}, v{t0}")
    e(f"v_and_b32 v{t0}, 7, v{L}\nv_and_b32 v{t1}, 1, v{G}\nv_lshlrev_b32 v{t1}, 1, v{t1}\nv_xor_b32 v{t0}, v{t0}, v{t1}")
    e(f"v_lshlrev_b32 v{vP}, 4, v{t0}\nv_xor_b32 v{vP+1}, 64, v{vP}")
    e(f"s_lshl_b32 s{sT1}, s{sWave}, 2\nv_add_u32 v{t0}, s{sT1}, v{r_}")
    e(f"v_and_b32 v{t1}, 8, v{t0}\nv_lshrrev_b32 v{t1}, 2, v{t1}\nv_xor_b32 v{t1}, v{t1}, v{G}")
    e(f"v_lshlrev_b32 v{t0}, 6, v{t0}\nv_lshl_add_u32 v{t0}, v{t1}, 4, v{t0}")
    e(f"v_mul_u32_u24 v{t1}, {S_T}, v{cc}\nv_add_u32 v{t0}, v{t0}, v{t1}\nv_add_u32 v{vSW}, {S_OFF}, v{t0}")
    e(f"v_and_b32 v{t1}, 8, v{i16}\nv_lshrrev_b32 v{t1}, 2, v{t1}\nv_xor_b32 v{t1}, v{t1}, v{G}")
    e(f"v_lshlrev_b32 v{t0}, 6, v{i16}\nv_lshl_add_u32 v{t0}, v{t1}, 4, v{t0}\nv_add_u32 v{vSR}, {S_OFF}, v{t0}")
    e(f"v_lshlrev_b32 v{t0}, 2, v{cc}\ns_mov_b32 s{sT1}, 0x2137\nv_lshrrev_b32 v{vQN}, v{t0}, s{sT1}\nv_and_b32 v{vQN}, 15, v{vQN}")
    CA=Z+14
    e(f"v_lshlrev_b32 v{CA}, 8, v{G}\nv_lshl_add_u32 v{CA}, v{i16}, 3, v{CA}\nv_add_u32 v{CA}, s{sRing}, v{CA}")
    e("s_waitcnt vmcnt(0)")
    CNT=63
    e(f"v_lshrrev_b32 v{CNT}, 16, v{TABV}\nv_and_b32 v{RB}, 0xffff, v{TABV}")
    e(f"v_mul_u32_u24 v{t0}, {EPW}, v{P}\nv_add_u32 v{RB}, v{RB}, v{t0}\nv_mul_u32_u24 v{RB}, 12, v{RB}")
    e(f"s_cmp_eq_u32 s{sMode}, 0\ns_cbranch_scc0 K2_slowwin")
    e(f"v_mov_b32 v{II}, v{SUB}\nv_mov_b32 v{HI}, v{CNT}")
    e("s_branch K2_winok")
    e("K2_slowwin:")
    e(f"v_lshlrev_b32 v{t0}, 2, v{P}\nv_add_u32 v{t0}, {PREF_OFF}, v{t0}\nds_read_b32 v{t0}, v{t0}")
    e("s_waitcnt lgkmcnt(0)")
    e(f"v_sub_u32 v{t0}, s{sLo}, v{t0}")
    e(f"v_add_u32 v{t1}, {CAP}, v{t0}")
    e(f"v_med3_i32 v{t0}, v{t0}, 0, v{CNT}\nv_med3_i32 v{HI}, v{t1}, 0, v{CNT}")
    e(f"v_add_u32 v{II}, v{t0}, v{SUB}")
    e("K2_winok:")
    e(f"s_mov_b32 s{sFirst}, 1")
    R=36
    e("K2_bin:")
    for r in range(5):
        e(f"v_add_u32 v{t0}, {5*r}, v{II}")
        e(f"v_cmp_lt_u32 vcc, v{t0}, v{HI}")
        e(f"v_mul_u32_u24 v{t0}, 12, v{t0}\nv_add_u32 v{t0}, v{t0}, v{RB}")
        e(f"s_mov_b64 s[{40+2*r}:{41+2*r}], vcc")
        e(f"v_mov_b32 v{t1}, {OOB}\nv_cndmask_b32 v{R+4*r+3}, v{t1}, v{t0}, vcc")
    e(f"s_mov_b32 s{sT0}, {REC_OFF}")
    for r in range(5):
        e(f"buffer_load_dwordx3 v[{R+4*r}:{R+4*r+2}], v{R+4*r+3}, s[{sWS}:{sWS+3}], s{sT0} offen")
    e(f"s_cmp_eq_u32 s{sFirst}, 0\ns_cbranch_scc1 K2_bin_w0")
    e(f"s_mov_b32 s{sFirst}, 0")
    e(f"s_cmp_ge_u32 s{sWave}, 8\ns_cbranch_scc1 K2_bin_now")
    def wload(h):
        e(f"s_mul_i32 s{sWo}, s{sWave}, 10240\ns_add_u32 s{sWo}, s{sWo}, {WF_OFF+h*81920}")
        e(f"v_mbcnt_lo_u32_b32 v{vTmp}, -1, 0\nv_mbcnt_hi_u32_b32 v{vTmp}, -1, v{vTmp}\nv_lshlrev_b32 v{vTmp}, 4, v{vTmp}")
        for k in range(10):
            if k in (4,8): e(f"s_add_u32 s{sWo}, s{sWo}, 4096")
            e(f"buffer_load_dwordx4 {vr(vW+4*k,4)}, v{vTmp}, s[{sWS}:{sWS+3}], s{sWo} offen offset:{(k%4)*1024}")
    wload(0)
    e("s_waitcnt lgkmcnt(0)\ns_barrier\ns_waitcnt vmcnt(10)\ns_branch K2_bin_go")
    e("K2_bin_now:")
    e("s_waitcnt lgkmcnt(0)\ns_barrier")
    e("K2_bin_w0:")
    e("s_waitcnt vmcnt(0)")
    e("K2_bin_go:")
    e(f"v_mov_b32 v{t1}, 1\ns_mov_b32 s{sT1}, {GC_OFF}")
    assert GC_OFF%64==0
    for r in range(5):
        lab=e.lab("K2_ba")
        e(f"s_mov_b64 exec, s[{40+2*r}:{41+2*r}]\ns_cbranch_execz {lab}")
        e(f"v_and_or_b32 v{t0}, v{R+4*r}, 60, s{sT1}")
        e(f"ds_add_rtn_u32 v{R+4*r+3}, v{t0}, v{t1}")
        e(f"{lab}:")
    e("s_mov_b64 exec, -1\ns_waitcnt lgkmcnt(0)")
    e(f"s_movk_i32 s{sT1}, {CAP}")
    for r in range(5):
        lab=e.lab("K2_bw")
        w0=R+4*r; rk=w0+3
        e(f"s_mov_b64 exec, s[{40+2*r}:{41+2*r}]\ns_cbranch_execz {lab}")
        e(f"v_cmp_gt_u32 vcc, s{sT1}, v{rk}\ns_and_b64 exec, exec, vcc")
        e(f"v_bfe_u32 v{t0}, v{w0}, 2, 4")
        e(f"v_mul_u32_u24 v{t1}, 768, v{t0}\nv_lshl_add_u32 v{t1}, v{rk}, 2, v{t1}")
        e(f"v_mul_u32_u24 v{t0}, {RING}, v{t0}\nv_lshl_add_u32 v{t0}, v{rk}, 5, v{t0}")
        e(f"v_and_b32 v{rk}, 3, v{w0}\nv_lshl_add_u32 v{t0}, v{rk}, 3, v{t0}")
        e(f"v_and_b32 v{w0}, 0xfffffc00, v{w0}")
        e(f"v_add_u32 v{t1}, {IDX_OFF}, v{t1}\nds_write_b32 v{t1}, v{w0}")
        e(f"ds_write2_b32 v{t0}, v{w0+1}, v{w0+2} offset0:0 offset1:1")
        e(f"{lab}:")
    e("s_mov_b64 exec, -1")
    e(f"v_add_u32 v{II}, 25, v{II}\nv_cmp_lt_u32 vcc, v{II}, v{HI}")
    e("s_cbranch_vccnz K2_bin")
    e("s_waitcnt lgkmcnt(0)\ns_barrier")
    e(f"v_and_b32 v{t0}, 15, v{L}\nv_lshlrev_b32 v{t0}, 2, v{t0}\nv_add_u32 v{t0}, {GC_OFF}, v{t0}\nds_read_b32 v{t0}, v{t0}")
    e("s_waitcnt lgkmcnt(0)")
    e(f"v_cmp_lt_u32 vcc, {CAP}, v{t0}")
    e(f"v_readlane_b32 s{sNch}, v{t0}, s{sWave}")
    e("s_cbranch_vccnz K2_overflow")
    e("K2_nover:")
    e(f"s_add_u32 s{sNch}, s{sNch}, 31\ns_lshr_b32 s{sNch}, s{sNch}, 5\ns_max_u32 s{sNch}, s{sNch}, 1\ns_lshl_b32 s{sN128}, s{sNch}, 7")
    for c in range(6):
        e(f"ds_read_b64_tr_b16 {vr(vCF+4*c,2)}, v{CA} offset:{c*1024}")
        e(f"ds_read_b64_tr_b16 {vr(vCF+4*c+2,2)}, v{CA} offset:{c*1024+128}")
    e(f"s_mov_b32 s{sCi}, 0\ns_mov_b32 s{sSi}, 0\ns_mov_b32 s{sSoff}, 0\ns_mov_b32 s{sXR+2}, {XBYTES}")
    e(f"s_mov_b32 s{sS}, 0\ns_mov_b32 s{sWp}, 0\ns_mov_b32 s{sSlot}, s{sRing}")
    def advance():
        lab=e.lab("K2_adv")
        e(f"s_add_u32 s{sCi}, s{sCi}, 128\ns_cmp_lg_u32 s{sCi}, s{sN128}\ns_cbranch_scc1 {lab}")
        e(f"s_mov_b32 s{sCi}, 0\ns_add_u32 s{sSi}, s{sSi}, 1")
        e(f"s_and_b32 s{sT0}, s{sSi}, 3\ns_lshl_b32 s{sSoff}, s{sT0}, 8\ns_lshr_b32 s{sT0}, s{sSi}, 2\ns_lshl_b32 s{sT0}, s{sT0}, 7\ns_add_u32 s{sSoff}, s{sSoff}, s{sT0}")
        e(f"s_cmp_lt_u32 s{sSi}, 8\ns_cselect_b32 s{sXR+2}, s{sXR+2}, 0")
        e(f"{lab}:")
    def readidx(dst):
        e(f"v_add_u32 v{vTmp}, s{sCi}, v{vIB}")
        for i in range(4): e(f"ds_read_b32 v{dst+i}, v{vTmp} offset:{i*32}")
    so=[44,45,46]
    for k in range(3):
        readidx(vA1+4*k)
        e(f"s_mov_b32 s{so[k]}, s{sSoff}")
        advance()
    readidx(vI)
    e("s_waitcnt lgkmcnt(4)")
    for k in range(3):
        for i in range(4): e(f"v_add_u32 v{vA1+4*k+i}, v{vA1+4*k+i}, v{vP+(i&1)}")
    for k in range(3):
        e(f"s_add_u32 s{sM}, s{sRing}, {k*4096}")
        for i in range(4):
            e(f"s_mov_b32 m0, s{sM}\ns_add_u32 s{sM}, s{sM}, 1024")
            e(f"buffer_load_dwordx4 v{vA1+4*k+i}, s[{sXR}:{sXR+3}], s{so[k]} offen lds")
    e("K2_blk0:")
    for c in range(6):
        l8=e.lab("K2_w8"); l9=e.lab("K2_w9")
        e(f"s_cmp_eq_u32 s{sWp}, 0\ns_cbranch_scc1 {l8}")
        e(f"s_sub_u32 s{sWp}, s{sWp}, 1\ns_waitcnt vmcnt(18)\ns_branch {l9}")
        e(f"{l8}:\ns_waitcnt vmcnt(8)\n{l9}:")
        for ct in range(4):
            e(f"ds_read_b64_tr_b16 {vr(vXA+4*ct,2)}, v{vT+ct}")
            e(f"ds_read_b64_tr_b16 {vr(vXA+4*ct+2,2)}, v{vT+ct} offset:512")
        e("s_waitcnt lgkmcnt(8)")
        for i in range(4): e(f"v_add_u32 v{vI+i}, v{vI+i}, v{vP+(i&1)}")
        e(f"s_mov_b32 s{sM}, s{sSlot}")
        e("s_waitcnt lgkmcnt(0)")
        for i in range(4):
            e(f"s_mov_b32 m0, s{sM}\ns_add_u32 s{sM}, s{sM}, 1024")
            e(f"buffer_load_dwordx4 v{vI+i}, s[{sXR}:{sXR+3}], s{sSoff} offen lds")
        advance()
        readidx(vI)
        for ct in range(4):
            C = "0" if c==0 else vr(vA1+4*ct,4)
            e(f"v_mfma_f32_16x16x32_bf16 {vr(vA1+4*ct,4)}, {vr(vXA+4*ct,4)}, {vr(vCF+4*c,4)}, {C}")
        e(f"s_add_u32 s{sSlot}, s{sSlot}, 4096\ns_cmp_eq_u32 s{sSlot}, s{sRend}")
        e(f"s_cselect_b32 s{sDel}, s{sKm8192}, s{sK4096}\ns_cselect_b32 s{sSlot}, s{sRing}, s{sSlot}")
        for ct in range(4): e(f"v_add_u32 v{vT+ct}, s{sDel}, v{vT+ct}")
        if c<5:
            e(f"s_cmp_eq_u32 s{sNch}, {c+1}\ns_cbranch_scc1 K2_send")
    e("K2_send:")
    e(f"s_and_b32 s{sT0}, s{sS}, 3")
    e(f"v_cmp_eq_u32 vcc, s{sT0}, v{vQN}")
    e(f"v_mov_b32 v{vTmp}, 0x80008000")
    e("s_nop 3")
    e(f"v_cndmask_b32 v{vTmp}, 0, v{vTmp}, vcc")
    e("s_nop 1")
    for ks in range(2):
        for hh in range(2):
            a=vA1+4*(2*ks+hh)
            e(f"v_cvt_pk_bf16_f32 v{vXA+4*ks+2*hh}, v{a}, v{a+1}")
            e(f"v_cvt_pk_bf16_f32 v{vXA+4*ks+2*hh+1}, v{a+2}, v{a+3}")
    for k in range(8): e(f"v_xor_b32 v{vXA+k}, v{vXA+k}, v{vTmp}")
    e("s_barrier")
    e(f"ds_write_b128 v{vSW}, {vr(vXA,4)}")
    e(f"ds_write_b128 v{vSW}, {vr(vXA+4,4)} offset:{S_KS}")
    e("s_waitcnt lgkmcnt(0)\ns_barrier")
    e(f"s_cmp_ge_u32 s{sWave}, 8\ns_cbranch_scc1 K2_next")
    e(f"s_cmp_lg_u32 s{sS}, 4\ns_cbranch_scc1 K2_g2sel")
    e(f"s_cmp_ge_u32 s{sNch}, 3\ns_cbranch_scc1 K2_g2w12")
    e(f"s_waitcnt vmcnt(0)\ns_mov_b32 s{sWp}, 0\ns_branch K2_g2sel")
    e("K2_g2w12:\ns_waitcnt vmcnt(12)")
    e("K2_g2sel:")
    e(f"s_cmp_eq_u32 s{sT0}, 1\ns_cbranch_scc1 K2_g2_1")
    e(f"s_cmp_eq_u32 s{sT0}, 2\ns_cbranch_scc1 K2_g2_2")
    e(f"s_cmp_eq_u32 s{sT0}, 3\ns_cbranch_scc1 K2_g2_3")
    bufs=[vXA+4*k for k in range(4)]+[vA1+4*k for k in range(4)]
    for q in range(4):
        e(f"K2_g2_{q}:")
        if q==0: plan=[(0,0,0),(1,2,1),(2,2,2),(3,2,3)]
        else:
            k=q-1; plan=[(0,3,q),(q,1,0)]
            for j in range(3):
                if j!=k: plan.append((1+j,4,1+(3-j-k)))
        items=[(t,m,o,ks,mt) for (t,m,o) in plan for ks in range(2) for mt in range(3)]
        n=len(items); assert n==24
        def rd(i):
            t,m,o,ks,mt=items[i]
            e(f"ds_read_b128 {vr(bufs[i%8],4)}, v{vSR} offset:{t*S_T+ks*S_KS+mt*1024}")
        for i in range(7): rd(i)
        for i in range(n):
            t,m,o,ks,mt=items[i]
            e(f"s_waitcnt lgkmcnt({min(6,n-1-i)})")
            acc=vA2+(o*3+mt)*4
            e(f"v_mfma_f32_16x16x32_bf16 {vr(acc,4)}, {vr(vW+(m*2+ks)*4,4)}, {vr(bufs[i%8],4)}, {vr(acc,4)}")
            if i+7<n: rd(i+7)
        if q<3: e("s_branch K2_g2done")
    e("K2_g2done:")
    e(f"s_cmp_lg_u32 s{sS}, 3\ns_cbranch_scc1 K2_next")
    wload(1)
    e(f"s_mov_b32 s{sWp}, 3")
    e("K2_next:")
    e(f"s_add_u32 s{sS}, s{sS}, 1\ns_cmp_lt_u32 s{sS}, 8\ns_cbranch_scc1 K2_blk0")
    e(f"s_cmp_eq_u32 s{sMode}, 0\ns_cbranch_scc1 K2_epi")
    e(f"s_add_u32 s{sLo}, s{sLo}, {CAP}\ns_cmp_ge_u32 s{sLo}, s{sTot}\ns_cbranch_scc1 K2_epi")
    e("s_waitcnt vmcnt(0)\ns_branch K2_round")
    e("K2_epi:")
    e(f"s_cmp_ge_u32 s{sWave}, 8\ns_cbranch_scc1 K2_fin")
    e(f"v_mbcnt_lo_u32_b32 v2, -1, 0\nv_mbcnt_hi_u32_b32 v2, -1, v2")
    e(f"v_and_b32 v3, 15, v2\nv_lshrrev_b32 v1, 4, v2\nv_lshlrev_b32 v1, 3, v1\nv_lshl_add_u32 v1, v3, 10, v1")
    e(f"v_mov_b32 v0, {OOB}\nv_cmp_gt_u32 vcc, 8, v3\ns_mul_i32 s{sT0}, s{sB}, {NPB*1024}\ns_lshl_b32 s{sT1}, s{sWave}, 5\ns_add_u32 s40, s{sT0}, s{sT1}")
    e(f"v_cndmask_b32 v0, v0, v1, vcc")
    e("s_add_u32 s41, s40, 16384\ns_add_u32 s42, s41, 16384")
    e("s_mov_b32 s43, 0xbfb8aa3b")
    for mt in range(3):
        a0=vA2+mt*4
        g=vXA
        for r in range(4): e(f"v_mul_f32 v{g+r}, s43, v{a0+r}")
        for r in range(4): e(f"v_exp_f32 v{g+r}, v{g+r}")
        e("s_nop 0")
        for r in range(4): e(f"v_add_f32 v{g+r}, 1.0, v{g+r}")
        for r in range(4): e(f"v_rcp_f32 v{g+r}, v{g+r}")
        pk=vA1+mt*8 if mt<2 else vCF
        e(f"v_cvt_pk_bf16_f32 v{pk}, v{a0}, v{a0+1}\nv_cvt_pk_bf16_f32 v{pk+1}, v{a0+2}, v{a0+3}")
        for o in range(1,4):
            a=vA2+(o*3+mt)*4
            for r in range(4): e(f"v_mul_f32 v{a+r}, v{a+r}, v{g+r}")
            e(f"v_cvt_pk_bf16_f32 v{pk+2*o}, v{a}, v{a+1}\nv_cvt_pk_bf16_f32 v{pk+2*o+1}, v{a+2}, v{a+3}")
        for o in range(4):
            e(f"buffer_store_dwordx2 {vr(pk+2*o,2)}, v{0 if mt==2 else 1}, s[{sOUT}:{sOUT+3}], s{40+mt} offen offset:{o*256}")
    e("K2_fin:")
    e("s_waitcnt vmcnt(0) lgkmcnt(0)\ns_endpgm")
    e("K2_overflow:")
    e(f"s_cmp_lg_u32 s{sMode}, 0\ns_cbranch_scc1 K2_nover")
    e(f"s_mov_b32 s{sMode}, 1\ns_mov_b32 s{sLo}, 0")
    e(f"v_lshlrev_b32 v{t0}, 2, v{P}\nv_add_u32 v{t0}, {PREF_OFF}, v{t0}")
    e(f"ds_write_b32 v{t0}, v{CNT}")
    e("s_waitcnt lgkmcnt(0)\ns_barrier")
    e(f"v_mov_b32 v{RB}, 0\nv_mov_b32 v{HI}, 0\ns_mov_b32 s{sT0}, 0")
    e("K2_pl:")
    e(f"s_lshl_b32 s{sT1}, s{sT0}, 2\ns_add_u32 s{sT1}, s{sT1}, {PREF_OFF}\nv_mov_b32 v{t1}, s{sT1}\nds_read_b32 v{t1}, v{t1}")
    e(f"v_cmp_lt_u32 vcc, s{sT0}, v{P}")
    e("s_waitcnt lgkmcnt(0)")
    e(f"v_add_u32 v{HI}, v{HI}, v{t1}\nv_cndmask_b32 v{t1}, 0, v{t1}, vcc\nv_add_u32 v{RB}, v{RB}, v{t1}")
    e(f"s_add_u32 s{sT0}, s{sT0}, 1\ns_cmp_lt_u32 s{sT0}, 128\ns_cbranch_scc1 K2_pl")
    e("s_barrier")
    e(f"ds_write_b32 v{t0}, v{RB}")
    e(f"v_readfirstlane_b32 s{sTot}, v{HI}")
    e("s_waitcnt vmcnt(0) lgkmcnt(0)\ns_barrier\ns_branch K2_round")
    e("K2_done:\ns_endpgm")
    return e.text()

HEADER=open("standalone__tensor_product_equiv_equiformer__graph.s.ref").read().split("; Override launch geometry")[0]

def desc(name,nv,ns):
    return f""".p2align 6
.amdhsa_kernel {name}
  .amdhsa_next_free_vgpr {nv}
  .amdhsa_next_free_sgpr {ns}
  .amdhsa_accum_offset {(nv+3)//4*4}
  .amdhsa_group_segment_fixed_size 0
  .amdhsa_kernarg_size 96
  .amdhsa_user_sgpr_count 2
  .amdhsa_user_sgpr_kernarg_segment_ptr 1
  .amdhsa_system_sgpr_workgroup_id_x 1
.end_amdhsa_kernel"""

def build(opt={}):
    s=HEADER
    s+=f"; Two launches: (1) bin edges by destination + fold weights + prefetch, (2) gather/aggregate + GEMM + gate.\n"
    L1=f"; @launch kernel={K1} grid=(256,1,1) block=(640,1,1) lds={K1_LDS}\n"
    L2=f"; @launch kernel={K2} grid=({NB},1,1) block=(640,1,1) lds={K2_LDS}\n"
    L0=f"; @launch kernel=eqf_nop_kernel grid=(1,1,1) block=(64,1,1) lds=0\n"
    seq=opt.get('seq','12')
    for ch in str(seq): s+={'1':L1,'2':L2,'0':L0}[ch]
    s+='.amdgcn_target "amdgcn-amd-amdhsa--gfx950"\n.text\n'
    s+=gen_k1(opt)+"\n"+gen_k2(opt)+"\n"
    if '0' in str(seq): s+=".globl eqf_nop_kernel\n.p2align 8\n.type eqf_nop_kernel,@function\neqf_nop_kernel:\n    s_endpgm\n"
    s+='.section .rodata,"a"\n'+desc(K1,72,64)+"\n"+desc(K2,NV,64)+"\n"
    if '0' in str(seq): s+=desc("eqf_nop_kernel",8,16)+"\n"
    for m in re.finditer(r"buffer_\w+ .*offset:(\d+)", s):
        assert int(m.group(1))<4096, m.group(0)
    for m in re.finditer(r"ds_\w+ .*offset:(\d+)", s):
        assert int(m.group(1))<65536, m.group(0)
    return s

if __name__=="__main__":
    out=sys.argv[1] if len(sys.argv)>1 else "standalone__tensor_product_equiv_equiformer__graph.s"
    opt={}
    for a in sys.argv[2:]:
        k,v=a.split("="); opt[k]=eval(v)
    open(out,"w").write(build(opt))
    print("wrote",out)
```

```python
import re, sys

N=10000; E=320000
NPROD=128; EPW=2500
NB=250; NPB=40
TAB_OFF=0; WF_OFF=131072; REC_OFF=294912
WS_USED=REC_OFF+NPROD*EPW*12
XBYTES=N*1024
OOB=0x40000000
CAP=192
RING=12288
S_OFF=10*RING
S_T=5136; S_KS=2560
IDX_OFF=S_OFF+4*S_T
GC_OFF=IDX_OFF+10*768
PREF_OFF=GC_OFF+64
K2_LDS=PREF_OFF+512
K1_CNT=30016; K1_START=31040; K1_LDS=32064

K1="eqf_bin_kernel"
K2="standalone__tensor_product_equiv_equiformer__graph_kernel"

class A:
    def __init__(s): s.L=[]; s.n=0
    def __call__(s, txt):
        for ln in txt.split("\n"):
            ln=ln.strip()
            if ln: s.L.append(ln)
    def lab(s, base):
        s.n+=1; return f"{base}_{s.n}"
    def text(s):
        out=[]
        for l in s.L:
            out.append(l if l.endswith(":") or l.startswith(".") else "    "+l)
        return "\n".join(out)

def vr(a,n): return f"v[{a}:{a+n-1}]"
def sr(a,n): return f"s[{a}:{a+n-1}]"

def srd(e, d, plo, nbytes):
    e(f"s_mov_b32 s{d}, s{plo}\ns_mov_b32 s{d+1}, s{plo+1}\ns_mov_b32 s{d+2}, {nbytes}\ns_mov_b32 s{d+3}, 0x20000")

def gen_k1(opt):
    e=A()
    ts=opt.get('ts')
    TV=72
    def stamp(k):
        if not ts: return
        e(f"s_memrealtime s[60:61]\ns_waitcnt lgkmcnt(0)\nv_writelane_b32 v{TV}, s60, {k}")
    def dump():
        if not ts: return
        e("s_waitcnt vmcnt(0)")
        stamp(7)
        e(f"v_mbcnt_lo_u32_b32 v2, -1, 0\nv_mbcnt_hi_u32_b32 v2, -1, v2\nv_lshlrev_b32 v2, 2, v2")
        e(f"v_lshrrev_b32 v1, 6, v0\ns_nop 1\nv_readfirstlane_b32 s58, v1")
        e(f"s_mul_i32 s59, s2, 10\ns_add_u32 s59, s59, s58\ns_lshl_b32 s59, s59, 8\ns_add_u32 s59, s59, {6<<20}")
        e(f"s_mov_b32 s40, s20\ns_mov_b32 s41, s21\ns_mov_b32 s42, {8<<20}\ns_mov_b32 s43, 0x20000")
        e(f"buffer_store_dword v{TV}, v2, s[40:43], s59 offen")
    e(f".globl {K1}\n.p2align 8\n.type {K1},@function\n{K1}:")
    e(f"s_cmp_ge_u32 s2, 256\ns_cbranch_scc1 K1_done")
    if ts: e(f"v_mov_b32 v{TV}, 0")
    stamp(0)
    e("s_load_dwordx4 s[4:7], s[0:1], 0")
    e("s_load_dwordx4 s[8:11], s[0:1], 16")
    e("s_load_dwordx4 s[12:15], s[0:1], 32")
    e("s_load_dwordx4 s[16:19], s[0:1], 48")
    e("s_load_dwordx2 s[20:21], s[0:1], 88")
    e("s_cmp_ge_u32 s2, 128\ns_cbranch_scc1 K1_helper")
    e("v_lshlrev_b32 v1, 2, v0\nv_mov_b32 v2, 0")
    e("v_cmp_gt_u32 vcc, 0x100, v0\ns_and_saveexec_b64 s[22:23], vcc")
    e(f"ds_write_b32 v1, v2 offset:{K1_CNT}")
    e("s_mov_b64 exec, s[22:23]")
    e("v_lshlrev_b32 v1, 4, v0")
    e("v_mul_u32_u24 v2, 24, v0")
    e("v_lshlrev_b32 v3, 3, v0")
    e("s_mul_i32 s44, s2, 10000\ns_mul_i32 s45, s2, 15000\ns_mul_i32 s46, s2, 5000")
    e("v_cmp_gt_u32 vcc, 0x271, v0")
    e("s_waitcnt lgkmcnt(0)")
    stamp(1)
    srd(e,24,10,E*4)
    srd(e,28,12,E*4)
    srd(e,32,6,E*6)
    srd(e,36,8,E*2)
    srd(e,40,20,WS_USED)
    e("s_and_saveexec_b64 s[48:49], vcc")
    e("s_mov_b64 s[50:51], exec")
    e("buffer_load_dwordx4 v[8:11], v1, s[28:31], s44 offen")
    e("buffer_load_dwordx4 v[4:7], v1, s[24:27], s44 offen")
    e("buffer_load_dwordx2 v[18:19], v3, s[36:39], s46 offen")
    e("buffer_load_dwordx4 v[12:15], v2, s[32:35], s45 offen")
    e("buffer_load_dwordx2 v[16:17], v2, s[32:35], s45 offen offset:16")
    e("s_barrier")
    e("v_mov_b32 v3, 1")
    e("s_mov_b32 s47, 52429")
    e("s_waitcnt vmcnt(4)")
    stamp(2)
    for r in range(4):
        e(f"v_mul_u32_u24 v{20+r}, s47, v{8+r}")
        e(f"v_lshrrev_b32 v{20+r}, 21, v{20+r}")
        e(f"v_mul_u32_u24 v{24+r}, 40, v{20+r}")
        e(f"v_sub_u32 v{24+r}, v{8+r}, v{24+r}")
        e(f"v_lshlrev_b32 v{20+r}, 2, v{20+r}")
        e(f"ds_add_rtn_u32 v{28+r}, v{20+r}, v3 offset:{K1_CNT}")
    e("s_waitcnt vmcnt(0)")
    stamp(3)
    ylo=lambda d,s: e(f"v_lshlrev_b32 v{d}, 16, v{s}")
    yhi=lambda d,s: e(f"v_and_b32 v{d}, 0xffff0000, v{s}")
    ys=[]
    for k in range(12): ys.append((12+k//2, k&1))
    for r in range(4):
        e(f"v_lshl_or_b32 v{32+4*r}, v{4+r}, 10, v{24+r}")
        (yhi if r&1 else ylo)(48, 18+r//2)
        for j in range(3):
            reg,hi=ys[3*r+j]
            (yhi if hi else ylo)(49+j, reg)
        for j in range(3):
            e(f"v_mul_f32 v{49+j}, v48, v{49+j}")
        e(f"v_cvt_pk_bf16_f32 v{33+4*r}, v48, v49")
        e(f"v_cvt_pk_bf16_f32 v{34+4*r}, v50, v51")
    e("s_mov_b64 exec, s[48:49]")
    e("s_waitcnt lgkmcnt(0)\ns_barrier")
    stamp(4)
    e("v_mbcnt_lo_u32_b32 v52, -1, 0\nv_mbcnt_hi_u32_b32 v52, -1, v52")
    e("v_lshlrev_b32 v53, 4, v52")
    e(f"ds_read_b128 v[56:59], v53 offset:{K1_CNT}")
    e("s_waitcnt lgkmcnt(0)")
    e("v_add_u32 v61, v56, v57\nv_add_u32 v62, v61, v58\nv_add_u32 v63, v62, v59")
    e("v_mov_b32 v54, v63")
    for sh in (1,2,4,8):
        e("s_nop 1")
        e(f"v_add_u32_dpp v54, v54, v54 row_shr:{sh} row_mask:0xf bank_mask:0xf bound_ctrl:0")
    e("s_nop 1\nv_add_u32_dpp v54, v54, v54 row_bcast:15 row_mask:0xa bank_mask:0xf")
    e("s_nop 1\nv_add_u32_dpp v54, v54, v54 row_bcast:31 row_mask:0xc bank_mask:0xf")
    e("v_sub_u32 v64, v54, v63")
    e("v_add_u32 v65, v64, v56\nv_add_u32 v66, v64, v61\nv_add_u32 v67, v64, v62")
    e(f"ds_write_b128 v53, v[64:67] offset:{K1_START}")
    e("v_readfirstlane_b32 s52, v0")
    for r in range(4):
        e(f"v_lshl_or_b32 v{68+r}, v{56+r}, 16, v{64+r}")
    e("s_cmp_lg_u32 s52, 0\ns_cbranch_scc1 K1_notab")
    e(f"s_lshl_b32 s53, s2, 10")
    e(f"buffer_store_dwordx4 v[68:71], v53, s[40:43], s53 offen")
    e("K1_notab:")
    e("s_mov_b64 exec, s[50:51]")
    e("s_waitcnt lgkmcnt(0)")
    for r in range(4):
        e(f"ds_read_b32 v{56+r}, v{20+r} offset:{K1_START}")
    e("s_waitcnt lgkmcnt(0)")
    for r in range(4):
        e(f"v_add_u32 v{56+r}, v{56+r}, v{28+r}")
        e(f"v_mul_u32_u24 v{56+r}, 12, v{56+r}")
        e(f"ds_write2_b32 v{56+r}, v{32+4*r}, v{33+4*r} offset0:0 offset1:1")
        e(f"ds_write_b32 v{56+r}, v{34+4*r} offset:8")
    e("s_mov_b64 exec, s[48:49]")
    e("s_waitcnt lgkmcnt(0)\ns_barrier")
    stamp(5)
    e("v_lshlrev_b32 v1, 4, v0")
    e(f"s_mul_i32 s53, s2, {EPW*12}\ns_add_u32 s53, s53, {REC_OFF}")
    e("ds_read_b128 v[4:7], v1\nds_read_b128 v[8:11], v1 offset:10240\nds_read_b128 v[12:15], v1 offset:20480")
    e("v_add_u32 v2, 10240, v1\nv_add_u32 v3, 20480, v1")
    e(f"v_cmp_gt_u32 vcc, {1875-1280}, v0")
    e("s_waitcnt lgkmcnt(2)\nbuffer_store_dwordx4 v[4:7], v1, s[40:43], s53 offen")
    e("s_waitcnt lgkmcnt(1)\nbuffer_store_dwordx4 v[8:11], v2, s[40:43], s53 offen")
    e("s_and_saveexec_b64 s[22:23], vcc")
    e("s_cbranch_execz K1_pend")
    e("s_waitcnt lgkmcnt(0)\nbuffer_store_dwordx4 v[12:15], v3, s[40:43], s53 offen")
    e("K1_pend:")
    if ts:
        e("s_mov_b64 exec, -1")
        stamp(6)
        dump()
    e("s_waitcnt vmcnt(0) lgkmcnt(0)\ns_endpgm")
    e("K1_helper:")
    e("s_sub_u32 s22, s2, 128")
    e("v_lshrrev_b32 v1, 6, v0\nv_and_b32 v2, 63, v0")
    e("s_mul_i32 s23, s22, 640\nv_add_u32 v3, s23, v0\nv_lshlrev_b32 v3, 7, v3")
    e("v_readfirstlane_b32 s44, v1")
    e("s_lshr_b32 s23, s22, 3\ns_mul_i32 s23, s23, 625\nv_add_u32 v4, s23, v0\nv_lshlrev_b32 v4, 10, v4")
    e("s_waitcnt lgkmcnt(0)")
    stamp(1)
    srd(e,24,4,XBYTES)
    e("s_cmp_ge_u32 s22, 16\ns_cbranch_scc1 K1_pf")
    srd(e,28,14,1280)
    srd(e,32,16,256*256)
    srd(e,36,18,384*256)
    srd(e,40,20,WS_USED)
    e("s_mul_i32 s45, s22, 10\ns_add_u32 s45, s45, s44")
    e("s_and_b32 s46, s45, 1")
    e("s_lshr_b32 s47, s45, 1")
    e("s_mul_i32 s48, s47, 52429\ns_lshr_b32 s48, s48, 18")
    e("s_mul_i32 s49, s48, 5\ns_sub_u32 s49, s47, s49")
    e("s_and_b32 s50, s48, 7\ns_lshr_b32 s51, s48, 3")
    e("s_lshl_b32 s52, s51, 6\ns_lshl_b32 s53, s46, 5\ns_add_u32 s52, s52, s53")
    e("v_lshrrev_b32 v5, 4, v2\nv_and_b32 v6, 15, v2")
    e("v_lshlrev_b32 v7, 10, v5\nv_lshl_add_u32 v7, v6, 1, v7")
    e("v_lshlrev_b32 v8, 3, v5")
    e("s_lshl_b32 s53, s49, 7\ns_add_u32 s53, s53, s52\ns_lshl_b32 s53, s53, 1")
    e("buffer_load_dwordx2 v[10:11], v8, s[28:31], s53 offen")
    e("buffer_load_dwordx2 v[12:13], v8, s[28:31], s53 offen offset:32")
    e("s_cmp_ge_u32 s49, 2\ns_cbranch_scc1 K1_w1")
    for (lab,sub,R) in (("",0,32),("K1_w1:",2,36)):
        if lab: e(lab)
        e(f"s_sub_u32 s54, s49, {sub}\ns_lshl_b32 s54, s54, 7\ns_add_u32 s54, s54, s52\ns_lshl_b32 s54, s54, 8")
        e("s_lshl_b32 s55, s50, 5\ns_add_u32 s54, s54, s55\ns_add_u32 s55, s54, 4096")
        for j in range(4): e(f"buffer_load_ushort v{16+j}, v7, s[{R}:{R+3}], s54 offen offset:{j*256}")
        for j in range(4): e(f"buffer_load_ushort v{20+j}, v7, s[{R}:{R+3}], s55 offen offset:{j*256}")
        if not lab: e("s_branch K1_wj")
    e("K1_wj:")
    e("buffer_load_dword v30, v3, s[24:27], 0 offen")
    if opt.get('pf2',True): e("buffer_load_dword v31, v3, s[24:27], 0 offen offset:64")
    e("buffer_load_dword v32, v4, s[24:27], 0 offen")
    if opt.get('pf2',True): e("buffer_load_dword v33, v4, s[24:27], 0 offen offset:64")
    npf=4 if opt.get('pf2',True) else 2
    e(f"s_waitcnt vmcnt({npf})")
    for j in range(8):
        src=10+j//2
        if j&1: e(f"v_and_b32 v24, 0xffff0000, v{src}")
        else:   e(f"v_lshlrev_b32 v24, 16, v{src}")
        e(f"v_lshlrev_b32 v{16+j}, 16, v{16+j}")
        e(f"v_mul_f32 v{16+j}, v24, v{16+j}")
    for k in range(4): e(f"v_cvt_pk_bf16_f32 v{40+k}, v{16+2*k}, v{17+2*k}")
    e(f"s_lshl_b32 s54, s45, 10\ns_add_u32 s54, s54, {WF_OFF}")
    e("v_lshlrev_b32 v9, 4, v2")
    e("buffer_store_dwordx4 v[40:43], v9, s[40:43], s54 offen")
    dump()
    e("s_waitcnt vmcnt(0)\ns_endpgm")
    e("K1_pf:")
    e("buffer_load_dword v30, v3, s[24:27], 0 offen")
    if opt.get('pf2',True): e("buffer_load_dword v31, v3, s[24:27], 0 offen offset:64")
    e("buffer_load_dword v32, v4, s[24:27], 0 offen")
    if opt.get('pf2',True): e("buffer_load_dword v33, v4, s[24:27], 0 offen offset:64")
    e("s_waitcnt vmcnt(0)")
    dump()
    e("K1_done:\ns_endpgm")
    return e.text()

vAd=0; vP=2; vT=4; vID=8
vXA=20; vA1=36; vCF=52; vW=76; vA2=116; vSW=164; vSR=165; NV=166
sXR=8; sWS=12; sOUT=16
sWave=20; sNch=21; sRing=22; sOffC=24; sOffN=25; sS=28; sWb=29
sLo=34; sMode=35; sTot=36; sT0=37; sT1=38; sFirst=39
sK1024=50; sB=52; sWo=53
IDS=512
STG=6144

def gen_k2(opt):
    e=A()
    ts=opt.get('ts')
    DPOS=opt.get('dpos',[1,4,7,10,13,16,19,22])
    PRE=opt.get('pre',1)
    def stamp(k):
        if not ts: return
        e(f"s_memrealtime s[56:57]\ns_waitcnt lgkmcnt(0)")
        if isinstance(k,int): e(f"v_writelane_b32 v{NV}, s56, {k}")
        else:
            e(f"s_add_u32 m0, {k[0]}, {k[1]}\nv_writelane_b32 v{NV}, s56, m0")
    adn=[0]
    def dma(c,i,soff):
        ad=vAd+(adn[0]&1); adn[0]+=1
        e(f"s_add_u32 m0, s{sRing}, {(c%3)*4096+i*1024}")
        e(f"v_mad_u32_u16 v{ad}, v{vID+2*c+(i>>1)}, s{sK1024}, v{vP+(i&1)} op_sel:[{i&1},0,0,0]")
        e(f"buffer_load_dwordx4 v{ad}, s[{sXR}:{sXR+3}], s{soff} offen lds")
    def wload(ks_, hexpr):
        e(f"v_mbcnt_lo_u32_b32 v{vAd+1}, -1, 0\nv_mbcnt_hi_u32_b32 v{vAd+1}, -1, v{vAd+1}\nv_lshlrev_b32 v{vAd+1}, 4, v{vAd+1}")
        cur=0
        for k in ks_:
            while cur<k//4:
                e(f"s_add_u32 s{hexpr}, s{hexpr}, 4096"); cur+=1
            e(f"buffer_load_dwordx4 {vr(vW+4*k,4)}, v{vAd+1}, s[{sWS}:{sWS+3}], s{hexpr} offen offset:{(k%4)*1024}")
    AC=[0,1,4,5]; BDE=[2,3,6,7,8,9]
    e(f".globl {K2}\n.p2align 8\n.type {K2},@function\n{K2}:")
    e(f"s_cmp_ge_u32 s2, {NB}\ns_cbranch_scc1 K2_done")
    if ts: e(f"v_mov_b32 v{NV}, 0")
    stamp(0)
    e(f"s_load_dwordx2 s[{sXR}:{sXR+1}], s[0:1], 0")
    e(f"s_load_dwordx2 s[{sWS}:{sWS+1}], s[0:1], 88")
    e(f"s_load_dwordx2 s[{sOUT}:{sOUT+1}], s[0:1], 72")
    e("v_lshrrev_b32 v1, 6, v0")
    e(f"s_mov_b32 s{sB}, s2")
    e(f"v_readfirstlane_b32 s{sWave}, v1")
    e(f"s_mov_b32 s{sK1024}, 1024")
    e(f"s_mov_b32 s{sMode}, 0\ns_mov_b32 s{sLo}, 0\ns_mov_b32 s{sTot}, 0")
    e(f"s_mov_b32 s{sXR+2}, {XBYTES}\ns_mov_b32 s{sXR+3}, 0x20000\ns_mov_b32 s{sWS+2}, {WS_USED}\ns_mov_b32 s{sWS+3}, 0x20000")
    e(f"s_mov_b32 s{sOUT+2}, {XBYTES}\ns_mov_b32 s{sOUT+3}, 0x20000")
    for r in range(48): e(f"v_mov_b32 v{vA2+r}, 0")
    e(f"s_mul_i32 s{sRing}, s{sWave}, {RING}")
    e(f"s_mul_i32 s{sWb}, s{sWave}, 10240\ns_add_u32 s{sWb}, s{sWb}, {WF_OFF}")
    e("s_waitcnt lgkmcnt(0)")
    stamp(1)
    e("K2_round:")
    L,TID,P,SUB,TABV,RB,II,HI,CNT,t0,t1,CA,i16,G,r_,cc=range(100,116)
    e(f"v_mbcnt_lo_u32_b32 v{L}, -1, 0\nv_mbcnt_hi_u32_b32 v{L}, -1, v{L}")
    e(f"s_lshl_b32 s{sT0}, s{sWave}, 6\nv_add_u32 v{TID}, s{sT0}, v{L}")
    e(f"s_mov_b32 s{sT1}, 52429\nv_mul_u32_u24 v{P}, s{sT1}, v{TID}\nv_lshrrev_b32 v{P}, 18, v{P}")
    e(f"v_lshlrev_b32 v{t0}, 10, v{P}\ns_lshl_b32 s{sT0}, s{sB}, 2")
    e(f"buffer_load_dword v{TABV}, v{t0}, s[{sWS}:{sWS+3}], s{sT0} offen")
    e(f"v_mul_u32_u24 v{SUB}, 5, v{P}\nv_sub_u32 v{SUB}, v{TID}, v{SUB}")
    Z=vXA
    for r in range(4): e(f"v_mov_b32 v{Z+r}, 0")
    e(f"v_lshlrev_b32 v{t1}, 4, v{L}\nv_add_u32 v{t1}, s{sRing}, v{t1}")
    for k in range(6): e(f"ds_write_b128 v{t1}, {vr(Z,4)} offset:{STG+k*1024}")
    e(f"s_mul_i32 s{sT0}, s{sWave}, {IDS}\ns_add_u32 s{sT0}, s{sT0}, {IDX_OFF}")
    e(f"v_lshlrev_b32 v{Z+4}, 2, v{L}\nv_add_u32 v{Z+4}, s{sT0}, v{Z+4}\nv_mov_b32 v{Z+5}, -1")
    for k in range(2): e(f"ds_write_b32 v{Z+4}, v{Z+5} offset:{k*256}")
    e(f"v_and_b32 v{Z+6}, 15, v{L}\nv_lshlrev_b32 v{Z+6}, 2, v{Z+6}\nv_add_u32 v{Z+6}, {GC_OFF}, v{Z+6}")
    e(f"ds_write_b32 v{Z+6}, v{Z}")
    e(f"v_and_b32 v{i16}, 15, v{L}\nv_lshrrev_b32 v{G}, 4, v{L}\nv_lshrrev_b32 v{r_}, 2, v{i16}\nv_and_b32 v{cc}, 3, v{L}")
    e(f"v_lshl_add_u32 v{t0}, v{G}, 3, v{r_}")
    e(f"v_lshlrev_b32 v{t0}, 7, v{t0}\nv_lshl_add_u32 v{t0}, v{cc}, 3, v{t0}\nv_add_u32 v{t0}, s{sRing}, v{t0}")
    e(f"v_lshrrev_b32 v{t1}, 1, v{r_}\nv_and_b32 v{Z+7}, 1, v{G}\nv_lshl_add_u32 v{t1}, v{Z+7}, 1, v{t1}")
    e(f"v_lshl_add_u32 v{vT}, v{t1}, 5, v{t0}")
    for ct in range(1,4): e(f"v_xor_b32 v{vT+ct}, {ct*32}, v{vT}")
    IB=Z+8
    e(f"v_lshrrev_b32 v{t0}, 3, v{L}\nv_lshlrev_b32 v{t0}, 2, v{t0}\nv_add_u32 v{IB}, s{sT0}, v{t0}")
    e(f"v_and_b32 v{t0}, 7, v{L}\nv_and_b32 v{t1}, 1, v{G}\nv_lshlrev_b32 v{t1}, 1, v{t1}\nv_xor_b32 v{t0}, v{t0}, v{t1}")
    e(f"v_lshlrev_b32 v{vP}, 4, v{t0}\nv_xor_b32 v{vP+1}, 64, v{vP}")
    e(f"s_lshl_b32 s{sT1}, s{sWave}, 2\nv_add_u32 v{t0}, s{sT1}, v{r_}")
    e(f"v_and_b32 v{t1}, 8, v{t0}\nv_lshrrev_b32 v{t1}, 2, v{t1}\nv_xor_b32 v{t1}, v{t1}, v{G}")
    e(f"v_lshlrev_b32 v{t0}, 6, v{t0}\nv_lshl_add_u32 v{t0}, v{t1}, 4, v{t0}")
    e(f"v_mul_u32_u24 v{t1}, {S_T}, v{cc}\nv_add_u32 v{t0}, v{t0}, v{t1}\nv_add_u32 v{vSW}, {S_OFF}, v{t0}")
    e(f"v_and_b32 v{t1}, 8, v{i16}\nv_lshrrev_b32 v{t1}, 2, v{t1}\nv_xor_b32 v{t1}, v{t1}, v{G}")
    e(f"v_lshlrev_b32 v{t0}, 6, v{i16}\nv_lshl_add_u32 v{t0}, v{t1}, 4, v{t0}\nv_add_u32 v{vSR}, {S_OFF}, v{t0}")
    e(f"v_lshlrev_b32 v{CA}, 8, v{G}\nv_lshl_add_u32 v{CA}, v{i16}, 3, v{CA}\nv_add_u32 v{CA}, s{sRing}, v{CA}")
    e("s_waitcnt lgkmcnt(0)\ns_barrier")
    e("s_waitcnt vmcnt(0)")
    stamp(2)
    e(f"v_lshrrev_b32 v{CNT}, 16, v{TABV}\nv_and_b32 v{RB}, 0xffff, v{TABV}")
    e(f"v_mul_u32_u24 v{t0}, {EPW}, v{P}\nv_add_u32 v{RB}, v{RB}, v{t0}\nv_mul_u32_u24 v{RB}, 12, v{RB}")
    e(f"s_cmp_eq_u32 s{sMode}, 0\ns_cbranch_scc0 K2_slowwin")
    e(f"v_mov_b32 v{II}, v{SUB}\nv_mov_b32 v{HI}, v{CNT}")
    e("s_branch K2_winok")
    e("K2_slowwin:")
    e(f"v_lshlrev_b32 v{t0}, 2, v{P}\nv_add_u32 v{t0}, {PREF_OFF}, v{t0}\nds_read_b32 v{t0}, v{t0}")
    e("s_waitcnt lgkmcnt(0)")
    e(f"v_sub_u32 v{t0}, s{sLo}, v{t0}")
    e(f"v_add_u32 v{t1}, {CAP}, v{t0}")
    e(f"v_med3_i32 v{t0}, v{t0}, 0, v{CNT}\nv_med3_i32 v{HI}, v{t1}, 0, v{CNT}")
    e(f"v_add_u32 v{II}, v{t0}, v{SUB}")
    e("K2_winok:")
    e(f"s_mov_b32 s{sFirst}, 1")
    R=36
    e("K2_bin:")
    for r in range(5):
        e(f"v_add_u32 v{t0}, {5*r}, v{II}")
        e(f"v_cmp_lt_u32 vcc, v{t0}, v{HI}")
        e(f"v_mul_u32_u24 v{t0}, 12, v{t0}\nv_add_u32 v{t0}, v{t0}, v{RB}")
        e(f"s_mov_b64 s[{40+2*r}:{41+2*r}], vcc")
        e(f"v_mov_b32 v{t1}, {OOB}\nv_cndmask_b32 v{R+4*r+3}, v{t1}, v{t0}, vcc")
    e(f"s_mov_b32 s{sT0}, {REC_OFF}")
    for r in range(5):
        e(f"buffer_load_dwordx3 v[{R+4*r}:{R+4*r+2}], v{R+4*r+3}, s[{sWS}:{sWS+3}], s{sT0} offen")
    e(f"s_cmp_eq_u32 s{sFirst}, 0\ns_cbranch_scc1 K2_bin_w0")
    e(f"s_mov_b32 s{sFirst}, 0")
    e(f"s_cmp_ge_u32 s{sWave}, 8\ns_cbranch_scc1 K2_bin_w0")
    e(f"s_mov_b32 s{sWo}, s{sWb}")
    wload(AC,sWo)
    e("s_waitcnt vmcnt(4)\ns_branch K2_bin_go")
    e("K2_bin_w0:")
    e("s_waitcnt vmcnt(0)")
    e("K2_bin_go:")
    stamp(3)
    e(f"v_mov_b32 v{t1}, 1\ns_mov_b32 s{sT1}, {GC_OFF}")
    assert GC_OFF%64==0
    for r in range(5):
        lab=e.lab("K2_ba")
        e(f"s_mov_b64 exec, s[{40+2*r}:{41+2*r}]\ns_cbranch_execz {lab}")
        e(f"v_and_or_b32 v{t0}, v{R+4*r}, 60, s{sT1}")
        e(f"ds_add_rtn_u32 v{R+4*r+3}, v{t0}, v{t1}")
        e(f"{lab}:")
    e("s_mov_b64 exec, -1\ns_waitcnt lgkmcnt(0)")
    e(f"s_movk_i32 s{sT1}, {CAP}")
    for r in range(5):
        lab=e.lab("K2_bw")
        w0=R+4*r; rk=w0+3
        u=Z+10
        e(f"s_mov_b64 exec, s[{40+2*r}:{41+2*r}]\ns_cbranch_execz {lab}")
        e(f"v_cmp_gt_u32 vcc, s{sT1}, v{rk}\ns_and_b64 exec, exec, vcc")
        e(f"v_bfe_u32 v{t0}, v{w0}, 2, 4")
        e(f"v_and_b32 v{u}, 0xf0, v{rk}\nv_lshlrev_b32 v{t1}, 9, v{t0}\nv_lshl_add_u32 v{t1}, v{u}, 1, v{t1}")
        e(f"v_and_b32 v{u}, 7, v{rk}\nv_lshl_add_u32 v{t1}, v{u}, 2, v{t1}")
        e(f"v_bfe_u32 v{u}, v{rk}, 3, 1\nv_lshl_add_u32 v{t1}, v{u}, 1, v{t1}")
        e(f"v_mul_u32_u24 v{t0}, {RING}, v{t0}\nv_lshl_add_u32 v{t0}, v{rk}, 5, v{t0}")
        e(f"v_and_b32 v{rk}, 3, v{w0}\nv_lshl_add_u32 v{t0}, v{rk}, 3, v{t0}")
        e(f"v_lshrrev_b32 v{w0}, 10, v{w0}")
        e(f"v_add_u32 v{t1}, {IDX_OFF}, v{t1}\nds_write_b16 v{t1}, v{w0}")
        e(f"v_add_u32 v{t0}, {STG}, v{t0}")
        e(f"ds_write2_b32 v{t0}, v{w0+1}, v{w0+2} offset0:0 offset1:1")
        e(f"{lab}:")
    e("s_mov_b64 exec, -1")
    e(f"v_add_u32 v{II}, 25, v{II}\nv_cmp_lt_u32 vcc, v{II}, v{HI}")
    e("s_cbranch_vccnz K2_bin")
    e("s_waitcnt lgkmcnt(0)\ns_barrier")
    stamp(4)
    e(f"v_and_b32 v{t0}, 15, v{L}\nv_lshlrev_b32 v{t0}, 2, v{t0}\nv_add_u32 v{t0}, {GC_OFF}, v{t0}\nds_read_b32 v{t0}, v{t0}")
    for c in range(6):
        for p in range(2): e(f"ds_read_b32 v{vID+2*c+p}, v{IB} offset:{64*c+32*p}")
    e("s_waitcnt lgkmcnt(12)")
    e(f"v_cmp_lt_u32 vcc, {CAP}, v{t0}")
    e(f"v_readlane_b32 s{sNch}, v{t0}, s{sWave}")
    e("s_cbranch_vccnz K2_overflow")
    e("K2_nover:")
    for c in range(6):
        e(f"ds_read_b64_tr_b16 {vr(vCF+4*c,2)}, v{CA} offset:{STG+c*1024}")
        e(f"ds_read_b64_tr_b16 {vr(vCF+4*c+2,2)}, v{CA} offset:{STG+c*1024+128}")
    e(f"s_add_u32 s{sNch}, s{sNch}, 31\ns_lshr_b32 s{sNch}, s{sNch}, 5\ns_max_u32 s{sNch}, s{sNch}, 1")
    e(f"s_mov_b32 s{sS}, 0\ns_mov_b32 s{sOffC}, 0")
    e("s_waitcnt lgkmcnt(12)")
    for i in range(4): dma(0,i,sOffC)
    e("s_waitcnt lgkmcnt(0)")
    for c in (1,2):
        for i in range(4): dma(c,i,sOffC)
    stamp(5)
    e("K2_slice:")
    for n in (4,5,3,6,2): e(f"s_cmp_eq_u32 s{sNch}, {n}\ns_cbranch_scc1 K2_n{n}")
    for n in (1,2,3,6,5,4):
        e(f"K2_n{n}:")
        for c in range(n):
            issued=max(n,3) if c==0 else None
            last=min(max(n,3)-1, c+2)
            e(f"s_waitcnt vmcnt({4*(last-c)})")
            for ct in range(4):
                e(f"ds_read_b64_tr_b16 {vr(vXA+4*ct,2)}, v{vT+ct} offset:{(c%3)*4096}")
                e(f"ds_read_b64_tr_b16 {vr(vXA+4*ct+2,2)}, v{vT+ct} offset:{(c%3)*4096+512}")
            for ct in range(4):
                e(f"s_waitcnt lgkmcnt({6-2*ct})")
                C = "0" if c==0 else vr(vA1+4*ct,4)
                e(f"v_mfma_f32_16x16x32_bf16 {vr(vA1+4*ct,4)}, {vr(vXA+4*ct,4)}, {vr(vCF+4*c,4)}, {C}")
            if c+3<n:
                for i in range(4): dma(c+3,i,sOffC)
            if c==0: e("s_barrier")
        if n!=4: e("s_branch K2_gap")
    e("K2_gap:")
    stamp((f"s{sS}",8))
    e(f"s_and_b32 s{sT0}, s{sS}, 3")
    e(f"s_cmp_eq_u32 s{sT0}, 1\ns_cbranch_scc1 K2_gap_1")
    e(f"s_cmp_eq_u32 s{sT0}, 2\ns_cbranch_scc1 K2_gap_2")
    e(f"s_cmp_eq_u32 s{sS}, 3\ns_cbranch_scc1 K2_gap_3")
    e(f"s_cmp_eq_u32 s{sS}, 7\ns_cbranch_scc1 K2_gap_F")
    bufs=[vXA+4*k for k in range(4)]+[vA1+4*k for k in range(4)]
    for var in ('0','1','2','3','F'):
        q=3 if var=='F' else int(var)
        fin = var=='F'
        e(f"K2_gap_{var}:")
        if not fin:
            if q<3: e(f"s_add_u32 s{sOffN}, s{sOffC}, 256")
            else: e(f"s_mov_b32 s{sOffN}, 128")
        if q==0:
            lab=e.lab("K2_nw")
            e(f"s_cmp_ge_u32 s{sWave}, 8\ns_cbranch_scc1 {lab}")
            e(f"s_lshr_b32 s{sWo}, s{sS}, 2\ns_mul_i32 s{sWo}, s{sWo}, 81920\ns_add_u32 s{sWo}, s{sWo}, s{sWb}")
            wload(BDE,sWo)
            e(f"{lab}:")
        if q==1:
            lab=e.lab("K2_nw")
            e(f"s_cmp_ge_u32 s{sWave}, 8\ns_cbranch_scc1 {lab}")
            e(f"s_cmp_lg_u32 s{sS}, 1\ns_cbranch_scc1 {lab}")
            e(f"s_add_u32 s{sWo}, s{sWb}, 81920")
            wload(AC,sWo)
            e(f"{lab}:")
        defer=[] if fin else [(c,i) for c in range(3) for i in range(4)]
        pre=defer[:4*PRE]; post=defer[4*PRE:]
        for (c,i) in pre: dma(c,i,sOffN)
        e("s_nop 7" if not pre else "s_nop 1")
        for ks in range(2):
            for hh in range(2):
                a=vA1+4*(2*ks+hh)
                e(f"v_cvt_pk_bf16_f32 v{vXA+4*ks+2*hh}, v{a}, v{a+1}")
                e(f"v_cvt_pk_bf16_f32 v{vXA+4*ks+2*hh+1}, v{a+2}, v{a+3}")
        if q>0:
            tneg={3:1,1:2,2:3}[q]
            msk=(0x11111111<<tneg)&0xffffffff
            e(f"s_mov_b32 exec_lo, {hex(msk)}\ns_mov_b32 exec_hi, {hex(msk)}")
            for k in range(8): e(f"v_xor_b32 v{vXA+k}, 0x80008000, v{vXA+k}")
            e("s_mov_b64 exec, -1")
        e(f"ds_write_b128 v{vSW}, {vr(vXA,4)}")
        e(f"ds_write_b128 v{vSW}, {vr(vXA+4,4)} offset:{S_KS}")
        e("s_waitcnt lgkmcnt(0)\ns_barrier")
        stamp((f"s{sS}",16))
        e(f"s_cmp_ge_u32 s{sWave}, 8\ns_cbranch_scc1 K2_gw_{var}")
        if q==0: plan=[(0,0,0),(1,2,1),(2,2,2),(3,2,3)]
        else:
            k=q-1; plan=[(0,3,q),(q,1,0)]
            for j in range(3):
                if j!=k: plan.append((1+j,4,1+(3-j-k)))
        items=[(t,m,o,ks,mt) for (t,m,o) in plan for ks in range(2) for mt in range(3)]
        n=len(items); assert n==24
        def rd(i):
            t,m,o,ks,mt=items[i]
            e(f"ds_read_b128 {vr(bufs[i%8],4)}, v{vSR} offset:{t*S_T+ks*S_KS+mt*1024}")
        for i in range(7): rd(i)
        npost=len(post)
        pos=[int(round((j+0.5)*24/npost-1)) for j in range(npost)] if (npost and npost!=8) else (DPOS if npost else [])
        pj=0
        for i in range(n):
            t,m,o,ks,mt=items[i]
            e(f"s_waitcnt lgkmcnt({min(6,n-1-i)})")
            acc=vA2+(o*3+mt)*4
            e(f"v_mfma_f32_16x16x32_bf16 {vr(acc,4)}, {vr(vW+(m*2+ks)*4,4)}, {vr(bufs[i%8],4)}, {vr(acc,4)}")
            if i+7<n: rd(i+7)
            while pj<npost and pos[pj]<=i:
                dma(post[pj][0],post[pj][1],sOffN); pj+=1
        assert pj==npost
        e(f"s_branch K2_gn_{var}")
        e(f"K2_gw_{var}:")
        for (c,i) in post: dma(c,i,sOffN)
        e(f"K2_gn_{var}:")
        stamp((f"s{sS}",24))
        if not fin:
            e(f"s_mov_b32 s{sOffC}, s{sOffN}\ns_add_u32 s{sS}, s{sS}, 1\ns_branch K2_slice")
    e(f"s_cmp_eq_u32 s{sMode}, 0\ns_cbranch_scc1 K2_epi")
    e(f"s_add_u32 s{sLo}, s{sLo}, {CAP}\ns_cmp_ge_u32 s{sLo}, s{sTot}\ns_cbranch_scc1 K2_epi")
    e("s_waitcnt vmcnt(0)\ns_branch K2_round")
    e("K2_epi:")
    e(f"s_cmp_ge_u32 s{sWave}, 8\ns_cbranch_scc1 K2_fin")
    e(f"v_mbcnt_lo_u32_b32 v2, -1, 0\nv_mbcnt_hi_u32_b32 v2, -1, v2")
    e(f"v_and_b32 v3, 15, v2\nv_lshrrev_b32 v1, 4, v2\nv_lshlrev_b32 v1, 3, v1\nv_lshl_add_u32 v1, v3, 10, v1")
    e(f"v_mov_b32 v0, {OOB}\nv_cmp_gt_u32 vcc, 8, v3\ns_mul_i32 s{sT0}, s{sB}, {NPB*1024}\ns_lshl_b32 s{sT1}, s{sWave}, 5\ns_add_u32 s40, s{sT0}, s{sT1}")
    e(f"v_cndmask_b32 v0, v0, v1, vcc")
    e("s_add_u32 s41, s40, 16384\ns_add_u32 s42, s41, 16384")
    e("s_mov_b32 s43, 0xbfb8aa3b")
    for mt in range(3):
        a0=vA2+mt*4
        g=vXA
        for r in range(4): e(f"v_mul_f32 v{g+r}, s43, v{a0+r}")
        for r in range(4): e(f"v_exp_f32 v{g+r}, v{g+r}")
        e("s_nop 0")
        for r in range(4): e(f"v_add_f32 v{g+r}, 1.0, v{g+r}")
        for r in range(4): e(f"v_rcp_f32 v{g+r}, v{g+r}")
        pk=vA1+mt*8 if mt<2 else vCF
        e(f"v_cvt_pk_bf16_f32 v{pk}, v{a0}, v{a0+1}\nv_cvt_pk_bf16_f32 v{pk+1}, v{a0+2}, v{a0+3}")
        for o in range(1,4):
            a=vA2+(o*3+mt)*4
            for r in range(4): e(f"v_mul_f32 v{a+r}, v{a+r}, v{g+r}")
            e(f"v_cvt_pk_bf16_f32 v{pk+2*o}, v{a}, v{a+1}\nv_cvt_pk_bf16_f32 v{pk+2*o+1}, v{a+2}, v{a+3}")
        for o in range(4):
            e(f"buffer_store_dwordx2 {vr(pk+2*o,2)}, v{0 if mt==2 else 1}, s[{sOUT}:{sOUT+3}], s{40+mt} offen offset:{o*256}")
    e("K2_fin:")
    stamp(6)
    if ts:
        e("s_waitcnt vmcnt(0)")
        stamp(7)
        e(f"v_mbcnt_lo_u32_b32 v2, -1, 0\nv_mbcnt_hi_u32_b32 v2, -1, v2\nv_lshlrev_b32 v2, 2, v2")
        e(f"s_mul_i32 s40, s{sB}, 10\ns_add_u32 s40, s40, s{sWave}\ns_lshl_b32 s40, s40, 8\ns_add_u32 s40, s40, {5<<20}")
        e(f"s_mov_b32 s{sWS+2}, {8<<20}\nbuffer_store_dword v{NV}, v2, s[{sWS}:{sWS+3}], s40 offen")
    e("s_waitcnt vmcnt(0) lgkmcnt(0)\ns_endpgm")
    e("K2_overflow:")
    e(f"s_cmp_lg_u32 s{sMode}, 0\ns_cbranch_scc1 K2_nover")
    e(f"s_mov_b32 s{sMode}, 1\ns_mov_b32 s{sLo}, 0")
    e(f"v_lshlrev_b32 v{t0}, 2, v{P}\nv_add_u32 v{t0}, {PREF_OFF}, v{t0}")
    e(f"ds_write_b32 v{t0}, v{CNT}")
    e("s_waitcnt lgkmcnt(0)\ns_barrier")
    e(f"v_mov_b32 v{RB}, 0\nv_mov_b32 v{HI}, 0\ns_mov_b32 s{sT0}, 0")
    e("K2_pl:")
    e(f"s_lshl_b32 s{sT1}, s{sT0}, 2\ns_add_u32 s{sT1}, s{sT1}, {PREF_OFF}\nv_mov_b32 v{t1}, s{sT1}\nds_read_b32 v{t1}, v{t1}")
    e(f"v_cmp_lt_u32 vcc, s{sT0}, v{P}")
    e("s_waitcnt lgkmcnt(0)")
    e(f"v_add_u32 v{HI}, v{HI}, v{t1}\nv_cndmask_b32 v{t1}, 0, v{t1}, vcc\nv_add_u32 v{RB}, v{RB}, v{t1}")
    e(f"s_add_u32 s{sT0}, s{sT0}, 1\ns_cmp_lt_u32 s{sT0}, 128\ns_cbranch_scc1 K2_pl")
    e("s_barrier")
    e(f"ds_write_b32 v{t0}, v{RB}")
    e(f"v_readfirstlane_b32 s{sTot}, v{HI}")
    e("s_waitcnt vmcnt(0) lgkmcnt(0)\ns_barrier\ns_branch K2_round")
    e("K2_done:\ns_endpgm")
    return e.text()

HEADER=open("standalone__tensor_product_equiv_equiformer__graph.s.ref").read().split("; Override launch geometry")[0]

def desc(name,nv,ns):
    return f""".p2align 6
.amdhsa_kernel {name}
  .amdhsa_next_free_vgpr {nv}
  .amdhsa_next_free_sgpr {ns}
  .amdhsa_accum_offset {(nv+3)//4*4}
  .amdhsa_group_segment_fixed_size 0
  .amdhsa_kernarg_size 96
  .amdhsa_user_sgpr_count 2
  .amdhsa_user_sgpr_kernarg_segment_ptr 1
  .amdhsa_system_sgpr_workgroup_id_x 1
.end_amdhsa_kernel"""

def build(opt={}):
    s=HEADER
    s+=f"; Two launches: (1) bin edges by destination + fold weights + prefetch, (2) gather/aggregate + GEMM + gate.\n"
    L1=f"; @launch kernel={K1} grid=(256,1,1) block=(640,1,1) lds={K1_LDS}\n"
    L2=f"; @launch kernel={K2} grid=({NB},1,1) block=(640,1,1) lds={K2_LDS}\n"
    L0=f"; @launch kernel=eqf_nop_kernel grid=(1,1,1) block=(64,1,1) lds=0\n"
    seq=opt.get('seq','12')
    for ch in str(seq): s+={'1':L1,'2':L2,'0':L0}[ch]
    s+='.amdgcn_target "amdgcn-amd-amdhsa--gfx950"\n.text\n'
    s+=gen_k1(opt)+"\n"+gen_k2(opt)+"\n"
    if '0' in str(seq): s+=".globl eqf_nop_kernel\n.p2align 8\n.type eqf_nop_kernel,@function\neqf_nop_kernel:\n    s_endpgm\n"
    s+='.section .rodata,"a"\n'+desc(K1,76 if opt.get("ts") else 72,64)+"\n"+desc(K2,NV+(1 if opt.get("ts") else 0),64)+"\n"
    if '0' in str(seq): s+=desc("eqf_nop_kernel",8,16)+"\n"
    for m in re.finditer(r"buffer_\w+ .*offset:(\d+)", s):
        assert int(m.group(1))<4096, m.group(0)
    for m in re.finditer(r"ds_\w+ .*offset:(\d+)", s):
        assert int(m.group(1))<65536, m.group(0)
    return s

if __name__=="__main__":
    out=sys.argv[1] if len(sys.argv)>1 else "standalone__tensor_product_equiv_equiformer__graph.s"
    opt={}
    for a in sys.argv[2:]:
        k,v=a.split("="); opt[k]=eval(v)
    open(out,"w").write(build(opt))
    print("wrote",out)
```

```python
import re, sys

N=10000; E=320000
NPROD=128; EPW=2500
NB=250; NPB=40
TAB_OFF=0; WF_OFF=131072; REC_OFF=294912
WS_USED=REC_OFF+NPROD*EPW*12
XBYTES=N*1024
OOB=0x40000000
CAP=192
RING=12288
S_OFF=10*RING
S_T=5136; S_KS=2560
IDX_OFF=S_OFF+4*S_T
GC_OFF=IDX_OFF+10*768
PREF_OFF=GC_OFF+64
K2_LDS=PREF_OFF+512
K1_CNT=30016; K1_START=31040; K1_LDS=32064

K1="eqf_bin_kernel"
K2="standalone__tensor_product_equiv_equiformer__graph_kernel"

class A:
    def __init__(s): s.L=[]; s.n=0
    def __call__(s, txt):
        for ln in txt.split("\n"):
            ln=ln.strip()
            if ln: s.L.append(ln)
    def lab(s, base):
        s.n+=1; return f"{base}_{s.n}"
    def text(s):
        out=[]
        for l in s.L:
            out.append(l if l.endswith(":") or l.startswith(".") else "    "+l)
        return "\n".join(out)

def vr(a,n): return f"v[{a}:{a+n-1}]"
def sr(a,n): return f"s[{a}:{a+n-1}]"

def srd(e, d, plo, nbytes):
    e(f"s_mov_b32 s{d}, s{plo}\ns_mov_b32 s{d+1}, s{plo+1}\ns_mov_b32 s{d+2}, {nbytes}\ns_mov_b32 s{d+3}, 0x20000")

def gen_k1(opt):
    e=A()
    ts=opt.get('ts')
    TV=72
    def stamp(k):
        if not ts: return
        e(f"s_memrealtime s[60:61]\ns_waitcnt lgkmcnt(0)\nv_writelane_b32 v{TV}, s60, {k}")
    def dump():
        if not ts: return
        e("s_waitcnt vmcnt(0)")
        stamp(7)
        e(f"v_mbcnt_lo_u32_b32 v2, -1, 0\nv_mbcnt_hi_u32_b32 v2, -1, v2\nv_lshlrev_b32 v2, 2, v2")
        e(f"v_lshrrev_b32 v1, 6, v0\ns_nop 1\nv_readfirstlane_b32 s58, v1")
        e(f"s_mul_i32 s59, s2, 10\ns_add_u32 s59, s59, s58\ns_lshl_b32 s59, s59, 8\ns_add_u32 s59, s59, {6<<20}")
        e(f"s_mov_b32 s40, s20\ns_mov_b32 s41, s21\ns_mov_b32 s42, {8<<20}\ns_mov_b32 s43, 0x20000")
        e(f"buffer_store_dword v{TV}, v2, s[40:43], s59 offen")
    e(f".globl {K1}\n.p2align 8\n.type {K1},@function\n{K1}:")
    e(f"s_cmp_ge_u32 s2, 256\ns_cbranch_scc1 K1_done")
    if ts: e(f"v_mov_b32 v{TV}, 0")
    stamp(0)
    e("s_load_dwordx4 s[4:7], s[0:1], 0")
    e("s_load_dwordx4 s[8:11], s[0:1], 16")
    e("s_load_dwordx4 s[12:15], s[0:1], 32")
    e("s_load_dwordx4 s[16:19], s[0:1], 48")
    e("s_load_dwordx2 s[20:21], s[0:1], 88")
    e("s_cmp_ge_u32 s2, 128\ns_cbranch_scc1 K1_helper")
    e("v_lshlrev_b32 v1, 2, v0\nv_mov_b32 v2, 0")
    e("v_cmp_gt_u32 vcc, 0x100, v0\ns_and_saveexec_b64 s[22:23], vcc")
    e(f"ds_write_b32 v1, v2 offset:{K1_CNT}")
    e("s_mov_b64 exec, s[22:23]")
    e("v_lshlrev_b32 v1, 4, v0")
    e("v_mul_u32_u24 v2, 24, v0")
    e("v_lshlrev_b32 v3, 3, v0")
    e("s_mul_i32 s44, s2, 10000\ns_mul_i32 s45, s2, 15000\ns_mul_i32 s46, s2, 5000")
    e("v_cmp_gt_u32 vcc, 0x271, v0")
    e("s_waitcnt lgkmcnt(0)")
    stamp(1)
    srd(e,24,10,E*4)
    srd(e,28,12,E*4)
    srd(e,32,6,E*6)
    srd(e,36,8,E*2)
    srd(e,40,20,WS_USED)
    e("s_and_saveexec_b64 s[48:49], vcc")
    e("s_mov_b64 s[50:51], exec")
    e("buffer_load_dwordx4 v[8:11], v1, s[28:31], s44 offen")
    e("buffer_load_dwordx4 v[4:7], v1, s[24:27], s44 offen")
    e("buffer_load_dwordx2 v[18:19], v3, s[36:39], s46 offen")
    e("buffer_load_dwordx4 v[12:15], v2, s[32:35], s45 offen")
    e("buffer_load_dwordx2 v[16:17], v2, s[32:35], s45 offen offset:16")
    e("s_barrier")
    e("v_mov_b32 v3, 1")
    e("s_mov_b32 s47, 52429")
    e("s_waitcnt vmcnt(4)")
    stamp(2)
    for r in range(4):
        e(f"v_mul_u32_u24 v{20+r}, s47, v{8+r}")
        e(f"v_lshrrev_b32 v{20+r}, 21, v{20+r}")
        e(f"v_mul_u32_u24 v{24+r}, 40, v{20+r}")
        e(f"v_sub_u32 v{24+r}, v{8+r}, v{24+r}")
        e(f"v_lshlrev_b32 v{20+r}, 2, v{20+r}")
        e(f"ds_add_rtn_u32 v{28+r}, v{20+r}, v3 offset:{K1_CNT}")
    e("s_waitcnt vmcnt(0)")
    stamp(3)
    ylo=lambda d,s: e(f"v_lshlrev_b32 v{d}, 16, v{s}")
    yhi=lambda d,s: e(f"v_and_b32 v{d}, 0xffff0000, v{s}")
    ys=[]
    for k in range(12): ys.append((12+k//2, k&1))
    for r in range(4):
        e(f"v_lshl_or_b32 v{32+4*r}, v{4+r}, 10, v{24+r}")
        (yhi if r&1 else ylo)(48, 18+r//2)
        for j in range(3):
            reg,hi=ys[3*r+j]
            (yhi if hi else ylo)(49+j, reg)
        for j in range(3):
            e(f"v_mul_f32 v{49+j}, v48, v{49+j}")
        e(f"v_cvt_pk_bf16_f32 v{33+4*r}, v48, v49")
        e(f"v_cvt_pk_bf16_f32 v{34+4*r}, v50, v51")
    e("s_mov_b64 exec, s[48:49]")
    e("s_waitcnt lgkmcnt(0)\ns_barrier")
    stamp(4)
    e("v_mbcnt_lo_u32_b32 v52, -1, 0\nv_mbcnt_hi_u32_b32 v52, -1, v52")
    e("v_lshlrev_b32 v53, 4, v52")
    e(f"ds_read_b128 v[56:59], v53 offset:{K1_CNT}")
    e("s_waitcnt lgkmcnt(0)")
    e("v_add_u32 v61, v56, v57\nv_add_u32 v62, v61, v58\nv_add_u32 v63, v62, v59")
    e("v_mov_b32 v54, v63")
    for sh in (1,2,4,8):
        e("s_nop 1")
        e(f"v_add_u32_dpp v54, v54, v54 row_shr:{sh} row_mask:0xf bank_mask:0xf bound_ctrl:0")
    e("s_nop 1\nv_add_u32_dpp v54, v54, v54 row_bcast:15 row_mask:0xa bank_mask:0xf")
    e("s_nop 1\nv_add_u32_dpp v54, v54, v54 row_bcast:31 row_mask:0xc bank_mask:0xf")
    e("v_sub_u32 v64, v54, v63")
    e("v_add_u32 v65, v64, v56\nv_add_u32 v66, v64, v61\nv_add_u32 v67, v64, v62")
    e(f"ds_write_b128 v53, v[64:67] offset:{K1_START}")
    e("v_readfirstlane_b32 s52, v0")
    for r in range(4):
        e(f"v_lshl_or_b32 v{68+r}, v{56+r}, 16, v{64+r}")
    e("s_cmp_lg_u32 s52, 0\ns_cbranch_scc1 K1_notab")
    e(f"s_lshl_b32 s53, s2, 10")
    ST=opt.get('st','')
    e(f"buffer_store_dwordx4 v[68:71], v53, s[40:43], s53 offen{ST}")
    e("K1_notab:")
    e("s_mov_b64 exec, s[50:51]")
    e("s_waitcnt lgkmcnt(0)")
    for r in range(4):
        e(f"ds_read_b32 v{56+r}, v{20+r} offset:{K1_START}")
    e("s_waitcnt lgkmcnt(0)")
    for r in range(4):
        e(f"v_add_u32 v{56+r}, v{56+r}, v{28+r}")
        e(f"v_mul_u32_u24 v{56+r}, 12, v{56+r}")
        e(f"ds_write2_b32 v{56+r}, v{32+4*r}, v{33+4*r} offset0:0 offset1:1")
        e(f"ds_write_b32 v{56+r}, v{34+4*r} offset:8")
    e("s_mov_b64 exec, s[48:49]")
    e("s_waitcnt lgkmcnt(0)\ns_barrier")
    stamp(5)
    e("v_lshlrev_b32 v1, 4, v0")
    e(f"s_mul_i32 s53, s2, {EPW*12}\ns_add_u32 s53, s53, {REC_OFF}")
    e("ds_read_b128 v[4:7], v1\nds_read_b128 v[8:11], v1 offset:10240\nds_read_b128 v[12:15], v1 offset:20480")
    e("v_add_u32 v2, 10240, v1\nv_add_u32 v3, 20480, v1")
    e(f"v_cmp_gt_u32 vcc, {1875-1280}, v0")
    e(f"s_waitcnt lgkmcnt(2)\nbuffer_store_dwordx4 v[4:7], v1, s[40:43], s53 offen{ST}")
    e(f"s_waitcnt lgkmcnt(1)\nbuffer_store_dwordx4 v[8:11], v2, s[40:43], s53 offen{ST}")
    e("s_and_saveexec_b64 s[22:23], vcc")
    e("s_cbranch_execz K1_pend")
    e(f"s_waitcnt lgkmcnt(0)\nbuffer_store_dwordx4 v[12:15], v3, s[40:43], s53 offen{ST}")
    e("K1_pend:")
    if ts:
        e("s_mov_b64 exec, -1")
        stamp(6)
        dump()
    e("s_waitcnt vmcnt(0) lgkmcnt(0)\ns_endpgm")
    e("K1_helper:")
    e("s_sub_u32 s22, s2, 128")
    e("v_lshrrev_b32 v1, 6, v0\nv_and_b32 v2, 63, v0")
    e("s_mul_i32 s23, s22, 640\nv_add_u32 v3, s23, v0\nv_lshlrev_b32 v3, 7, v3")
    e("v_readfirstlane_b32 s44, v1")
    e("s_lshr_b32 s23, s22, 3\ns_mul_i32 s23, s23, 625\nv_add_u32 v4, s23, v0\nv_lshlrev_b32 v4, 10, v4")
    e("s_waitcnt lgkmcnt(0)")
    stamp(1)
    srd(e,24,4,XBYTES)
    e("s_cmp_ge_u32 s22, 16\ns_cbranch_scc1 K1_pf")
    srd(e,28,14,1280)
    srd(e,32,16,256*256)
    srd(e,36,18,384*256)
    srd(e,40,20,WS_USED)
    e("s_mul_i32 s45, s22, 10\ns_add_u32 s45, s45, s44")
    e("s_and_b32 s46, s45, 1")
    e("s_lshr_b32 s47, s45, 1")
    e("s_mul_i32 s48, s47, 52429\ns_lshr_b32 s48, s48, 18")
    e("s_mul_i32 s49, s48, 5\ns_sub_u32 s49, s47, s49")
    e("s_and_b32 s50, s48, 7\ns_lshr_b32 s51, s48, 3")
    e("s_lshl_b32 s52, s51, 6\ns_lshl_b32 s53, s46, 5\ns_add_u32 s52, s52, s53")
    e("v_lshrrev_b32 v5, 4, v2\nv_and_b32 v6, 15, v2")
    e("v_lshlrev_b32 v7, 10, v5\nv_lshl_add_u32 v7, v6, 1, v7")
    e("v_lshlrev_b32 v8, 3, v5")
    e("s_lshl_b32 s53, s49, 7\ns_add_u32 s53, s53, s52\ns_lshl_b32 s53, s53, 1")
    e("buffer_load_dwordx2 v[10:11], v8, s[28:31], s53 offen")
    e("buffer_load_dwordx2 v[12:13], v8, s[28:31], s53 offen offset:32")
    e("s_cmp_ge_u32 s49, 2\ns_cbranch_scc1 K1_w1")
    for (lab,sub,R) in (("",0,32),("K1_w1:",2,36)):
        if lab: e(lab)
        e(f"s_sub_u32 s54, s49, {sub}\ns_lshl_b32 s54, s54, 7\ns_add_u32 s54, s54, s52\ns_lshl_b32 s54, s54, 8")
        e("s_lshl_b32 s55, s50, 5\ns_add_u32 s54, s54, s55\ns_add_u32 s55, s54, 4096")
        for j in range(4): e(f"buffer_load_ushort v{16+j}, v7, s[{R}:{R+3}], s54 offen offset:{j*256}")
        for j in range(4): e(f"buffer_load_ushort v{20+j}, v7, s[{R}:{R+3}], s55 offen offset:{j*256}")
        if not lab: e("s_branch K1_wj")
    e("K1_wj:")
    PF=opt.get('pf',2)
    def pfl():
        if PF>=1: e("buffer_load_dword v30, v3, s[24:27], 0 offen")
        if PF>=2: e("buffer_load_dword v31, v3, s[24:27], 0 offen offset:64")
        if PF>=1: e("buffer_load_dword v32, v4, s[24:27], 0 offen")
        if PF>=2: e("buffer_load_dword v33, v4, s[24:27], 0 offen offset:64")
    pfl()
    npf=2*PF
    e(f"s_waitcnt vmcnt({npf})")
    for j in range(8):
        src=10+j//2
        if j&1: e(f"v_and_b32 v24, 0xffff0000, v{src}")
        else:   e(f"v_lshlrev_b32 v24, 16, v{src}")
        e(f"v_lshlrev_b32 v{16+j}, 16, v{16+j}")
        e(f"v_mul_f32 v{16+j}, v24, v{16+j}")
    for k in range(4): e(f"v_cvt_pk_bf16_f32 v{40+k}, v{16+2*k}, v{17+2*k}")
    e(f"s_lshl_b32 s54, s45, 10\ns_add_u32 s54, s54, {WF_OFF}")
    e("v_lshlrev_b32 v9, 4, v2")
    e(f"buffer_store_dwordx4 v[40:43], v9, s[40:43], s54 offen{ST}")
    dump()
    e("s_waitcnt vmcnt(0)\ns_endpgm")
    e("K1_pf:")
    pfl()
    e("s_waitcnt vmcnt(0)")
    dump()
    e("K1_done:\ns_endpgm")
    return e.text()

vAd=0; vP=2; vT=4; vID=8
vXA=20; vA1=36; vCF=52; vW=76; vA2=116; vSW=164; vSR=165; NV=166
sXR=8; sWS=12; sOUT=16
sWave=20; sNch=21; sRing=22; sOffC=24; sOffN=25; sS=28; sWb=29
sLo=34; sMode=35; sTot=36; sT0=37; sT1=38; sFirst=39
sK1024=50; sB=52; sWo=53
IDS=512
STG=6144

def gen_k2(opt):
    e=A()
    ts=opt.get('ts')
    DPOS=opt.get('dpos',[1,4,7,10,13,16,19,22])
    PRE=opt.get('pre',1)
    def stamp(k):
        if not ts: return
        e(f"s_memrealtime s[56:57]\ns_waitcnt lgkmcnt(0)")
        if isinstance(k,int): e(f"v_writelane_b32 v{NV}, s56, {k}")
        else:
            e(f"s_add_u32 m0, {k[0]}, {k[1]}\nv_writelane_b32 v{NV}, s56, m0")
    adn=[0]
    def dma(c,i,soff):
        ad=vAd+(adn[0]&1); adn[0]+=1
        e(f"s_add_u32 m0, s{sRing}, {(c%3)*4096+i*1024}")
        e(f"v_mad_u32_u16 v{ad}, v{vID+2*c+(i>>1)}, s{sK1024}, v{vP+(i&1)} op_sel:[{i&1},0,0,0]")
        e(f"buffer_load_dwordx4 v{ad}, s[{sXR}:{sXR+3}], s{soff} offen lds")
    def wload(ks_, hexpr):
        e(f"v_mbcnt_lo_u32_b32 v{vAd+1}, -1, 0\nv_mbcnt_hi_u32_b32 v{vAd+1}, -1, v{vAd+1}\nv_lshlrev_b32 v{vAd+1}, 4, v{vAd+1}")
        cur=0
        for k in ks_:
            while cur<k//4:
                e(f"s_add_u32 s{hexpr}, s{hexpr}, 4096"); cur+=1
            e(f"buffer_load_dwordx4 {vr(vW+4*k,4)}, v{vAd+1}, s[{sWS}:{sWS+3}], s{hexpr} offen offset:{(k%4)*1024}")
    AC=[0,1,4,5]; BDE=[2,3,6,7,8,9]
    e(f".globl {K2}\n.p2align 8\n.type {K2},@function\n{K2}:")
    e(f"s_cmp_ge_u32 s2, {NB}\ns_cbranch_scc1 K2_done")
    if ts: e(f"v_mov_b32 v{NV}, 0")
    stamp(0)
    e(f"s_load_dwordx2 s[{sXR}:{sXR+1}], s[0:1], 0")
    e(f"s_load_dwordx2 s[{sWS}:{sWS+1}], s[0:1], 88")
    e(f"s_load_dwordx2 s[{sOUT}:{sOUT+1}], s[0:1], 72")
    e("v_lshrrev_b32 v1, 6, v0")
    e(f"s_mov_b32 s{sB}, s2")
    e(f"v_readfirstlane_b32 s{sWave}, v1")
    e(f"s_mov_b32 s{sK1024}, 1024")
    e(f"s_mov_b32 s{sMode}, 0\ns_mov_b32 s{sLo}, 0\ns_mov_b32 s{sTot}, 0")
    e(f"s_mov_b32 s{sXR+2}, {XBYTES}\ns_mov_b32 s{sXR+3}, 0x20000\ns_mov_b32 s{sWS+2}, {WS_USED}\ns_mov_b32 s{sWS+3}, 0x20000")
    e(f"s_mov_b32 s{sOUT+2}, {XBYTES}\ns_mov_b32 s{sOUT+3}, 0x20000")
    for r in range(48): e(f"v_mov_b32 v{vA2+r}, 0")
    e(f"s_mul_i32 s{sRing}, s{sWave}, {RING}")
    e(f"s_mul_i32 s{sWb}, s{sWave}, 10240\ns_add_u32 s{sWb}, s{sWb}, {WF_OFF}")
    e("s_waitcnt lgkmcnt(0)")
    stamp(1)
    e("K2_round:")
    L,TID,P,SUB,TABV,RB,II,HI,CNT,t0,t1,CA,i16,G,r_,cc=range(100,116)
    e(f"v_mbcnt_lo_u32_b32 v{L}, -1, 0\nv_mbcnt_hi_u32_b32 v{L}, -1, v{L}")
    e(f"s_lshl_b32 s{sT0}, s{sWave}, 6\nv_add_u32 v{TID}, s{sT0}, v{L}")
    e(f"s_mov_b32 s{sT1}, 52429\nv_mul_u32_u24 v{P}, s{sT1}, v{TID}\nv_lshrrev_b32 v{P}, 18, v{P}")
    e(f"v_lshlrev_b32 v{t0}, 10, v{P}\ns_lshl_b32 s{sT0}, s{sB}, 2")
    e(f"buffer_load_dword v{TABV}, v{t0}, s[{sWS}:{sWS+3}], s{sT0} offen")
    e(f"v_mul_u32_u24 v{SUB}, 5, v{P}\nv_sub_u32 v{SUB}, v{TID}, v{SUB}")
    Z=vXA
    for r in range(4): e(f"v_mov_b32 v{Z+r}, 0")
    e(f"v_lshlrev_b32 v{t1}, 4, v{L}\nv_add_u32 v{t1}, s{sRing}, v{t1}")
    for k in range(6): e(f"ds_write_b128 v{t1}, {vr(Z,4)} offset:{STG+k*1024}")
    e(f"s_mul_i32 s{sT0}, s{sWave}, {IDS}\ns_add_u32 s{sT0}, s{sT0}, {IDX_OFF}")
    e(f"v_lshlrev_b32 v{Z+4}, 2, v{L}\nv_add_u32 v{Z+4}, s{sT0}, v{Z+4}\nv_mov_b32 v{Z+5}, -1")
    for k in range(2): e(f"ds_write_b32 v{Z+4}, v{Z+5} offset:{k*256}")
    e(f"v_and_b32 v{Z+6}, 15, v{L}\nv_lshlrev_b32 v{Z+6}, 2, v{Z+6}\nv_add_u32 v{Z+6}, {GC_OFF}, v{Z+6}")
    e(f"ds_write_b32 v{Z+6}, v{Z}")
    e(f"v_and_b32 v{i16}, 15, v{L}\nv_lshrrev_b32 v{G}, 4, v{L}\nv_lshrrev_b32 v{r_}, 2, v{i16}\nv_and_b32 v{cc}, 3, v{L}")
    e(f"v_lshl_add_u32 v{t0}, v{G}, 3, v{r_}")
    e(f"v_lshlrev_b32 v{t0}, 7, v{t0}\nv_lshl_add_u32 v{t0}, v{cc}, 3, v{t0}\nv_add_u32 v{t0}, s{sRing}, v{t0}")
    e(f"v_lshrrev_b32 v{t1}, 1, v{r_}\nv_and_b32 v{Z+7}, 1, v{G}\nv_lshl_add_u32 v{t1}, v{Z+7}, 1, v{t1}")
    e(f"v_lshl_add_u32 v{vT}, v{t1}, 5, v{t0}")
    for ct in range(1,4): e(f"v_xor_b32 v{vT+ct}, {ct*32}, v{vT}")
    IB=Z+8
    e(f"v_lshrrev_b32 v{t0}, 3, v{L}\nv_lshlrev_b32 v{t0}, 2, v{t0}\nv_add_u32 v{IB}, s{sT0}, v{t0}")
    e(f"v_and_b32 v{t0}, 7, v{L}\nv_and_b32 v{t1}, 1, v{G}\nv_lshlrev_b32 v{t1}, 1, v{t1}\nv_xor_b32 v{t0}, v{t0}, v{t1}")
    e(f"v_lshlrev_b32 v{vP}, 4, v{t0}\nv_xor_b32 v{vP+1}, 64, v{vP}")
    e(f"s_lshl_b32 s{sT1}, s{sWave}, 2\nv_add_u32 v{t0}, s{sT1}, v{r_}")
    e(f"v_and_b32 v{t1}, 8, v{t0}\nv_lshrrev_b32 v{t1}, 2, v{t1}\nv_xor_b32 v{t1}, v{t1}, v{G}")
    e(f"v_lshlrev_b32 v{t0}, 6, v{t0}\nv_lshl_add_u32 v{t0}, v{t1}, 4, v{t0}")
    e(f"v_mul_u32_u24 v{t1}, {S_T}, v{cc}\nv_add_u32 v{t0}, v{t0}, v{t1}\nv_add_u32 v{vSW}, {S_OFF}, v{t0}")
    e(f"v_and_b32 v{t1}, 8, v{i16}\nv_lshrrev_b32 v{t1}, 2, v{t1}\nv_xor_b32 v{t1}, v{t1}, v{G}")
    e(f"v_lshlrev_b32 v{t0}, 6, v{i16}\nv_lshl_add_u32 v{t0}, v{t1}, 4, v{t0}\nv_add_u32 v{vSR}, {S_OFF}, v{t0}")
    e(f"v_lshlrev_b32 v{CA}, 8, v{G}\nv_lshl_add_u32 v{CA}, v{i16}, 3, v{CA}\nv_add_u32 v{CA}, s{sRing}, v{CA}")
    e("s_waitcnt lgkmcnt(0)\ns_barrier")
    e("s_waitcnt vmcnt(0)")
    stamp(2)
    e(f"v_lshrrev_b32 v{CNT}, 16, v{TABV}\nv_and_b32 v{RB}, 0xffff, v{TABV}")
    e(f"v_mul_u32_u24 v{t0}, {EPW}, v{P}\nv_add_u32 v{RB}, v{RB}, v{t0}\nv_mul_u32_u24 v{RB}, 12, v{RB}")
    e(f"s_cmp_eq_u32 s{sMode}, 0\ns_cbranch_scc0 K2_slowwin")
    e(f"v_mov_b32 v{II}, v{SUB}\nv_mov_b32 v{HI}, v{CNT}")
    e("s_branch K2_winok")
    e("K2_slowwin:")
    e(f"v_lshlrev_b32 v{t0}, 2, v{P}\nv_add_u32 v{t0}, {PREF_OFF}, v{t0}\nds_read_b32 v{t0}, v{t0}")
    e("s_waitcnt lgkmcnt(0)")
    e(f"v_sub_u32 v{t0}, s{sLo}, v{t0}")
    e(f"v_add_u32 v{t1}, {CAP}, v{t0}")
    e(f"v_med3_i32 v{t0}, v{t0}, 0, v{CNT}\nv_med3_i32 v{HI}, v{t1}, 0, v{CNT}")
    e(f"v_add_u32 v{II}, v{t0}, v{SUB}")
    e("K2_winok:")
    e(f"s_mov_b32 s{sFirst}, 1")
    R=36
    e("K2_bin:")
    for r in range(5):
        e(f"v_add_u32 v{t0}, {5*r}, v{II}")
        e(f"v_cmp_lt_u32 vcc, v{t0}, v{HI}")
        e(f"v_mul_u32_u24 v{t0}, 12, v{t0}\nv_add_u32 v{t0}, v{t0}, v{RB}")
        e(f"s_mov_b64 s[{40+2*r}:{41+2*r}], vcc")
        e(f"v_mov_b32 v{t1}, {OOB}\nv_cndmask_b32 v{R+4*r+3}, v{t1}, v{t0}, vcc")
    e(f"s_mov_b32 s{sT0}, {REC_OFF}")
    for r in range(5):
        e(f"buffer_load_dwordx3 v[{R+4*r}:{R+4*r+2}], v{R+4*r+3}, s[{sWS}:{sWS+3}], s{sT0} offen")
    e(f"s_cmp_eq_u32 s{sFirst}, 0\ns_cbranch_scc1 K2_bin_w0")
    e(f"s_mov_b32 s{sFirst}, 0")
    e(f"s_cmp_ge_u32 s{sWave}, 8\ns_cbranch_scc1 K2_bin_w0")
    e(f"s_mov_b32 s{sWo}, s{sWb}")
    wload(AC,sWo)
    e("s_waitcnt vmcnt(4)\ns_branch K2_bin_go")
    e("K2_bin_w0:")
    e("s_waitcnt vmcnt(0)")
    e("K2_bin_go:")
    stamp(3)
    e(f"v_mov_b32 v{t1}, 1\ns_mov_b32 s{sT1}, {GC_OFF}")
    assert GC_OFF%64==0
    for r in range(5):
        lab=e.lab("K2_ba")
        e(f"s_mov_b64 exec, s[{40+2*r}:{41+2*r}]\ns_cbranch_execz {lab}")
        e(f"v_and_or_b32 v{t0}, v{R+4*r}, 60, s{sT1}")
        e(f"ds_add_rtn_u32 v{R+4*r+3}, v{t0}, v{t1}")
        e(f"{lab}:")
    e("s_mov_b64 exec, -1\ns_waitcnt lgkmcnt(0)")
    e(f"s_movk_i32 s{sT1}, {CAP}")
    for r in range(5):
        lab=e.lab("K2_bw")
        w0=R+4*r; rk=w0+3
        u=Z+10
        e(f"s_mov_b64 exec, s[{40+2*r}:{41+2*r}]\ns_cbranch_execz {lab}")
        e(f"v_cmp_gt_u32 vcc, s{sT1}, v{rk}\ns_and_b64 exec, exec, vcc")
        e(f"v_bfe_u32 v{t0}, v{w0}, 2, 4")
        e(f"v_and_b32 v{u}, 0xf0, v{rk}\nv_lshlrev_b32 v{t1}, 9, v{t0}\nv_lshl_add_u32 v{t1}, v{u}, 1, v{t1}")
        e(f"v_and_b32 v{u}, 7, v{rk}\nv_lshl_add_u32 v{t1}, v{u}, 2, v{t1}")
        e(f"v_bfe_u32 v{u}, v{rk}, 3, 1\nv_lshl_add_u32 v{t1}, v{u}, 1, v{t1}")
        e(f"v_mul_u32_u24 v{t0}, {RING}, v{t0}\nv_lshl_add_u32 v{t0}, v{rk}, 5, v{t0}")
        e(f"v_and_b32 v{rk}, 3, v{w0}\nv_lshl_add_u32 v{t0}, v{rk}, 3, v{t0}")
        e(f"v_lshrrev_b32 v{w0}, 10, v{w0}")
        e(f"v_add_u32 v{t1}, {IDX_OFF}, v{t1}\nds_write_b16 v{t1}, v{w0}")
        e(f"v_add_u32 v{t0}, {STG}, v{t0}")
        e(f"ds_write2_b32 v{t0}, v{w0+1}, v{w0+2} offset0:0 offset1:1")
        e(f"{lab}:")
    e("s_mov_b64 exec, -1")
    e(f"v_add_u32 v{II}, 25, v{II}\nv_cmp_lt_u32 vcc, v{II}, v{HI}")
    e("s_cbranch_vccnz K2_bin")
    e("s_waitcnt lgkmcnt(0)\ns_barrier")
    stamp(4)
    e(f"v_and_b32 v{t0}, 15, v{L}\nv_lshlrev_b32 v{t0}, 2, v{t0}\nv_add_u32 v{t0}, {GC_OFF}, v{t0}\nds_read_b32 v{t0}, v{t0}")
    for c in range(6):
        for p in range(2): e(f"ds_read_b32 v{vID+2*c+p}, v{IB} offset:{64*c+32*p}")
    e("s_waitcnt lgkmcnt(12)")
    e(f"v_cmp_lt_u32 vcc, {CAP}, v{t0}")
    e(f"v_readlane_b32 s{sNch}, v{t0}, s{sWave}")
    e("s_cbranch_vccnz K2_overflow")
    e("K2_nover:")
    for c in range(6):
        e(f"ds_read_b64_tr_b16 {vr(vCF+4*c,2)}, v{CA} offset:{STG+c*1024}")
        e(f"ds_read_b64_tr_b16 {vr(vCF+4*c+2,2)}, v{CA} offset:{STG+c*1024+128}")
    e(f"s_add_u32 s{sNch}, s{sNch}, 31\ns_lshr_b32 s{sNch}, s{sNch}, 5\ns_max_u32 s{sNch}, s{sNch}, 1")
    e(f"s_mov_b32 s{sS}, 0\ns_mov_b32 s{sOffC}, 0")
    e("s_waitcnt lgkmcnt(12)")
    for i in range(4): dma(0,i,sOffC)
    e("s_waitcnt lgkmcnt(0)")
    for c in (1,2):
        for i in range(4): dma(c,i,sOffC)
    stamp(5)
    e("K2_slice:")
    for n in (4,5,3,6,2): e(f"s_cmp_eq_u32 s{sNch}, {n}\ns_cbranch_scc1 K2_n{n}")
    for n in (1,2,3,6,5,4):
        e(f"K2_n{n}:")
        for c in range(n):
            issued=max(n,3) if c==0 else None
            last=min(max(n,3)-1, c+2)
            e(f"s_waitcnt vmcnt({4*(last-c)})")
            for ct in range(4):
                e(f"ds_read_b64_tr_b16 {vr(vXA+4*ct,2)}, v{vT+ct} offset:{(c%3)*4096}")
                e(f"ds_read_b64_tr_b16 {vr(vXA+4*ct+2,2)}, v{vT+ct} offset:{(c%3)*4096+512}")
            for ct in range(4):
                e(f"s_waitcnt lgkmcnt({6-2*ct})")
                C = "0" if c==0 else vr(vA1+4*ct,4)
                e(f"v_mfma_f32_16x16x32_bf16 {vr(vA1+4*ct,4)}, {vr(vXA+4*ct,4)}, {vr(vCF+4*c,4)}, {C}")
            if c+3<n:
                for i in range(4): dma(c+3,i,sOffC)
            if c==0: e("s_barrier")
        if n!=4: e("s_branch K2_gap")
    e("K2_gap:")
    stamp((f"s{sS}",8))
    e(f"s_and_b32 s{sT0}, s{sS}, 3")
    e(f"s_cmp_eq_u32 s{sT0}, 1\ns_cbranch_scc1 K2_gap_1")
    e(f"s_cmp_eq_u32 s{sT0}, 2\ns_cbranch_scc1 K2_gap_2")
    e(f"s_cmp_eq_u32 s{sS}, 3\ns_cbranch_scc1 K2_gap_3")
    e(f"s_cmp_eq_u32 s{sS}, 7\ns_cbranch_scc1 K2_gap_F")
    bufs=[vXA+4*k for k in range(4)]+[vA1+4*k for k in range(4)]
    for var in ('0','1','2','3','F'):
        q=3 if var=='F' else int(var)
        fin = var=='F'
        e(f"K2_gap_{var}:")
        if not fin:
            if q<3: e(f"s_add_u32 s{sOffN}, s{sOffC}, 256")
            else: e(f"s_mov_b32 s{sOffN}, 128")
        if q==0:
            lab=e.lab("K2_nw")
            e(f"s_cmp_ge_u32 s{sWave}, 8\ns_cbranch_scc1 {lab}")
            e(f"s_lshr_b32 s{sWo}, s{sS}, 2\ns_mul_i32 s{sWo}, s{sWo}, 81920\ns_add_u32 s{sWo}, s{sWo}, s{sWb}")
            wload(BDE,sWo)
            e(f"{lab}:")
        if q==1:
            lab=e.lab("K2_nw")
            e(f"s_cmp_ge_u32 s{sWave}, 8\ns_cbranch_scc1 {lab}")
            e(f"s_cmp_lg_u32 s{sS}, 1\ns_cbranch_scc1 {lab}")
            e(f"s_add_u32 s{sWo}, s{sWb}, 81920")
            wload(AC,sWo)
            e(f"{lab}:")
        defer=[] if fin else [(c,i) for c in range(3) for i in range(4)]
        pre=defer[:4*PRE]; post=defer[4*PRE:]
        for (c,i) in pre: dma(c,i,sOffN)
        e("s_nop 7" if not pre else "s_nop 1")
        for ks in range(2):
            for hh in range(2):
                a=vA1+4*(2*ks+hh)
                e(f"v_cvt_pk_bf16_f32 v{vXA+4*ks+2*hh}, v{a}, v{a+1}")
                e(f"v_cvt_pk_bf16_f32 v{vXA+4*ks+2*hh+1}, v{a+2}, v{a+3}")
        if q>0:
            tneg={3:1,1:2,2:3}[q]
            msk=(0x11111111<<tneg)&0xffffffff
            e(f"s_mov_b32 exec_lo, {hex(msk)}\ns_mov_b32 exec_hi, {hex(msk)}")
            for k in range(8): e(f"v_xor_b32 v{vXA+k}, 0x80008000, v{vXA+k}")
            e("s_mov_b64 exec, -1")
        e(f"ds_write_b128 v{vSW}, {vr(vXA,4)}")
        e(f"ds_write_b128 v{vSW}, {vr(vXA+4,4)} offset:{S_KS}")
        e("s_waitcnt lgkmcnt(0)\ns_barrier")
        stamp((f"s{sS}",16))
        e(f"s_cmp_ge_u32 s{sWave}, 8\ns_cbranch_scc1 K2_gw_{var}")
        if q==0: plan=[(0,0,0),(1,2,1),(2,2,2),(3,2,3)]
        else:
            k=q-1; plan=[(0,3,q),(q,1,0)]
            for j in range(3):
                if j!=k: plan.append((1+j,4,1+(3-j-k)))
        items=[(t,m,o,ks,mt) for (t,m,o) in plan for ks in range(2) for mt in range(3)]
        n=len(items); assert n==24
        def rd(i):
            t,m,o,ks,mt=items[i]
            e(f"ds_read_b128 {vr(bufs[i%8],4)}, v{vSR} offset:{t*S_T+ks*S_KS+mt*1024}")
        for i in range(7): rd(i)
        npost=len(post)
        pos=[int(round((j+0.5)*24/npost-1)) for j in range(npost)] if (npost and npost!=8) else (DPOS if npost else [])
        pj=0
        for i in range(n):
            t,m,o,ks,mt=items[i]
            e(f"s_waitcnt lgkmcnt({min(6,n-1-i)})")
            acc=vA2+(o*3+mt)*4
            e(f"v_mfma_f32_16x16x32_bf16 {vr(acc,4)}, {vr(vW+(m*2+ks)*4,4)}, {vr(bufs[i%8],4)}, {vr(acc,4)}")
            if i+7<n: rd(i+7)
            while pj<npost and pos[pj]<=i:
                dma(post[pj][0],post[pj][1],sOffN); pj+=1
        assert pj==npost
        e(f"s_branch K2_gn_{var}")
        e(f"K2_gw_{var}:")
        for (c,i) in post: dma(c,i,sOffN)
        e(f"K2_gn_{var}:")
        stamp((f"s{sS}",24))
        if not fin:
            e(f"s_mov_b32 s{sOffC}, s{sOffN}\ns_add_u32 s{sS}, s{sS}, 1\ns_branch K2_slice")
    e(f"s_cmp_eq_u32 s{sMode}, 0\ns_cbranch_scc1 K2_epi")
    e(f"s_add_u32 s{sLo}, s{sLo}, {CAP}\ns_cmp_ge_u32 s{sLo}, s{sTot}\ns_cbranch_scc1 K2_epi")
    e("s_waitcnt vmcnt(0)\ns_branch K2_round")
    e("K2_epi:")
    e(f"s_cmp_ge_u32 s{sWave}, 8\ns_cbranch_scc1 K2_fin")
    e(f"v_mbcnt_lo_u32_b32 v2, -1, 0\nv_mbcnt_hi_u32_b32 v2, -1, v2")
    e(f"v_and_b32 v3, 15, v2\nv_lshrrev_b32 v1, 4, v2\nv_lshlrev_b32 v1, 3, v1\nv_lshl_add_u32 v1, v3, 10, v1")
    e(f"v_mov_b32 v0, {OOB}\nv_cmp_gt_u32 vcc, 8, v3\ns_mul_i32 s{sT0}, s{sB}, {NPB*1024}\ns_lshl_b32 s{sT1}, s{sWave}, 5\ns_add_u32 s40, s{sT0}, s{sT1}")
    e(f"v_cndmask_b32 v0, v0, v1, vcc")
    e("s_add_u32 s41, s40, 16384\ns_add_u32 s42, s41, 16384")
    e("s_mov_b32 s43, 0xbfb8aa3b")
    for mt in range(3):
        a0=vA2+mt*4
        g=vXA
        for r in range(4): e(f"v_mul_f32 v{g+r}, s43, v{a0+r}")
        for r in range(4): e(f"v_exp_f32 v{g+r}, v{g+r}")
        e("s_nop 0")
        for r in range(4): e(f"v_add_f32 v{g+r}, 1.0, v{g+r}")
        for r in range(4): e(f"v_rcp_f32 v{g+r}, v{g+r}")
        pk=vA1+mt*8 if mt<2 else vCF
        e(f"v_cvt_pk_bf16_f32 v{pk}, v{a0}, v{a0+1}\nv_cvt_pk_bf16_f32 v{pk+1}, v{a0+2}, v{a0+3}")
        for o in range(1,4):
            a=vA2+(o*3+mt)*4
            for r in range(4): e(f"v_mul_f32 v{a+r}, v{a+r}, v{g+r}")
            e(f"v_cvt_pk_bf16_f32 v{pk+2*o}, v{a}, v{a+1}\nv_cvt_pk_bf16_f32 v{pk+2*o+1}, v{a+2}, v{a+3}")
        for o in range(4):
            e(f"buffer_store_dwordx2 {vr(pk+2*o,2)}, v{0 if mt==2 else 1}, s[{sOUT}:{sOUT+3}], s{40+mt} offen offset:{o*256}")
    e("K2_fin:")
    stamp(6)
    if ts:
        e("s_waitcnt vmcnt(0)")
        stamp(7)
        e(f"v_mbcnt_lo_u32_b32 v2, -1, 0\nv_mbcnt_hi_u32_b32 v2, -1, v2\nv_lshlrev_b32 v2, 2, v2")
        e(f"s_mul_i32 s40, s{sB}, 10\ns_add_u32 s40, s40, s{sWave}\ns_lshl_b32 s40, s40, 8\ns_add_u32 s40, s40, {5<<20}")
        e(f"s_mov_b32 s{sWS+2}, {8<<20}\nbuffer_store_dword v{NV}, v2, s[{sWS}:{sWS+3}], s40 offen")
    e("s_waitcnt vmcnt(0) lgkmcnt(0)\ns_endpgm")
    e("K2_overflow:")
    e(f"s_cmp_lg_u32 s{sMode}, 0\ns_cbranch_scc1 K2_nover")
    e(f"s_mov_b32 s{sMode}, 1\ns_mov_b32 s{sLo}, 0")
    e(f"v_lshlrev_b32 v{t0}, 2, v{P}\nv_add_u32 v{t0}, {PREF_OFF}, v{t0}")
    e(f"ds_write_b32 v{t0}, v{CNT}")
    e("s_waitcnt lgkmcnt(0)\ns_barrier")
    e(f"v_mov_b32 v{RB}, 0\nv_mov_b32 v{HI}, 0\ns_mov_b32 s{sT0}, 0")
    e("K2_pl:")
    e(f"s_lshl_b32 s{sT1}, s{sT0}, 2\ns_add_u32 s{sT1}, s{sT1}, {PREF_OFF}\nv_mov_b32 v{t1}, s{sT1}\nds_read_b32 v{t1}, v{t1}")
    e(f"v_cmp_lt_u32 vcc, s{sT0}, v{P}")
    e("s_waitcnt lgkmcnt(0)")
    e(f"v_add_u32 v{HI}, v{HI}, v{t1}\nv_cndmask_b32 v{t1}, 0, v{t1}, vcc\nv_add_u32 v{RB}, v{RB}, v{t1}")
    e(f"s_add_u32 s{sT0}, s{sT0}, 1\ns_cmp_lt_u32 s{sT0}, 128\ns_cbranch_scc1 K2_pl")
    e("s_barrier")
    e(f"ds_write_b32 v{t0}, v{RB}")
    e(f"v_readfirstlane_b32 s{sTot}, v{HI}")
    e("s_waitcnt vmcnt(0) lgkmcnt(0)\ns_barrier\ns_branch K2_round")
    e("K2_done:\ns_endpgm")
    return e.text()

HEADER=open("standalone__tensor_product_equiv_equiformer__graph.s.ref").read().split("; Override launch geometry")[0]

def desc(name,nv,ns):
    return f""".p2align 6
.amdhsa_kernel {name}
  .amdhsa_next_free_vgpr {nv}
  .amdhsa_next_free_sgpr {ns}
  .amdhsa_accum_offset {(nv+3)//4*4}
  .amdhsa_group_segment_fixed_size 0
  .amdhsa_kernarg_size 96
  .amdhsa_user_sgpr_count 2
  .amdhsa_user_sgpr_kernarg_segment_ptr 1
  .amdhsa_system_sgpr_workgroup_id_x 1
.end_amdhsa_kernel"""

def build(opt={}):
    s=HEADER
    s+=f"; Two launches: (1) bin edges by destination + fold weights + prefetch, (2) gather/aggregate + GEMM + gate.\n"
    L1=f"; @launch kernel={K1} grid=(256,1,1) block=(640,1,1) lds={K1_LDS}\n"
    L2=f"; @launch kernel={K2} grid=({NB},1,1) block=(640,1,1) lds={K2_LDS}\n"
    L0=f"; @launch kernel=eqf_nop_kernel grid=(1,1,1) block=(64,1,1) lds=0\n"
    seq=opt.get('seq','12')
    for ch in str(seq): s+={'1':L1,'2':L2,'0':L0}[ch]
    s+='.amdgcn_target "amdgcn-amd-amdhsa--gfx950"\n.text\n'
    s+=gen_k1(opt)+"\n"+gen_k2(opt)+"\n"
    if '0' in str(seq): s+=".globl eqf_nop_kernel\n.p2align 8\n.type eqf_nop_kernel,@function\neqf_nop_kernel:\n    s_endpgm\n"
    s+='.section .rodata,"a"\n'+desc(K1,76 if opt.get("ts") else 72,64)+"\n"+desc(K2,NV+(1 if opt.get("ts") else 0),64)+"\n"
    if '0' in str(seq): s+=desc("eqf_nop_kernel",8,16)+"\n"
    for m in re.finditer(r"buffer_\w+ .*offset:(\d+)", s):
        assert int(m.group(1))<4096, m.group(0)
    for m in re.finditer(r"ds_\w+ .*offset:(\d+)", s):
        assert int(m.group(1))<65536, m.group(0)
    return s

if __name__=="__main__":
    out=sys.argv[1] if len(sys.argv)>1 else "standalone__tensor_product_equiv_equiformer__graph.s"
    opt={}
    for a in sys.argv[2:]:
        k,v=a.split("="); opt[k]=eval(v)
    open(out,"w").write(build(opt))
    print("wrote",out)
```

```python
import re, sys

N=10000; E=320000
NPROD=128; EPW=2500
NB=250; NPB=40
TAB_OFF=0; WF_OFF=131072; REC_OFF=294912
WS_USED=REC_OFF+NPROD*EPW*12
XBYTES=N*1024
OOB=0x40000000
CAP=192
RING=12288
S_OFF=10*RING
S_T=5136; S_KS=2560
IDX_OFF=S_OFF+4*S_T
GC_OFF=IDX_OFF+10*768
PREF_OFF=GC_OFF+64
K2_LDS=PREF_OFF+512
K1_CNT=30016; K1_START=31040; K1_LDS=32064

K1="eqf_bin_kernel"
K2="standalone__tensor_product_equiv_equiformer__graph_kernel"

class A:
    def __init__(s): s.L=[]; s.n=0
    def __call__(s, txt):
        for ln in txt.split("\n"):
            ln=ln.strip()
            if ln: s.L.append(ln)
    def lab(s, base):
        s.n+=1; return f"{base}_{s.n}"
    def text(s):
        out=[]
        for l in s.L:
            out.append(l if l.endswith(":") or l.startswith(".") else "    "+l)
        return "\n".join(out)

def vr(a,n): return f"v[{a}:{a+n-1}]"
def sr(a,n): return f"s[{a}:{a+n-1}]"

def srd(e, d, plo, nbytes):
    e(f"s_mov_b32 s{d}, s{plo}\ns_mov_b32 s{d+1}, s{plo+1}\ns_mov_b32 s{d+2}, {nbytes}\ns_mov_b32 s{d+3}, 0x20000")

def gen_k1(opt):
    e=A()
    ts=opt.get('ts')
    TV=72
    def stamp(k):
        if not ts: return
        e(f"s_memrealtime s[60:61]\ns_waitcnt lgkmcnt(0)\nv_writelane_b32 v{TV}, s60, {k}")
    def dump():
        if not ts: return
        e("s_waitcnt vmcnt(0)")
        stamp(7)
        e(f"v_mbcnt_lo_u32_b32 v2, -1, 0\nv_mbcnt_hi_u32_b32 v2, -1, v2\nv_lshlrev_b32 v2, 2, v2")
        e(f"v_lshrrev_b32 v1, 6, v0\ns_nop 1\nv_readfirstlane_b32 s58, v1")
        e(f"s_mul_i32 s59, s2, 10\ns_add_u32 s59, s59, s58\ns_lshl_b32 s59, s59, 8\ns_add_u32 s59, s59, {6<<20}")
        e(f"s_mov_b32 s40, s20\ns_mov_b32 s41, s21\ns_mov_b32 s42, {8<<20}\ns_mov_b32 s43, 0x20000")
        e(f"buffer_store_dword v{TV}, v2, s[40:43], s59 offen")
    e(f".globl {K1}\n.p2align 8\n.type {K1},@function\n{K1}:")
    K1G=opt.get('k1g',144 if opt.get('pf',0)==0 else 256)
    e(f"s_cmp_ge_u32 s2, {K1G}\ns_cbranch_scc1 K1_done")
    if ts: e(f"v_mov_b32 v{TV}, 0")
    stamp(0)
    e("s_load_dwordx4 s[4:7], s[0:1], 0")
    e("s_load_dwordx4 s[8:11], s[0:1], 16")
    e("s_load_dwordx4 s[12:15], s[0:1], 32")
    e("s_load_dwordx4 s[16:19], s[0:1], 48")
    e("s_load_dwordx2 s[20:21], s[0:1], 88")
    e("s_cmp_ge_u32 s2, 128\ns_cbranch_scc1 K1_helper")
    e("v_lshlrev_b32 v1, 2, v0\nv_mov_b32 v2, 0")
    e("v_cmp_gt_u32 vcc, 0x100, v0\ns_and_saveexec_b64 s[22:23], vcc")
    e(f"ds_write_b32 v1, v2 offset:{K1_CNT}")
    e("s_mov_b64 exec, s[22:23]")
    e("v_lshlrev_b32 v1, 4, v0")
    e("v_mul_u32_u24 v2, 24, v0")
    e("v_lshlrev_b32 v3, 3, v0")
    e("s_mul_i32 s44, s2, 10000\ns_mul_i32 s45, s2, 15000\ns_mul_i32 s46, s2, 5000")
    e("v_cmp_gt_u32 vcc, 0x271, v0")
    e("s_waitcnt lgkmcnt(0)")
    stamp(1)
    srd(e,24,10,E*4)
    srd(e,28,12,E*4)
    srd(e,32,6,E*6)
    srd(e,36,8,E*2)
    srd(e,40,20,WS_USED)
    e("s_and_saveexec_b64 s[48:49], vcc")
    e("s_mov_b64 s[50:51], exec")
    e("buffer_load_dwordx4 v[8:11], v1, s[28:31], s44 offen")
    e("buffer_load_dwordx4 v[4:7], v1, s[24:27], s44 offen")
    e("buffer_load_dwordx2 v[18:19], v3, s[36:39], s46 offen")
    e("buffer_load_dwordx4 v[12:15], v2, s[32:35], s45 offen")
    e("buffer_load_dwordx2 v[16:17], v2, s[32:35], s45 offen offset:16")
    e("s_barrier")
    e("v_mov_b32 v3, 1")
    e("s_mov_b32 s47, 52429")
    e("s_waitcnt vmcnt(4)")
    stamp(2)
    for r in range(4):
        e(f"v_mul_u32_u24 v{20+r}, s47, v{8+r}")
        e(f"v_lshrrev_b32 v{20+r}, 21, v{20+r}")
        e(f"v_mul_u32_u24 v{24+r}, 40, v{20+r}")
        e(f"v_sub_u32 v{24+r}, v{8+r}, v{24+r}")
        e(f"v_lshlrev_b32 v{20+r}, 2, v{20+r}")
        e(f"ds_add_rtn_u32 v{28+r}, v{20+r}, v3 offset:{K1_CNT}")
    e("s_waitcnt vmcnt(0)")
    stamp(3)
    ylo=lambda d,s: e(f"v_lshlrev_b32 v{d}, 16, v{s}")
    yhi=lambda d,s: e(f"v_and_b32 v{d}, 0xffff0000, v{s}")
    ys=[]
    for k in range(12): ys.append((12+k//2, k&1))
    for r in range(4):
        e(f"v_lshl_or_b32 v{32+4*r}, v{4+r}, 10, v{24+r}")
        (yhi if r&1 else ylo)(48, 18+r//2)
        for j in range(3):
            reg,hi=ys[3*r+j]
            (yhi if hi else ylo)(49+j, reg)
        for j in range(3):
            e(f"v_mul_f32 v{49+j}, v48, v{49+j}")
        e(f"v_cvt_pk_bf16_f32 v{33+4*r}, v48, v49")
        e(f"v_cvt_pk_bf16_f32 v{34+4*r}, v50, v51")
    e("s_mov_b64 exec, s[48:49]")
    e("s_waitcnt lgkmcnt(0)\ns_barrier")
    stamp(4)
    e("v_mbcnt_lo_u32_b32 v52, -1, 0\nv_mbcnt_hi_u32_b32 v52, -1, v52")
    e("v_lshlrev_b32 v53, 4, v52")
    e(f"ds_read_b128 v[56:59], v53 offset:{K1_CNT}")
    e("s_waitcnt lgkmcnt(0)")
    e("v_add_u32 v61, v56, v57\nv_add_u32 v62, v61, v58\nv_add_u32 v63, v62, v59")
    e("v_mov_b32 v54, v63")
    for sh in (1,2,4,8):
        e("s_nop 1")
        e(f"v_add_u32_dpp v54, v54, v54 row_shr:{sh} row_mask:0xf bank_mask:0xf bound_ctrl:0")
    e("s_nop 1\nv_add_u32_dpp v54, v54, v54 row_bcast:15 row_mask:0xa bank_mask:0xf")
    e("s_nop 1\nv_add_u32_dpp v54, v54, v54 row_bcast:31 row_mask:0xc bank_mask:0xf")
    e("v_sub_u32 v64, v54, v63")
    e("v_add_u32 v65, v64, v56\nv_add_u32 v66, v64, v61\nv_add_u32 v67, v64, v62")
    e(f"ds_write_b128 v53, v[64:67] offset:{K1_START}")
    e("v_readfirstlane_b32 s52, v0")
    for r in range(4):
        e(f"v_lshl_or_b32 v{68+r}, v{56+r}, 16, v{64+r}")
    e("s_cmp_lg_u32 s52, 0\ns_cbranch_scc1 K1_notab")
    e(f"s_lshl_b32 s53, s2, 10")
    ST=opt.get('st','')
    e(f"buffer_store_dwordx4 v[68:71], v53, s[40:43], s53 offen{ST}")
    e("K1_notab:")
    e("s_mov_b64 exec, s[50:51]")
    e("s_waitcnt lgkmcnt(0)")
    for r in range(4):
        e(f"ds_read_b32 v{56+r}, v{20+r} offset:{K1_START}")
    e("s_waitcnt lgkmcnt(0)")
    for r in range(4):
        e(f"v_add_u32 v{56+r}, v{56+r}, v{28+r}")
        e(f"v_mul_u32_u24 v{56+r}, 12, v{56+r}")
        e(f"ds_write2_b32 v{56+r}, v{32+4*r}, v{33+4*r} offset0:0 offset1:1")
        e(f"ds_write_b32 v{56+r}, v{34+4*r} offset:8")
    e("s_mov_b64 exec, s[48:49]")
    e("s_waitcnt lgkmcnt(0)\ns_barrier")
    stamp(5)
    e("v_lshlrev_b32 v1, 4, v0")
    e(f"s_mul_i32 s53, s2, {EPW*12}\ns_add_u32 s53, s53, {REC_OFF}")
    e("ds_read_b128 v[4:7], v1\nds_read_b128 v[8:11], v1 offset:10240\nds_read_b128 v[12:15], v1 offset:20480")
    e("v_add_u32 v2, 10240, v1\nv_add_u32 v3, 20480, v1")
    e(f"v_cmp_gt_u32 vcc, {1875-1280}, v0")
    e(f"s_waitcnt lgkmcnt(2)\nbuffer_store_dwordx4 v[4:7], v1, s[40:43], s53 offen{ST}")
    e(f"s_waitcnt lgkmcnt(1)\nbuffer_store_dwordx4 v[8:11], v2, s[40:43], s53 offen{ST}")
    e("s_and_saveexec_b64 s[22:23], vcc")
    e("s_cbranch_execz K1_pend")
    e(f"s_waitcnt lgkmcnt(0)\nbuffer_store_dwordx4 v[12:15], v3, s[40:43], s53 offen{ST}")
    e("K1_pend:")
    if ts:
        e("s_mov_b64 exec, -1")
        stamp(6)
        dump()
    e("s_waitcnt vmcnt(0) lgkmcnt(0)\ns_endpgm")
    e("K1_helper:")
    e("s_sub_u32 s22, s2, 128")
    e("v_lshrrev_b32 v1, 6, v0\nv_and_b32 v2, 63, v0")
    e("s_mul_i32 s23, s22, 640\nv_add_u32 v3, s23, v0\nv_lshlrev_b32 v3, 7, v3")
    e("v_readfirstlane_b32 s44, v1")
    e("s_lshr_b32 s23, s22, 3\ns_mul_i32 s23, s23, 625\nv_add_u32 v4, s23, v0\nv_lshlrev_b32 v4, 10, v4")
    e("s_waitcnt lgkmcnt(0)")
    stamp(1)
    srd(e,24,4,XBYTES)
    e("s_cmp_ge_u32 s22, 16\ns_cbranch_scc1 K1_pf")
    srd(e,28,14,1280)
    srd(e,32,16,256*256)
    srd(e,36,18,384*256)
    srd(e,40,20,WS_USED)
    e("s_mul_i32 s45, s22, 10\ns_add_u32 s45, s45, s44")
    e("s_and_b32 s46, s45, 1")
    e("s_lshr_b32 s47, s45, 1")
    e("s_mul_i32 s48, s47, 52429\ns_lshr_b32 s48, s48, 18")
    e("s_mul_i32 s49, s48, 5\ns_sub_u32 s49, s47, s49")
    e("s_and_b32 s50, s48, 7\ns_lshr_b32 s51, s48, 3")
    e("s_lshl_b32 s52, s51, 6\ns_lshl_b32 s53, s46, 5\ns_add_u32 s52, s52, s53")
    e("v_lshrrev_b32 v5, 4, v2\nv_and_b32 v6, 15, v2")
    e("v_lshlrev_b32 v7, 10, v5\nv_lshl_add_u32 v7, v6, 1, v7")
    e("v_lshlrev_b32 v8, 3, v5")
    e("s_lshl_b32 s53, s49, 7\ns_add_u32 s53, s53, s52\ns_lshl_b32 s53, s53, 1")
    e("buffer_load_dwordx2 v[10:11], v8, s[28:31], s53 offen")
    e("buffer_load_dwordx2 v[12:13], v8, s[28:31], s53 offen offset:32")
    e("s_cmp_ge_u32 s49, 2\ns_cbranch_scc1 K1_w1")
    for (lab,sub,R) in (("",0,32),("K1_w1:",2,36)):
        if lab: e(lab)
        e(f"s_sub_u32 s54, s49, {sub}\ns_lshl_b32 s54, s54, 7\ns_add_u32 s54, s54, s52\ns_lshl_b32 s54, s54, 8")
        e("s_lshl_b32 s55, s50, 5\ns_add_u32 s54, s54, s55\ns_add_u32 s55, s54, 4096")
        for j in range(4): e(f"buffer_load_ushort v{16+j}, v7, s[{R}:{R+3}], s54 offen offset:{j*256}")
        for j in range(4): e(f"buffer_load_ushort v{20+j}, v7, s[{R}:{R+3}], s55 offen offset:{j*256}")
        if not lab: e("s_branch K1_wj")
    e("K1_wj:")
    PF=opt.get('pf',0)
    def pfl():
        if PF>=1: e("buffer_load_dword v30, v3, s[24:27], 0 offen")
        if PF>=2: e("buffer_load_dword v31, v3, s[24:27], 0 offen offset:64")
        if PF>=1: e("buffer_load_dword v32, v4, s[24:27], 0 offen")
        if PF>=2: e("buffer_load_dword v33, v4, s[24:27], 0 offen offset:64")
    pfl()
    npf=2*PF
    e(f"s_waitcnt vmcnt({npf})")
    for j in range(8):
        src=10+j//2
        if j&1: e(f"v_and_b32 v24, 0xffff0000, v{src}")
        else:   e(f"v_lshlrev_b32 v24, 16, v{src}")
        e(f"v_lshlrev_b32 v{16+j}, 16, v{16+j}")
        e(f"v_mul_f32 v{16+j}, v24, v{16+j}")
    for k in range(4): e(f"v_cvt_pk_bf16_f32 v{40+k}, v{16+2*k}, v{17+2*k}")
    e(f"s_lshl_b32 s54, s45, 10\ns_add_u32 s54, s54, {WF_OFF}")
    e("v_lshlrev_b32 v9, 4, v2")
    e(f"buffer_store_dwordx4 v[40:43], v9, s[40:43], s54 offen{ST}")
    dump()
    e("s_waitcnt vmcnt(0)\ns_endpgm")
    e("K1_pf:")
    pfl()
    e("s_waitcnt vmcnt(0)")
    dump()
    e("K1_done:\ns_endpgm")
    return e.text()

vAd=0; vP=2; vT=4; vID=8
vXA=20; vA1=36; vCF=52; vW=76; vA2=116; vSW=164; vSR=165; NV=166
sXR=8; sWS=12; sOUT=16
sWave=20; sNch=21; sRing=22; sOffC=24; sOffN=25; sS=28; sWb=29
sLo=34; sMode=35; sTot=36; sT0=37; sT1=38; sFirst=39
sK1024=50; sB=52; sWo=53
IDS=512
STG=6144

def gen_k2(opt):
    e=A()
    ts=opt.get('ts')
    DPOS=opt.get('dpos',[1,4,7,10,13,16,19,22])
    PRE=opt.get('pre',1)
    def stamp(k):
        if not ts: return
        e(f"s_memrealtime s[56:57]\ns_waitcnt lgkmcnt(0)")
        if isinstance(k,int): e(f"v_writelane_b32 v{NV}, s56, {k}")
        else:
            e(f"s_add_u32 m0, {k[0]}, {k[1]}\nv_writelane_b32 v{NV}, s56, m0")
    adn=[0]
    def dma(c,i,soff):
        ad=vAd+(adn[0]&1); adn[0]+=1
        e(f"s_add_u32 m0, s{sRing}, {(c%3)*4096+i*1024}")
        e(f"v_mad_u32_u16 v{ad}, v{vID+2*c+(i>>1)}, s{sK1024}, v{vP+(i&1)} op_sel:[{i&1},0,0,0]")
        e(f"buffer_load_dwordx4 v{ad}, s[{sXR}:{sXR+3}], s{soff} offen lds")
    def wload(ks_, hexpr):
        e(f"v_mbcnt_lo_u32_b32 v{vAd+1}, -1, 0\nv_mbcnt_hi_u32_b32 v{vAd+1}, -1, v{vAd+1}\nv_lshlrev_b32 v{vAd+1}, 4, v{vAd+1}")
        cur=0
        for k in ks_:
            while cur<k//4:
                e(f"s_add_u32 s{hexpr}, s{hexpr}, 4096"); cur+=1
            e(f"buffer_load_dwordx4 {vr(vW+4*k,4)}, v{vAd+1}, s[{sWS}:{sWS+3}], s{hexpr} offen offset:{(k%4)*1024}")
    AC=[0,1,4,5]; BDE=[2,3,6,7,8,9]
    e(f".globl {K2}\n.p2align 8\n.type {K2},@function\n{K2}:")
    e(f"s_cmp_ge_u32 s2, {NB}\ns_cbranch_scc1 K2_done")
    if ts: e(f"v_mov_b32 v{NV}, 0")
    stamp(0)
    e(f"s_load_dwordx2 s[{sXR}:{sXR+1}], s[0:1], 0")
    e(f"s_load_dwordx2 s[{sWS}:{sWS+1}], s[0:1], 88")
    e(f"s_load_dwordx2 s[{sOUT}:{sOUT+1}], s[0:1], 72")
    e("v_lshrrev_b32 v1, 6, v0")
    e(f"s_mov_b32 s{sB}, s2")
    e(f"v_readfirstlane_b32 s{sWave}, v1")
    e(f"s_mov_b32 s{sK1024}, 1024")
    e(f"s_mov_b32 s{sMode}, 0\ns_mov_b32 s{sLo}, 0\ns_mov_b32 s{sTot}, 0")
    e(f"s_mov_b32 s{sXR+2}, {XBYTES}\ns_mov_b32 s{sXR+3}, 0x20000\ns_mov_b32 s{sWS+2}, {WS_USED}\ns_mov_b32 s{sWS+3}, 0x20000")
    e(f"s_mov_b32 s{sOUT+2}, {XBYTES}\ns_mov_b32 s{sOUT+3}, 0x20000")
    for r in range(48): e(f"v_mov_b32 v{vA2+r}, 0")
    e(f"s_mul_i32 s{sRing}, s{sWave}, {RING}")
    e(f"s_mul_i32 s{sWb}, s{sWave}, 10240\ns_add_u32 s{sWb}, s{sWb}, {WF_OFF}")
    e("s_waitcnt lgkmcnt(0)")
    stamp(1)
    e("K2_round:")
    L,TID,P,SUB,TABV,RB,II,HI,CNT,t0,t1,CA,i16,G,r_,cc=range(100,116)
    e(f"v_mbcnt_lo_u32_b32 v{L}, -1, 0\nv_mbcnt_hi_u32_b32 v{L}, -1, v{L}")
    e(f"s_lshl_b32 s{sT0}, s{sWave}, 6\nv_add_u32 v{TID}, s{sT0}, v{L}")
    e(f"s_mov_b32 s{sT1}, 52429\nv_mul_u32_u24 v{P}, s{sT1}, v{TID}\nv_lshrrev_b32 v{P}, 18, v{P}")
    e(f"v_lshlrev_b32 v{t0}, 10, v{P}\ns_lshl_b32 s{sT0}, s{sB}, 2")
    e(f"buffer_load_dword v{TABV}, v{t0}, s[{sWS}:{sWS+3}], s{sT0} offen")
    e(f"v_mul_u32_u24 v{SUB}, 5, v{P}\nv_sub_u32 v{SUB}, v{TID}, v{SUB}")
    Z=vXA
    for r in range(4): e(f"v_mov_b32 v{Z+r}, 0")
    e(f"v_lshlrev_b32 v{t1}, 4, v{L}\nv_add_u32 v{t1}, s{sRing}, v{t1}")
    for k in range(6): e(f"ds_write_b128 v{t1}, {vr(Z,4)} offset:{STG+k*1024}")
    e(f"s_mul_i32 s{sT0}, s{sWave}, {IDS}\ns_add_u32 s{sT0}, s{sT0}, {IDX_OFF}")
    e(f"v_lshlrev_b32 v{Z+4}, 2, v{L}\nv_add_u32 v{Z+4}, s{sT0}, v{Z+4}\nv_mov_b32 v{Z+5}, -1")
    for k in range(2): e(f"ds_write_b32 v{Z+4}, v{Z+5} offset:{k*256}")
    e(f"v_and_b32 v{Z+6}, 15, v{L}\nv_lshlrev_b32 v{Z+6}, 2, v{Z+6}\nv_add_u32 v{Z+6}, {GC_OFF}, v{Z+6}")
    e(f"ds_write_b32 v{Z+6}, v{Z}")
    e(f"v_and_b32 v{i16}, 15, v{L}\nv_lshrrev_b32 v{G}, 4, v{L}\nv_lshrrev_b32 v{r_}, 2, v{i16}\nv_and_b32 v{cc}, 3, v{L}")
    e(f"v_lshl_add_u32 v{t0}, v{G}, 3, v{r_}")
    e(f"v_lshlrev_b32 v{t0}, 7, v{t0}\nv_lshl_add_u32 v{t0}, v{cc}, 3, v{t0}\nv_add_u32 v{t0}, s{sRing}, v{t0}")
    e(f"v_lshrrev_b32 v{t1}, 1, v{r_}\nv_and_b32 v{Z+7}, 1, v{G}\nv_lshl_add_u32 v{t1}, v{Z+7}, 1, v{t1}")
    e(f"v_lshl_add_u32 v{vT}, v{t1}, 5, v{t0}")
    for ct in range(1,4): e(f"v_xor_b32 v{vT+ct}, {ct*32}, v{vT}")
    IB=Z+8
    e(f"v_lshrrev_b32 v{t0}, 3, v{L}\nv_lshlrev_b32 v{t0}, 2, v{t0}\nv_add_u32 v{IB}, s{sT0}, v{t0}")
    e(f"v_and_b32 v{t0}, 7, v{L}\nv_and_b32 v{t1}, 1, v{G}\nv_lshlrev_b32 v{t1}, 1, v{t1}\nv_xor_b32 v{t0}, v{t0}, v{t1}")
    e(f"v_lshlrev_b32 v{vP}, 4, v{t0}\nv_xor_b32 v{vP+1}, 64, v{vP}")
    e(f"s_lshl_b32 s{sT1}, s{sWave}, 2\nv_add_u32 v{t0}, s{sT1}, v{r_}")
    e(f"v_and_b32 v{t1}, 8, v{t0}\nv_lshrrev_b32 v{t1}, 2, v{t1}\nv_xor_b32 v{t1}, v{t1}, v{G}")
    e(f"v_lshlrev_b32 v{t0}, 6, v{t0}\nv_lshl_add_u32 v{t0}, v{t1}, 4, v{t0}")
    e(f"v_mul_u32_u24 v{t1}, {S_T}, v{cc}\nv_add_u32 v{t0}, v{t0}, v{t1}\nv_add_u32 v{vSW}, {S_OFF}, v{t0}")
    e(f"v_and_b32 v{t1}, 8, v{i16}\nv_lshrrev_b32 v{t1}, 2, v{t1}\nv_xor_b32 v{t1}, v{t1}, v{G}")
    e(f"v_lshlrev_b32 v{t0}, 6, v{i16}\nv_lshl_add_u32 v{t0}, v{t1}, 4, v{t0}\nv_add_u32 v{vSR}, {S_OFF}, v{t0}")
    e(f"v_lshlrev_b32 v{CA}, 8, v{G}\nv_lshl_add_u32 v{CA}, v{i16}, 3, v{CA}\nv_add_u32 v{CA}, s{sRing}, v{CA}")
    e("s_waitcnt lgkmcnt(0)\ns_barrier")
    e("s_waitcnt vmcnt(0)")
    stamp(2)
    e(f"v_lshrrev_b32 v{CNT}, 16, v{TABV}\nv_and_b32 v{RB}, 0xffff, v{TABV}")
    e(f"v_mul_u32_u24 v{t0}, {EPW}, v{P}\nv_add_u32 v{RB}, v{RB}, v{t0}\nv_mul_u32_u24 v{RB}, 12, v{RB}")
    e(f"s_cmp_eq_u32 s{sMode}, 0\ns_cbranch_scc0 K2_slowwin")
    e(f"v_mov_b32 v{II}, v{SUB}\nv_mov_b32 v{HI}, v{CNT}")
    e("s_branch K2_winok")
    e("K2_slowwin:")
    e(f"v_lshlrev_b32 v{t0}, 2, v{P}\nv_add_u32 v{t0}, {PREF_OFF}, v{t0}\nds_read_b32 v{t0}, v{t0}")
    e("s_waitcnt lgkmcnt(0)")
    e(f"v_sub_u32 v{t0}, s{sLo}, v{t0}")
    e(f"v_add_u32 v{t1}, {CAP}, v{t0}")
    e(f"v_med3_i32 v{t0}, v{t0}, 0, v{CNT}\nv_med3_i32 v{HI}, v{t1}, 0, v{CNT}")
    e(f"v_add_u32 v{II}, v{t0}, v{SUB}")
    e("K2_winok:")
    e(f"s_mov_b32 s{sFirst}, 1")
    R=36
    e("K2_bin:")
    for r in range(5):
        e(f"v_add_u32 v{t0}, {5*r}, v{II}")
        e(f"v_cmp_lt_u32 vcc, v{t0}, v{HI}")
        e(f"v_mul_u32_u24 v{t0}, 12, v{t0}\nv_add_u32 v{t0}, v{t0}, v{RB}")
        e(f"s_mov_b64 s[{40+2*r}:{41+2*r}], vcc")
        e(f"v_mov_b32 v{t1}, {OOB}\nv_cndmask_b32 v{R+4*r+3}, v{t1}, v{t0}, vcc")
    e(f"s_mov_b32 s{sT0}, {REC_OFF}")
    for r in range(5):
        e(f"buffer_load_dwordx3 v[{R+4*r}:{R+4*r+2}], v{R+4*r+3}, s[{sWS}:{sWS+3}], s{sT0} offen")
    e(f"s_cmp_eq_u32 s{sFirst}, 0\ns_cbranch_scc1 K2_bin_w0")
    e(f"s_mov_b32 s{sFirst}, 0")
    e(f"s_cmp_ge_u32 s{sWave}, 8\ns_cbranch_scc1 K2_bin_w0")
    e(f"s_mov_b32 s{sWo}, s{sWb}")
    wload(AC,sWo)
    e("s_waitcnt vmcnt(4)\ns_branch K2_bin_go")
    e("K2_bin_w0:")
    e("s_waitcnt vmcnt(0)")
    e("K2_bin_go:")
    stamp(3)
    e(f"v_mov_b32 v{t1}, 1\ns_mov_b32 s{sT1}, {GC_OFF}")
    assert GC_OFF%64==0
    for r in range(5):
        lab=e.lab("K2_ba")
        e(f"s_mov_b64 exec, s[{40+2*r}:{41+2*r}]\ns_cbranch_execz {lab}")
        e(f"v_and_or_b32 v{t0}, v{R+4*r}, 60, s{sT1}")
        e(f"ds_add_rtn_u32 v{R+4*r+3}, v{t0}, v{t1}")
        e(f"{lab}:")
    e("s_mov_b64 exec, -1\ns_waitcnt lgkmcnt(0)")
    e(f"s_movk_i32 s{sT1}, {CAP}")
    for r in range(5):
        lab=e.lab("K2_bw")
        w0=R+4*r; rk=w0+3
        u=Z+10
        e(f"s_mov_b64 exec, s[{40+2*r}:{41+2*r}]\ns_cbranch_execz {lab}")
        e(f"v_cmp_gt_u32 vcc, s{sT1}, v{rk}\ns_and_b64 exec, exec, vcc")
        e(f"v_bfe_u32 v{t0}, v{w0}, 2, 4")
        e(f"v_and_b32 v{u}, 0xf0, v{rk}\nv_lshlrev_b32 v{t1}, 9, v{t0}\nv_lshl_add_u32 v{t1}, v{u}, 1, v{t1}")
        e(f"v_and_b32 v{u}, 7, v{rk}\nv_lshl_add_u32 v{t1}, v{u}, 2, v{t1}")
        e(f"v_bfe_u32 v{u}, v{rk}, 3, 1\nv_lshl_add_u32 v{t1}, v{u}, 1, v{t1}")
        e(f"v_mul_u32_u24 v{t0}, {RING}, v{t0}\nv_lshl_add_u32 v{t0}, v{rk}, 5, v{t0}")
        e(f"v_and_b32 v{rk}, 3, v{w0}\nv_lshl_add_u32 v{t0}, v{rk}, 3, v{t0}")
        e(f"v_lshrrev_b32 v{w0}, 10, v{w0}")
        e(f"v_add_u32 v{t1}, {IDX_OFF}, v{t1}\nds_write_b16 v{t1}, v{w0}")
        e(f"v_add_u32 v{t0}, {STG}, v{t0}")
        e(f"ds_write2_b32 v{t0}, v{w0+1}, v{w0+2} offset0:0 offset1:1")
        e(f"{lab}:")
    e("s_mov_b64 exec, -1")
    e(f"v_add_u32 v{II}, 25, v{II}\nv_cmp_lt_u32 vcc, v{II}, v{HI}")
    e("s_cbranch_vccnz K2_bin")
    e("s_waitcnt lgkmcnt(0)\ns_barrier")
    stamp(4)
    e(f"v_and_b32 v{t0}, 15, v{L}\nv_lshlrev_b32 v{t0}, 2, v{t0}\nv_add_u32 v{t0}, {GC_OFF}, v{t0}\nds_read_b32 v{t0}, v{t0}")
    for c in range(6):
        for p in range(2): e(f"ds_read_b32 v{vID+2*c+p}, v{IB} offset:{64*c+32*p}")
    e("s_waitcnt lgkmcnt(12)")
    e(f"v_cmp_lt_u32 vcc, {CAP}, v{t0}")
    e(f"v_readlane_b32 s{sNch}, v{t0}, s{sWave}")
    e("s_cbranch_vccnz K2_overflow")
    e("K2_nover:")
    for c in range(6):
        e(f"ds_read_b64_tr_b16 {vr(vCF+4*c,2)}, v{CA} offset:{STG+c*1024}")
        e(f"ds_read_b64_tr_b16 {vr(vCF+4*c+2,2)}, v{CA} offset:{STG+c*1024+128}")
    e(f"s_add_u32 s{sNch}, s{sNch}, 31\ns_lshr_b32 s{sNch}, s{sNch}, 5\ns_max_u32 s{sNch}, s{sNch}, 1")
    e(f"s_mov_b32 s{sS}, 0\ns_mov_b32 s{sOffC}, 0")
    e("s_waitcnt lgkmcnt(12)")
    for i in range(4): dma(0,i,sOffC)
    e("s_waitcnt lgkmcnt(0)")
    for c in (1,2):
        for i in range(4): dma(c,i,sOffC)
    stamp(5)
    e("K2_slice:")
    for n in (4,5,3,6,2): e(f"s_cmp_eq_u32 s{sNch}, {n}\ns_cbranch_scc1 K2_n{n}")
    for n in (1,2,3,6,5,4):
        e(f"K2_n{n}:")
        for c in range(n):
            issued=max(n,3) if c==0 else None
            last=min(max(n,3)-1, c+2)
            e(f"s_waitcnt vmcnt({4*(last-c)})")
            for ct in range(4):
                e(f"ds_read_b64_tr_b16 {vr(vXA+4*ct,2)}, v{vT+ct} offset:{(c%3)*4096}")
                e(f"ds_read_b64_tr_b16 {vr(vXA+4*ct+2,2)}, v{vT+ct} offset:{(c%3)*4096+512}")
            for ct in range(4):
                e(f"s_waitcnt lgkmcnt({6-2*ct})")
                C = "0" if c==0 else vr(vA1+4*ct,4)
                e(f"v_mfma_f32_16x16x32_bf16 {vr(vA1+4*ct,4)}, {vr(vXA+4*ct,4)}, {vr(vCF+4*c,4)}, {C}")
            if c+3<n:
                for i in range(4): dma(c+3,i,sOffC)
            if c==0: e("s_barrier")
        if n!=4: e("s_branch K2_gap")
    e("K2_gap:")
    stamp((f"s{sS}",8))
    e(f"s_and_b32 s{sT0}, s{sS}, 3")
    e(f"s_cmp_eq_u32 s{sT0}, 1\ns_cbranch_scc1 K2_gap_1")
    e(f"s_cmp_eq_u32 s{sT0}, 2\ns_cbranch_scc1 K2_gap_2")
    e(f"s_cmp_eq_u32 s{sS}, 3\ns_cbranch_scc1 K2_gap_3")
    e(f"s_cmp_eq_u32 s{sS}, 7\ns_cbranch_scc1 K2_gap_F")
    bufs=[vXA+4*k for k in range(4)]+[vA1+4*k for k in range(4)]
    for var in ('0','1','2','3','F'):
        q=3 if var=='F' else int(var)
        fin = var=='F'
        e(f"K2_gap_{var}:")
        if not fin:
            if q<3: e(f"s_add_u32 s{sOffN}, s{sOffC}, 256")
            else: e(f"s_mov_b32 s{sOffN}, 128")
        if q==0:
            lab=e.lab("K2_nw")
            e(f"s_cmp_ge_u32 s{sWave}, 8\ns_cbranch_scc1 {lab}")
            e(f"s_lshr_b32 s{sWo}, s{sS}, 2\ns_mul_i32 s{sWo}, s{sWo}, 81920\ns_add_u32 s{sWo}, s{sWo}, s{sWb}")
            wload(BDE,sWo)
            e(f"{lab}:")
        if q==1:
            lab=e.lab("K2_nw")
            e(f"s_cmp_ge_u32 s{sWave}, 8\ns_cbranch_scc1 {lab}")
            e(f"s_cmp_lg_u32 s{sS}, 1\ns_cbranch_scc1 {lab}")
            e(f"s_add_u32 s{sWo}, s{sWb}, 81920")
            wload(AC,sWo)
            e(f"{lab}:")
        defer=[] if fin else [(c,i) for c in range(3) for i in range(4)]
        pre=defer[:4*PRE]; post=defer[4*PRE:]
        for (c,i) in pre: dma(c,i,sOffN)
        e("s_nop 7" if not pre else "s_nop 1")
        for ks in range(2):
            for hh in range(2):
                a=vA1+4*(2*ks+hh)
                e(f"v_cvt_pk_bf16_f32 v{vXA+4*ks+2*hh}, v{a}, v{a+1}")
                e(f"v_cvt_pk_bf16_f32 v{vXA+4*ks+2*hh+1}, v{a+2}, v{a+3}")
        if q>0:
            tneg={3:1,1:2,2:3}[q]
            msk=(0x11111111<<tneg)&0xffffffff
            e(f"s_mov_b32 exec_lo, {hex(msk)}\ns_mov_b32 exec_hi, {hex(msk)}")
            for k in range(8): e(f"v_xor_b32 v{vXA+k}, 0x80008000, v{vXA+k}")
            e("s_mov_b64 exec, -1")
        e(f"ds_write_b128 v{vSW}, {vr(vXA,4)}")
        e(f"ds_write_b128 v{vSW}, {vr(vXA+4,4)} offset:{S_KS}")
        e("s_waitcnt lgkmcnt(0)\ns_barrier")
        stamp((f"s{sS}",16))
        e(f"s_cmp_ge_u32 s{sWave}, 8\ns_cbranch_scc1 K2_gw_{var}")
        if q==0: plan=[(0,0,0),(1,2,1),(2,2,2),(3,2,3)]
        else:
            k=q-1; plan=[(0,3,q),(q,1,0)]
            for j in range(3):
                if j!=k: plan.append((1+j,4,1+(3-j-k)))
        items=[(t,m,o,ks,mt) for (t,m,o) in plan for ks in range(2) for mt in range(3)]
        n=len(items); assert n==24
        def rd(i):
            t,m,o,ks,mt=items[i]
            e(f"ds_read_b128 {vr(bufs[i%8],4)}, v{vSR} offset:{t*S_T+ks*S_KS+mt*1024}")
        for i in range(7): rd(i)
        npost=len(post)
        pos=[int(round((j+0.5)*24/npost-1)) for j in range(npost)] if (npost and npost!=8) else (DPOS if npost else [])
        pj=0
        for i in range(n):
            t,m,o,ks,mt=items[i]
            e(f"s_waitcnt lgkmcnt({min(6,n-1-i)})")
            acc=vA2+(o*3+mt)*4
            e(f"v_mfma_f32_16x16x32_bf16 {vr(acc,4)}, {vr(vW+(m*2+ks)*4,4)}, {vr(bufs[i%8],4)}, {vr(acc,4)}")
            if i+7<n: rd(i+7)
            while pj<npost and pos[pj]<=i:
                dma(post[pj][0],post[pj][1],sOffN); pj+=1
        assert pj==npost
        e(f"s_branch K2_gn_{var}")
        e(f"K2_gw_{var}:")
        for (c,i) in post: dma(c,i,sOffN)
        e(f"K2_gn_{var}:")
        stamp((f"s{sS}",24))
        if not fin:
            e(f"s_mov_b32 s{sOffC}, s{sOffN}\ns_add_u32 s{sS}, s{sS}, 1\ns_branch K2_slice")
    e(f"s_cmp_eq_u32 s{sMode}, 0\ns_cbranch_scc1 K2_epi")
    e(f"s_add_u32 s{sLo}, s{sLo}, {CAP}\ns_cmp_ge_u32 s{sLo}, s{sTot}\ns_cbranch_scc1 K2_epi")
    e("s_waitcnt vmcnt(0)\ns_branch K2_round")
    e("K2_epi:")
    e(f"s_cmp_ge_u32 s{sWave}, 8\ns_cbranch_scc1 K2_fin")
    e(f"v_mbcnt_lo_u32_b32 v2, -1, 0\nv_mbcnt_hi_u32_b32 v2, -1, v2")
    e(f"v_and_b32 v3, 15, v2\nv_lshrrev_b32 v1, 4, v2\nv_lshlrev_b32 v1, 3, v1\nv_lshl_add_u32 v1, v3, 10, v1")
    e(f"v_mov_b32 v0, {OOB}\nv_cmp_gt_u32 vcc, 8, v3\ns_mul_i32 s{sT0}, s{sB}, {NPB*1024}\ns_lshl_b32 s{sT1}, s{sWave}, 5\ns_add_u32 s40, s{sT0}, s{sT1}")
    e(f"v_cndmask_b32 v0, v0, v1, vcc")
    e("s_add_u32 s41, s40, 16384\ns_add_u32 s42, s41, 16384")
    e("s_mov_b32 s43, 0xbfb8aa3b")
    for mt in range(3):
        a0=vA2+mt*4
        g=vXA
        for r in range(4): e(f"v_mul_f32 v{g+r}, s43, v{a0+r}")
        for r in range(4): e(f"v_exp_f32 v{g+r}, v{g+r}")
        e("s_nop 0")
        for r in range(4): e(f"v_add_f32 v{g+r}, 1.0, v{g+r}")
        for r in range(4): e(f"v_rcp_f32 v{g+r}, v{g+r}")
        pk=vA1+mt*8 if mt<2 else vCF
        e(f"v_cvt_pk_bf16_f32 v{pk}, v{a0}, v{a0+1}\nv_cvt_pk_bf16_f32 v{pk+1}, v{a0+2}, v{a0+3}")
        for o in range(1,4):
            a=vA2+(o*3+mt)*4
            for r in range(4): e(f"v_mul_f32 v{a+r}, v{a+r}, v{g+r}")
            e(f"v_cvt_pk_bf16_f32 v{pk+2*o}, v{a}, v{a+1}\nv_cvt_pk_bf16_f32 v{pk+2*o+1}, v{a+2}, v{a+3}")
        for o in range(4):
            e(f"buffer_store_dwordx2 {vr(pk+2*o,2)}, v{0 if mt==2 else 1}, s[{sOUT}:{sOUT+3}], s{40+mt} offen offset:{o*256}")
    e("K2_fin:")
    stamp(6)
    if ts:
        e("s_waitcnt vmcnt(0)")
        stamp(7)
        e(f"v_mbcnt_lo_u32_b32 v2, -1, 0\nv_mbcnt_hi_u32_b32 v2, -1, v2\nv_lshlrev_b32 v2, 2, v2")
        e(f"s_mul_i32 s40, s{sB}, 10\ns_add_u32 s40, s40, s{sWave}\ns_lshl_b32 s40, s40, 8\ns_add_u32 s40, s40, {5<<20}")
        e(f"s_mov_b32 s{sWS+2}, {8<<20}\nbuffer_store_dword v{NV}, v2, s[{sWS}:{sWS+3}], s40 offen")
    e("s_waitcnt vmcnt(0) lgkmcnt(0)\ns_endpgm")
    e("K2_overflow:")
    e(f"s_cmp_lg_u32 s{sMode}, 0\ns_cbranch_scc1 K2_nover")
    e(f"s_mov_b32 s{sMode}, 1\ns_mov_b32 s{sLo}, 0")
    e(f"v_lshlrev_b32 v{t0}, 2, v{P}\nv_add_u32 v{t0}, {PREF_OFF}, v{t0}")
    e(f"ds_write_b32 v{t0}, v{CNT}")
    e("s_waitcnt lgkmcnt(0)\ns_barrier")
    e(f"v_mov_b32 v{RB}, 0\nv_mov_b32 v{HI}, 0\ns_mov_b32 s{sT0}, 0")
    e("K2_pl:")
    e(f"s_lshl_b32 s{sT1}, s{sT0}, 2\ns_add_u32 s{sT1}, s{sT1}, {PREF_OFF}\nv_mov_b32 v{t1}, s{sT1}\nds_read_b32 v{t1}, v{t1}")
    e(f"v_cmp_lt_u32 vcc, s{sT0}, v{P}")
    e("s_waitcnt lgkmcnt(0)")
    e(f"v_add_u32 v{HI}, v{HI}, v{t1}\nv_cndmask_b32 v{t1}, 0, v{t1}, vcc\nv_add_u32 v{RB}, v{RB}, v{t1}")
    e(f"s_add_u32 s{sT0}, s{sT0}, 1\ns_cmp_lt_u32 s{sT0}, 128\ns_cbranch_scc1 K2_pl")
    e("s_barrier")
    e(f"ds_write_b32 v{t0}, v{RB}")
    e(f"v_readfirstlane_b32 s{sTot}, v{HI}")
    e("s_waitcnt vmcnt(0) lgkmcnt(0)\ns_barrier\ns_branch K2_round")
    e("K2_done:\ns_endpgm")
    return e.text()

HEADER=open("standalone__tensor_product_equiv_equiformer__graph.s.ref").read().split("; Override launch geometry")[0]

def desc(name,nv,ns):
    return f""".p2align 6
.amdhsa_kernel {name}
  .amdhsa_next_free_vgpr {nv}
  .amdhsa_next_free_sgpr {ns}
  .amdhsa_accum_offset {(nv+3)//4*4}
  .amdhsa_group_segment_fixed_size 0
  .amdhsa_kernarg_size 96
  .amdhsa_user_sgpr_count 2
  .amdhsa_user_sgpr_kernarg_segment_ptr 1
  .amdhsa_system_sgpr_workgroup_id_x 1
.end_amdhsa_kernel"""

def build(opt={}):
    s=HEADER
    s+=f"; Two launches: (1) bin edges by destination + fold weights + prefetch, (2) gather/aggregate + GEMM + gate.\n"
    K1G=opt.get('k1g',144 if opt.get('pf',0)==0 else 256)
    L1=f"; @launch kernel={K1} grid=({K1G},1,1) block=(640,1,1) lds={K1_LDS}\n"
    L2=f"; @launch kernel={K2} grid=({NB},1,1) block=(640,1,1) lds={K2_LDS}\n"
    L0=f"; @launch kernel=eqf_nop_kernel grid=(1,1,1) block=(64,1,1) lds=0\n"
    seq=opt.get('seq','12')
    for ch in str(seq): s+={'1':L1,'2':L2,'0':L0}[ch]
    s+='.amdgcn_target "amdgcn-amd-amdhsa--gfx950"\n.text\n'
    s+=gen_k1(opt)+"\n"+gen_k2(opt)+"\n"
    if '0' in str(seq): s+=".globl eqf_nop_kernel\n.p2align 8\n.type eqf_nop_kernel,@function\neqf_nop_kernel:\n    s_endpgm\n"
    s+='.section .rodata,"a"\n'+desc(K1,76 if opt.get("ts") else 72,64)+"\n"+desc(K2,NV+(1 if opt.get("ts") else 0),64)+"\n"
    if '0' in str(seq): s+=desc("eqf_nop_kernel",8,16)+"\n"
    for m in re.finditer(r"buffer_\w+ .*offset:(\d+)", s):
        assert int(m.group(1))<4096, m.group(0)
    for m in re.finditer(r"ds_\w+ .*offset:(\d+)", s):
        assert int(m.group(1))<65536, m.group(0)
    return s

if __name__=="__main__":
    out=sys.argv[1] if len(sys.argv)>1 else "standalone__tensor_product_equiv_equiformer__graph.s"
    opt={}
    for a in sys.argv[2:]:
        k,v=a.split("="); opt[k]=eval(v)
    open(out,"w").write(build(opt))
    print("wrote",out)
```

```python
import re, sys

N=10000; E=320000
NPROD=128; EPW=2500
NB=250; NPB=40
TAB_OFF=0; WF_OFF=131072; REC_OFF=294912
WS_USED=REC_OFF+NPROD*EPW*12
XBYTES=N*1024
OOB=0x40000000
CAP=192
RING=12288
S_OFF=10*RING
S_T=5136; S_KS=2560
IDX_OFF=S_OFF+4*S_T
GC_OFF=IDX_OFF+10*768
PREF_OFF=GC_OFF+64
K2_LDS=PREF_OFF+512
K1_CNT=30016; K1_START=31040; K1_LDS=32064

K1="eqf_bin_kernel"
K2="standalone__tensor_product_equiv_equiformer__graph_kernel"

class A:
    def __init__(s): s.L=[]; s.n=0
    def __call__(s, txt):
        for ln in txt.split("\n"):
            ln=ln.strip()
            if ln: s.L.append(ln)
    def lab(s, base):
        s.n+=1; return f"{base}_{s.n}"
    def text(s):
        out=[]
        for l in s.L:
            out.append(l if l.endswith(":") or l.startswith(".") else "    "+l)
        return "\n".join(out)

def vr(a,n): return f"v[{a}:{a+n-1}]"
def sr(a,n): return f"s[{a}:{a+n-1}]"

def srd(e, d, plo, nbytes):
    e(f"s_mov_b32 s{d}, s{plo}\ns_mov_b32 s{d+1}, s{plo+1}\ns_mov_b32 s{d+2}, {nbytes}\ns_mov_b32 s{d+3}, 0x20000")

def gen_k1(opt):
    e=A()
    ts=opt.get('ts')
    TV=72
    def stamp(k):
        if not ts: return
        e(f"s_memrealtime s[60:61]\ns_waitcnt lgkmcnt(0)\nv_writelane_b32 v{TV}, s60, {k}")
    def dump():
        if not ts: return
        e("s_waitcnt vmcnt(0)")
        stamp(7)
        e(f"v_mbcnt_lo_u32_b32 v2, -1, 0\nv_mbcnt_hi_u32_b32 v2, -1, v2\nv_lshlrev_b32 v2, 2, v2")
        e(f"v_lshrrev_b32 v1, 6, v0\ns_nop 1\nv_readfirstlane_b32 s58, v1")
        e(f"s_mul_i32 s59, s2, 10\ns_add_u32 s59, s59, s58\ns_lshl_b32 s59, s59, 8\ns_add_u32 s59, s59, {6<<20}")
        e(f"s_mov_b32 s40, s20\ns_mov_b32 s41, s21\ns_mov_b32 s42, {8<<20}\ns_mov_b32 s43, 0x20000")
        e(f"buffer_store_dword v{TV}, v2, s[40:43], s59 offen")
    e(f".globl {K1}\n.p2align 8\n.type {K1},@function\n{K1}:")
    K1G=opt.get('k1g',144 if opt.get('pf',0)==0 else 256)
    e(f"s_cmp_ge_u32 s2, {K1G}\ns_cbranch_scc1 K1_done")
    if ts: e(f"v_mov_b32 v{TV}, 0")
    stamp(0)
    e("s_load_dwordx4 s[4:7], s[0:1], 0")
    e("s_load_dwordx4 s[8:11], s[0:1], 16")
    e("s_load_dwordx4 s[12:15], s[0:1], 32")
    e("s_load_dwordx4 s[16:19], s[0:1], 48")
    e("s_load_dwordx2 s[20:21], s[0:1], 88")
    e("s_cmp_ge_u32 s2, 128\ns_cbranch_scc1 K1_helper")
    e("v_lshlrev_b32 v1, 2, v0\nv_mov_b32 v2, 0")
    e("v_cmp_gt_u32 vcc, 0x100, v0\ns_and_saveexec_b64 s[22:23], vcc")
    e(f"ds_write_b32 v1, v2 offset:{K1_CNT}")
    e("s_mov_b64 exec, s[22:23]")
    e("v_lshlrev_b32 v1, 4, v0")
    e("v_mul_u32_u24 v2, 24, v0")
    e("v_lshlrev_b32 v3, 3, v0")
    e("s_mul_i32 s44, s2, 10000\ns_mul_i32 s45, s2, 15000\ns_mul_i32 s46, s2, 5000")
    e("v_cmp_gt_u32 vcc, 0x271, v0")
    e("s_waitcnt lgkmcnt(0)")
    stamp(1)
    srd(e,24,10,E*4)
    srd(e,28,12,E*4)
    srd(e,32,6,E*6)
    srd(e,36,8,E*2)
    srd(e,40,20,WS_USED)
    if opt.get('k1nost'): e("s_mov_b32 s42, 0")
    e("s_and_saveexec_b64 s[48:49], vcc")
    e("s_mov_b64 s[50:51], exec")
    e("buffer_load_dwordx4 v[8:11], v1, s[28:31], s44 offen")
    e("buffer_load_dwordx4 v[4:7], v1, s[24:27], s44 offen")
    e("buffer_load_dwordx2 v[18:19], v3, s[36:39], s46 offen")
    e("buffer_load_dwordx4 v[12:15], v2, s[32:35], s45 offen")
    e("buffer_load_dwordx2 v[16:17], v2, s[32:35], s45 offen offset:16")
    e("s_barrier")
    e("v_mov_b32 v3, 1")
    e("s_mov_b32 s47, 52429")
    e("s_waitcnt vmcnt(4)")
    stamp(2)
    for r in range(4):
        e(f"v_mul_u32_u24 v{20+r}, s47, v{8+r}")
        e(f"v_lshrrev_b32 v{20+r}, 21, v{20+r}")
        e(f"v_mul_u32_u24 v{24+r}, 40, v{20+r}")
        e(f"v_sub_u32 v{24+r}, v{8+r}, v{24+r}")
        e(f"v_lshlrev_b32 v{20+r}, 2, v{20+r}")
        e(f"ds_add_rtn_u32 v{28+r}, v{20+r}, v3 offset:{K1_CNT}")
    e("s_waitcnt vmcnt(0)")
    stamp(3)
    ylo=lambda d,s: e(f"v_lshlrev_b32 v{d}, 16, v{s}")
    yhi=lambda d,s: e(f"v_and_b32 v{d}, 0xffff0000, v{s}")
    ys=[]
    for k in range(12): ys.append((12+k//2, k&1))
    for r in range(4):
        e(f"v_lshl_or_b32 v{32+4*r}, v{4+r}, 10, v{24+r}")
        (yhi if r&1 else ylo)(48, 18+r//2)
        for j in range(3):
            reg,hi=ys[3*r+j]
            (yhi if hi else ylo)(49+j, reg)
        for j in range(3):
            e(f"v_mul_f32 v{49+j}, v48, v{49+j}")
        e(f"v_cvt_pk_bf16_f32 v{33+4*r}, v48, v49")
        e(f"v_cvt_pk_bf16_f32 v{34+4*r}, v50, v51")
    e("s_mov_b64 exec, s[48:49]")
    e("s_waitcnt lgkmcnt(0)\ns_barrier")
    stamp(4)
    e("v_mbcnt_lo_u32_b32 v52, -1, 0\nv_mbcnt_hi_u32_b32 v52, -1, v52")
    e("v_lshlrev_b32 v53, 4, v52")
    e(f"ds_read_b128 v[56:59], v53 offset:{K1_CNT}")
    e("s_waitcnt lgkmcnt(0)")
    e("v_add_u32 v61, v56, v57\nv_add_u32 v62, v61, v58\nv_add_u32 v63, v62, v59")
    e("v_mov_b32 v54, v63")
    for sh in (1,2,4,8):
        e("s_nop 1")
        e(f"v_add_u32_dpp v54, v54, v54 row_shr:{sh} row_mask:0xf bank_mask:0xf bound_ctrl:0")
    e("s_nop 1\nv_add_u32_dpp v54, v54, v54 row_bcast:15 row_mask:0xa bank_mask:0xf")
    e("s_nop 1\nv_add_u32_dpp v54, v54, v54 row_bcast:31 row_mask:0xc bank_mask:0xf")
    e("v_sub_u32 v64, v54, v63")
    e("v_add_u32 v65, v64, v56\nv_add_u32 v66, v64, v61\nv_add_u32 v67, v64, v62")
    e(f"ds_write_b128 v53, v[64:67] offset:{K1_START}")
    e("v_readfirstlane_b32 s52, v0")
    for r in range(4):
        e(f"v_lshl_or_b32 v{68+r}, v{56+r}, 16, v{64+r}")
    e("s_cmp_lg_u32 s52, 0\ns_cbranch_scc1 K1_notab")
    e(f"s_lshl_b32 s53, s2, 10")
    ST=opt.get('st','')
    e(f"buffer_store_dwordx4 v[68:71], v53, s[40:43], s53 offen{ST}")
    e("K1_notab:")
    e("s_mov_b64 exec, s[50:51]")
    e("s_waitcnt lgkmcnt(0)")
    for r in range(4):
        e(f"ds_read_b32 v{56+r}, v{20+r} offset:{K1_START}")
    e("s_waitcnt lgkmcnt(0)")
    for r in range(4):
        e(f"v_add_u32 v{56+r}, v{56+r}, v{28+r}")
        e(f"v_mul_u32_u24 v{56+r}, 12, v{56+r}")
        e(f"ds_write2_b32 v{56+r}, v{32+4*r}, v{33+4*r} offset0:0 offset1:1")
        e(f"ds_write_b32 v{56+r}, v{34+4*r} offset:8")
    e("s_mov_b64 exec, s[48:49]")
    e("s_waitcnt lgkmcnt(0)\ns_barrier")
    stamp(5)
    e("v_lshlrev_b32 v1, 4, v0")
    e(f"s_mul_i32 s53, s2, {EPW*12}\ns_add_u32 s53, s53, {REC_OFF}")
    e("ds_read_b128 v[4:7], v1\nds_read_b128 v[8:11], v1 offset:10240\nds_read_b128 v[12:15], v1 offset:20480")
    e("v_add_u32 v2, 10240, v1\nv_add_u32 v3, 20480, v1")
    e(f"v_cmp_gt_u32 vcc, {1875-1280}, v0")
    e(f"s_waitcnt lgkmcnt(2)\nbuffer_store_dwordx4 v[4:7], v1, s[40:43], s53 offen{ST}")
    e(f"s_waitcnt lgkmcnt(1)\nbuffer_store_dwordx4 v[8:11], v2, s[40:43], s53 offen{ST}")
    e("s_and_saveexec_b64 s[22:23], vcc")
    e("s_cbranch_execz K1_pend")
    e(f"s_waitcnt lgkmcnt(0)\nbuffer_store_dwordx4 v[12:15], v3, s[40:43], s53 offen{ST}")
    e("K1_pend:")
    if ts:
        e("s_mov_b64 exec, -1")
        stamp(6)
        dump()
    e("s_waitcnt vmcnt(0) lgkmcnt(0)\ns_endpgm")
    e("K1_helper:")
    e("s_sub_u32 s22, s2, 128")
    e("v_lshrrev_b32 v1, 6, v0\nv_and_b32 v2, 63, v0")
    e("s_mul_i32 s23, s22, 640\nv_add_u32 v3, s23, v0\nv_lshlrev_b32 v3, 7, v3")
    e("v_readfirstlane_b32 s44, v1")
    e("s_lshr_b32 s23, s22, 3\ns_mul_i32 s23, s23, 625\nv_add_u32 v4, s23, v0\nv_lshlrev_b32 v4, 10, v4")
    e("s_waitcnt lgkmcnt(0)")
    stamp(1)
    srd(e,24,4,XBYTES)
    e("s_cmp_ge_u32 s22, 16\ns_cbranch_scc1 K1_pf")
    if opt.get('pfc'):
        e("s_getpc_b64 s[56:57]\nK1_pcb:")
        e(f"s_add_u32 s56, s56, {K2}-K1_pcb\ns_addc_u32 s57, s57, 0")
        e("v_lshlrev_b32 v60, 7, v2\nv_mov_b32 v61, s57\nv_add_co_u32 v60, vcc, s56, v60\nv_addc_co_u32 v61, vcc, 0, v61, vcc")
        e("global_load_dword v62, v[60:61], off")
        e("v_add_co_u32 v60, vcc, 0x2000, v60\nv_addc_co_u32 v61, vcc, 0, v61, vcc")
        e("v_cmp_gt_u32 vcc, 32, v2\ns_and_saveexec_b64 s[58:59], vcc\nglobal_load_dword v63, v[60:61], off\ns_mov_b64 exec, s[58:59]")
    srd(e,28,14,1280)
    srd(e,32,16,256*256)
    srd(e,36,18,384*256)
    srd(e,40,20,WS_USED)
    e("s_mul_i32 s45, s22, 10\ns_add_u32 s45, s45, s44")
    e("s_and_b32 s46, s45, 1")
    e("s_lshr_b32 s47, s45, 1")
    e("s_mul_i32 s48, s47, 52429\ns_lshr_b32 s48, s48, 18")
    e("s_mul_i32 s49, s48, 5\ns_sub_u32 s49, s47, s49")
    e("s_and_b32 s50, s48, 7\ns_lshr_b32 s51, s48, 3")
    e("s_lshl_b32 s52, s51, 6\ns_lshl_b32 s53, s46, 5\ns_add_u32 s52, s52, s53")
    e("v_lshrrev_b32 v5, 4, v2\nv_and_b32 v6, 15, v2")
    e("v_lshlrev_b32 v7, 10, v5\nv_lshl_add_u32 v7, v6, 1, v7")
    e("v_lshlrev_b32 v8, 3, v5")
    e("s_lshl_b32 s53, s49, 7\ns_add_u32 s53, s53, s52\ns_lshl_b32 s53, s53, 1")
    e("buffer_load_dwordx2 v[10:11], v8, s[28:31], s53 offen")
    e("buffer_load_dwordx2 v[12:13], v8, s[28:31], s53 offen offset:32")
    e("s_cmp_ge_u32 s49, 2\ns_cbranch_scc1 K1_w1")
    for (lab,sub,R) in (("",0,32),("K1_w1:",2,36)):
        if lab: e(lab)
        e(f"s_sub_u32 s54, s49, {sub}\ns_lshl_b32 s54, s54, 7\ns_add_u32 s54, s54, s52\ns_lshl_b32 s54, s54, 8")
        e("s_lshl_b32 s55, s50, 5\ns_add_u32 s54, s54, s55\ns_add_u32 s55, s54, 4096")
        for j in range(4): e(f"buffer_load_ushort v{16+j}, v7, s[{R}:{R+3}], s54 offen offset:{j*256}")
        for j in range(4): e(f"buffer_load_ushort v{20+j}, v7, s[{R}:{R+3}], s55 offen offset:{j*256}")
        if not lab: e("s_branch K1_wj")
    e("K1_wj:")
    PF=opt.get('pf',0)
    def pfl():
        if PF>=1: e("buffer_load_dword v30, v3, s[24:27], 0 offen")
        if PF>=2: e("buffer_load_dword v31, v3, s[24:27], 0 offen offset:64")
        if PF>=1: e("buffer_load_dword v32, v4, s[24:27], 0 offen")
        if PF>=2: e("buffer_load_dword v33, v4, s[24:27], 0 offen offset:64")
    pfl()
    npf=2*PF
    e(f"s_waitcnt vmcnt({npf})")
    for j in range(8):
        src=10+j//2
        if j&1: e(f"v_and_b32 v24, 0xffff0000, v{src}")
        else:   e(f"v_lshlrev_b32 v24, 16, v{src}")
        e(f"v_lshlrev_b32 v{16+j}, 16, v{16+j}")
        e(f"v_mul_f32 v{16+j}, v24, v{16+j}")
    for k in range(4): e(f"v_cvt_pk_bf16_f32 v{40+k}, v{16+2*k}, v{17+2*k}")
    e(f"s_lshl_b32 s54, s45, 10\ns_add_u32 s54, s54, {WF_OFF}")
    e("v_lshlrev_b32 v9, 4, v2")
    e(f"buffer_store_dwordx4 v[40:43], v9, s[40:43], s54 offen{ST}")
    dump()
    e("s_waitcnt vmcnt(0)\ns_endpgm")
    e("K1_pf:")
    pfl()
    e("s_waitcnt vmcnt(0)")
    dump()
    e("K1_done:\ns_endpgm")
    return e.text()

vAd=0; vP=2; vT=4; vID=8
vXA=20; vA1=36; vCF=52; vW=76; vA2=116; vSW=164; vSR=165; NV=166
sXR=8; sWS=12; sOUT=16
sWave=20; sNch=21; sRing=22; sOffC=24; sOffN=25; sS=28; sWb=29
sLo=34; sMode=35; sTot=36; sT0=37; sT1=38; sFirst=39
sK1024=50; sB=52; sWo=53
IDS=512
STG=6144

def gen_k2(opt):
    e=A()
    ts=opt.get('ts')
    DPOS=opt.get('dpos',[1,4,7,10,13,16,19,22])
    PRE=opt.get('pre',1)
    def stamp(k):
        if not ts: return
        e(f"s_memrealtime s[56:57]\ns_waitcnt lgkmcnt(0)")
        if isinstance(k,int): e(f"v_writelane_b32 v{NV}, s56, {k}")
        else:
            e(f"s_add_u32 m0, {k[0]}, {k[1]}\nv_writelane_b32 v{NV}, s56, m0")
    adn=[0]
    def dma(c,i,soff):
        ad=vAd+(adn[0]&1); adn[0]+=1
        e(f"s_add_u32 m0, s{sRing}, {(c%3)*4096+i*1024}")
        e(f"v_mad_u32_u16 v{ad}, v{vID+2*c+(i>>1)}, s{sK1024}, v{vP+(i&1)} op_sel:[{i&1},0,0,0]")
        e(f"buffer_load_dwordx4 v{ad}, s[{sXR}:{sXR+3}], s{soff} offen lds")
    def wload(ks_, hexpr):
        e(f"v_mbcnt_lo_u32_b32 v{vAd+1}, -1, 0\nv_mbcnt_hi_u32_b32 v{vAd+1}, -1, v{vAd+1}\nv_lshlrev_b32 v{vAd+1}, 4, v{vAd+1}")
        cur=0
        for k in ks_:
            while cur<k//4:
                e(f"s_add_u32 s{hexpr}, s{hexpr}, 4096"); cur+=1
            e(f"buffer_load_dwordx4 {vr(vW+4*k,4)}, v{vAd+1}, s[{sWS}:{sWS+3}], s{hexpr} offen offset:{(k%4)*1024}")
    AC=[0,1,4,5]; BDE=[2,3,6,7,8,9]
    e(f".globl {K2}\n.p2align 8\n.type {K2},@function\n{K2}:")
    e(f"s_cmp_ge_u32 s2, {NB}\ns_cbranch_scc1 K2_done")
    if ts: e(f"v_mov_b32 v{NV}, 0")
    stamp(0)
    if opt.get('k2exit'):
        e(f"s_load_dwordx2 s[{sWS}:{sWS+1}], s[0:1], 88\nv_lshrrev_b32 v1, 6, v0\ns_mov_b32 s{sB}, s2\ns_nop 1\nv_readfirstlane_b32 s{sWave}, v1\ns_mov_b32 s{sWS+3}, 0x20000\ns_waitcnt lgkmcnt(0)\ns_branch K2_fin")
    e(f"s_load_dwordx2 s[{sXR}:{sXR+1}], s[0:1], 0")
    e(f"s_load_dwordx2 s[{sWS}:{sWS+1}], s[0:1], 88")
    e(f"s_load_dwordx2 s[{sOUT}:{sOUT+1}], s[0:1], 72")
    e("v_lshrrev_b32 v1, 6, v0")
    e(f"s_mov_b32 s{sB}, s2")
    e(f"v_readfirstlane_b32 s{sWave}, v1")
    e(f"s_mov_b32 s{sK1024}, 1024")
    e(f"s_mov_b32 s{sMode}, 0\ns_mov_b32 s{sLo}, 0\ns_mov_b32 s{sTot}, 0")
    e(f"s_mov_b32 s{sXR+2}, {XBYTES}\ns_mov_b32 s{sXR+3}, 0x20000\ns_mov_b32 s{sWS+2}, {WS_USED}\ns_mov_b32 s{sWS+3}, 0x20000")
    e(f"s_mov_b32 s{sOUT+2}, {XBYTES}\ns_mov_b32 s{sOUT+3}, 0x20000")
    for r in range(48): e(f"v_mov_b32 v{vA2+r}, 0")
    e(f"s_mul_i32 s{sRing}, s{sWave}, {RING}")
    e(f"s_mul_i32 s{sWb}, s{sWave}, 10240\ns_add_u32 s{sWb}, s{sWb}, {WF_OFF}")
    e("s_waitcnt lgkmcnt(0)")
    stamp(1)
    e("K2_round:")
    L,TID,P,SUB,TABV,RB,II,HI,CNT,t0,t1,CA,i16,G,r_,cc=range(100,116)
    e(f"v_mbcnt_lo_u32_b32 v{L}, -1, 0\nv_mbcnt_hi_u32_b32 v{L}, -1, v{L}")
    e(f"s_lshl_b32 s{sT0}, s{sWave}, 6\nv_add_u32 v{TID}, s{sT0}, v{L}")
    e(f"s_mov_b32 s{sT1}, 52429\nv_mul_u32_u24 v{P}, s{sT1}, v{TID}\nv_lshrrev_b32 v{P}, 18, v{P}")
    e(f"v_lshlrev_b32 v{t0}, 10, v{P}\ns_lshl_b32 s{sT0}, s{sB}, 2")
    e(f"buffer_load_dword v{TABV}, v{t0}, s[{sWS}:{sWS+3}], s{sT0} offen")
    e(f"v_mul_u32_u24 v{SUB}, 5, v{P}\nv_sub_u32 v{SUB}, v{TID}, v{SUB}")
    Z=vXA
    for r in range(4): e(f"v_mov_b32 v{Z+r}, 0")
    e(f"v_lshlrev_b32 v{t1}, 4, v{L}\nv_add_u32 v{t1}, s{sRing}, v{t1}")
    for k in range(6): e(f"ds_write_b128 v{t1}, {vr(Z,4)} offset:{STG+k*1024}")
    e(f"s_mul_i32 s{sT0}, s{sWave}, {IDS}\ns_add_u32 s{sT0}, s{sT0}, {IDX_OFF}")
    e(f"v_lshlrev_b32 v{Z+4}, 2, v{L}\nv_add_u32 v{Z+4}, s{sT0}, v{Z+4}\nv_mov_b32 v{Z+5}, -1")
    for k in range(2): e(f"ds_write_b32 v{Z+4}, v{Z+5} offset:{k*256}")
    e(f"v_and_b32 v{Z+6}, 15, v{L}\nv_lshlrev_b32 v{Z+6}, 2, v{Z+6}\nv_add_u32 v{Z+6}, {GC_OFF}, v{Z+6}")
    e(f"ds_write_b32 v{Z+6}, v{Z}")
    e(f"v_and_b32 v{i16}, 15, v{L}\nv_lshrrev_b32 v{G}, 4, v{L}\nv_lshrrev_b32 v{r_}, 2, v{i16}\nv_and_b32 v{cc}, 3, v{L}")
    e(f"v_lshl_add_u32 v{t0}, v{G}, 3, v{r_}")
    e(f"v_lshlrev_b32 v{t0}, 7, v{t0}\nv_lshl_add_u32 v{t0}, v{cc}, 3, v{t0}\nv_add_u32 v{t0}, s{sRing}, v{t0}")
    e(f"v_lshrrev_b32 v{t1}, 1, v{r_}\nv_and_b32 v{Z+7}, 1, v{G}\nv_lshl_add_u32 v{t1}, v{Z+7}, 1, v{t1}")
    e(f"v_lshl_add_u32 v{vT}, v{t1}, 5, v{t0}")
    for ct in range(1,4): e(f"v_xor_b32 v{vT+ct}, {ct*32}, v{vT}")
    IB=Z+8
    e(f"v_lshrrev_b32 v{t0}, 3, v{L}\nv_lshlrev_b32 v{t0}, 2, v{t0}\nv_add_u32 v{IB}, s{sT0}, v{t0}")
    e(f"v_and_b32 v{t0}, 7, v{L}\nv_and_b32 v{t1}, 1, v{G}\nv_lshlrev_b32 v{t1}, 1, v{t1}\nv_xor_b32 v{t0}, v{t0}, v{t1}")
    e(f"v_lshlrev_b32 v{vP}, 4, v{t0}\nv_xor_b32 v{vP+1}, 64, v{vP}")
    e(f"s_lshl_b32 s{sT1}, s{sWave}, 2\nv_add_u32 v{t0}, s{sT1}, v{r_}")
    e(f"v_and_b32 v{t1}, 8, v{t0}\nv_lshrrev_b32 v{t1}, 2, v{t1}\nv_xor_b32 v{t1}, v{t1}, v{G}")
    e(f"v_lshlrev_b32 v{t0}, 6, v{t0}\nv_lshl_add_u32 v{t0}, v{t1}, 4, v{t0}")
    e(f"v_mul_u32_u24 v{t1}, {S_T}, v{cc}\nv_add_u32 v{t0}, v{t0}, v{t1}\nv_add_u32 v{vSW}, {S_OFF}, v{t0}")
    e(f"v_and_b32 v{t1}, 8, v{i16}\nv_lshrrev_b32 v{t1}, 2, v{t1}\nv_xor_b32 v{t1}, v{t1}, v{G}")
    e(f"v_lshlrev_b32 v{t0}, 6, v{i16}\nv_lshl_add_u32 v{t0}, v{t1}, 4, v{t0}\nv_add_u32 v{vSR}, {S_OFF}, v{t0}")
    e(f"v_lshlrev_b32 v{CA}, 8, v{G}\nv_lshl_add_u32 v{CA}, v{i16}, 3, v{CA}\nv_add_u32 v{CA}, s{sRing}, v{CA}")
    e("s_waitcnt lgkmcnt(0)\ns_barrier")
    e("s_waitcnt vmcnt(0)")
    stamp(2)
    e(f"v_lshrrev_b32 v{CNT}, 16, v{TABV}\nv_and_b32 v{RB}, 0xffff, v{TABV}")
    e(f"v_mul_u32_u24 v{t0}, {EPW}, v{P}\nv_add_u32 v{RB}, v{RB}, v{t0}\nv_mul_u32_u24 v{RB}, 12, v{RB}")
    e(f"s_cmp_eq_u32 s{sMode}, 0\ns_cbranch_scc0 K2_slowwin")
    e(f"v_mov_b32 v{II}, v{SUB}\nv_mov_b32 v{HI}, v{CNT}")
    e("s_branch K2_winok")
    e("K2_slowwin:")
    e(f"v_lshlrev_b32 v{t0}, 2, v{P}\nv_add_u32 v{t0}, {PREF_OFF}, v{t0}\nds_read_b32 v{t0}, v{t0}")
    e("s_waitcnt lgkmcnt(0)")
    e(f"v_sub_u32 v{t0}, s{sLo}, v{t0}")
    e(f"v_add_u32 v{t1}, {CAP}, v{t0}")
    e(f"v_med3_i32 v{t0}, v{t0}, 0, v{CNT}\nv_med3_i32 v{HI}, v{t1}, 0, v{CNT}")
    e(f"v_add_u32 v{II}, v{t0}, v{SUB}")
    e("K2_winok:")
    e(f"s_mov_b32 s{sFirst}, 1")
    R=36
    e("K2_bin:")
    for r in range(5):
        e(f"v_add_u32 v{t0}, {5*r}, v{II}")
        e(f"v_cmp_lt_u32 vcc, v{t0}, v{HI}")
        e(f"v_mul_u32_u24 v{t0}, 12, v{t0}\nv_add_u32 v{t0}, v{t0}, v{RB}")
        e(f"s_mov_b64 s[{40+2*r}:{41+2*r}], vcc")
        e(f"v_mov_b32 v{t1}, {OOB}\nv_cndmask_b32 v{R+4*r+3}, v{t1}, v{t0}, vcc")
    e(f"s_mov_b32 s{sT0}, {REC_OFF}")
    for r in range(5):
        e(f"buffer_load_dwordx3 v[{R+4*r}:{R+4*r+2}], v{R+4*r+3}, s[{sWS}:{sWS+3}], s{sT0} offen")
    e(f"s_cmp_eq_u32 s{sFirst}, 0\ns_cbranch_scc1 K2_bin_w0")
    e(f"s_mov_b32 s{sFirst}, 0")
    e(f"s_cmp_ge_u32 s{sWave}, 8\ns_cbranch_scc1 K2_bin_w0")
    e(f"s_mov_b32 s{sWo}, s{sWb}")
    wload(AC,sWo)
    e("s_waitcnt vmcnt(4)\ns_branch K2_bin_go")
    e("K2_bin_w0:")
    e("s_waitcnt vmcnt(0)")
    e("K2_bin_go:")
    stamp(3)
    e(f"v_mov_b32 v{t1}, 1\ns_mov_b32 s{sT1}, {GC_OFF}")
    assert GC_OFF%64==0
    for r in range(5):
        lab=e.lab("K2_ba")
        e(f"s_mov_b64 exec, s[{40+2*r}:{41+2*r}]\ns_cbranch_execz {lab}")
        e(f"v_and_or_b32 v{t0}, v{R+4*r}, 60, s{sT1}")
        e(f"ds_add_rtn_u32 v{R+4*r+3}, v{t0}, v{t1}")
        e(f"{lab}:")
    e("s_mov_b64 exec, -1\ns_waitcnt lgkmcnt(0)")
    e(f"s_movk_i32 s{sT1}, {CAP}")
    for r in range(5):
        lab=e.lab("K2_bw")
        w0=R+4*r; rk=w0+3
        u=Z+10
        e(f"s_mov_b64 exec, s[{40+2*r}:{41+2*r}]\ns_cbranch_execz {lab}")
        e(f"v_cmp_gt_u32 vcc, s{sT1}, v{rk}\ns_and_b64 exec, exec, vcc")
        e(f"v_bfe_u32 v{t0}, v{w0}, 2, 4")
        e(f"v_and_b32 v{u}, 0xf0, v{rk}\nv_lshlrev_b32 v{t1}, 9, v{t0}\nv_lshl_add_u32 v{t1}, v{u}, 1, v{t1}")
        e(f"v_and_b32 v{u}, 7, v{rk}\nv_lshl_add_u32 v{t1}, v{u}, 2, v{t1}")
        e(f"v_bfe_u32 v{u}, v{rk}, 3, 1\nv_lshl_add_u32 v{t1}, v{u}, 1, v{t1}")
        e(f"v_mul_u32_u24 v{t0}, {RING}, v{t0}\nv_lshl_add_u32 v{t0}, v{rk}, 5, v{t0}")
        e(f"v_and_b32 v{rk}, 3, v{w0}\nv_lshl_add_u32 v{t0}, v{rk}, 3, v{t0}")
        e(f"v_lshrrev_b32 v{w0}, 10, v{w0}")
        e(f"v_add_u32 v{t1}, {IDX_OFF}, v{t1}\nds_write_b16 v{t1}, v{w0}")
        e(f"v_add_u32 v{t0}, {STG}, v{t0}")
        e(f"ds_write2_b32 v{t0}, v{w0+1}, v{w0+2} offset0:0 offset1:1")
        e(f"{lab}:")
    e("s_mov_b64 exec, -1")
    e(f"v_add_u32 v{II}, 25, v{II}\nv_cmp_lt_u32 vcc, v{II}, v{HI}")
    e("s_cbranch_vccnz K2_bin")
    e("s_waitcnt lgkmcnt(0)\ns_barrier")
    stamp(4)
    e(f"v_and_b32 v{t0}, 15, v{L}\nv_lshlrev_b32 v{t0}, 2, v{t0}\nv_add_u32 v{t0}, {GC_OFF}, v{t0}\nds_read_b32 v{t0}, v{t0}")
    for c in range(6):
        for p in range(2): e(f"ds_read_b32 v{vID+2*c+p}, v{IB} offset:{64*c+32*p}")
    e("s_waitcnt lgkmcnt(12)")
    e(f"v_cmp_lt_u32 vcc, {CAP}, v{t0}")
    e(f"v_readlane_b32 s{sNch}, v{t0}, s{sWave}")
    e("s_cbranch_vccnz K2_overflow")
    e("K2_nover:")
    for c in range(6):
        e(f"ds_read_b64_tr_b16 {vr(vCF+4*c,2)}, v{CA} offset:{STG+c*1024}")
        e(f"ds_read_b64_tr_b16 {vr(vCF+4*c+2,2)}, v{CA} offset:{STG+c*1024+128}")
    e(f"s_add_u32 s{sNch}, s{sNch}, 31\ns_lshr_b32 s{sNch}, s{sNch}, 5\ns_max_u32 s{sNch}, s{sNch}, 1")
    e(f"s_mov_b32 s{sS}, 0\ns_mov_b32 s{sOffC}, 0")
    e("s_waitcnt lgkmcnt(12)")
    for i in range(4): dma(0,i,sOffC)
    e("s_waitcnt lgkmcnt(0)")
    for c in (1,2):
        for i in range(4): dma(c,i,sOffC)
    stamp(5)
    e("K2_slice:")
    for n in (4,5,3,6,2): e(f"s_cmp_eq_u32 s{sNch}, {n}\ns_cbranch_scc1 K2_n{n}")
    for n in (1,2,3,6,5,4):
        e(f"K2_n{n}:")
        for c in range(n):
            issued=max(n,3) if c==0 else None
            last=min(max(n,3)-1, c+2)
            e(f"s_waitcnt vmcnt({4*(last-c)})")
            for ct in range(4):
                e(f"ds_read_b64_tr_b16 {vr(vXA+4*ct,2)}, v{vT+ct} offset:{(c%3)*4096}")
                e(f"ds_read_b64_tr_b16 {vr(vXA+4*ct+2,2)}, v{vT+ct} offset:{(c%3)*4096+512}")
            for ct in range(4):
                e(f"s_waitcnt lgkmcnt({6-2*ct})")
                C = "0" if c==0 else vr(vA1+4*ct,4)
                e(f"v_mfma_f32_16x16x32_bf16 {vr(vA1+4*ct,4)}, {vr(vXA+4*ct,4)}, {vr(vCF+4*c,4)}, {C}")
            if c+3<n:
                for i in range(4): dma(c+3,i,sOffC)
            if c==0: e("s_barrier")
        if n!=4: e("s_branch K2_gap")
    e("K2_gap:")
    stamp((f"s{sS}",8))
    e(f"s_and_b32 s{sT0}, s{sS}, 3")
    e(f"s_cmp_eq_u32 s{sT0}, 1\ns_cbranch_scc1 K2_gap_1")
    e(f"s_cmp_eq_u32 s{sT0}, 2\ns_cbranch_scc1 K2_gap_2")
    e(f"s_cmp_eq_u32 s{sS}, 3\ns_cbranch_scc1 K2_gap_3")
    e(f"s_cmp_eq_u32 s{sS}, 7\ns_cbranch_scc1 K2_gap_F")
    bufs=[vXA+4*k for k in range(4)]+[vA1+4*k for k in range(4)]
    for var in ('0','1','2','3','F'):
        q=3 if var=='F' else int(var)
        fin = var=='F'
        e(f"K2_gap_{var}:")
        if not fin:
            if q<3: e(f"s_add_u32 s{sOffN}, s{sOffC}, 256")
            else: e(f"s_mov_b32 s{sOffN}, 128")
        if q==0:
            lab=e.lab("K2_nw")
            e(f"s_cmp_ge_u32 s{sWave}, 8\ns_cbranch_scc1 {lab}")
            e(f"s_lshr_b32 s{sWo}, s{sS}, 2\ns_mul_i32 s{sWo}, s{sWo}, 81920\ns_add_u32 s{sWo}, s{sWo}, s{sWb}")
            wload(BDE,sWo)
            e(f"{lab}:")
        if q==1:
            lab=e.lab("K2_nw")
            e(f"s_cmp_ge_u32 s{sWave}, 8\ns_cbranch_scc1 {lab}")
            e(f"s_cmp_lg_u32 s{sS}, 1\ns_cbranch_scc1 {lab}")
            e(f"s_add_u32 s{sWo}, s{sWb}, 81920")
            wload(AC,sWo)
            e(f"{lab}:")
        defer=[] if fin else [(c,i) for c in range(3) for i in range(4)]
        pre=defer[:4*PRE]; post=defer[4*PRE:]
        for (c,i) in pre: dma(c,i,sOffN)
        e("s_nop 7" if not pre else "s_nop 1")
        for ks in range(2):
            for hh in range(2):
                a=vA1+4*(2*ks+hh)
                e(f"v_cvt_pk_bf16_f32 v{vXA+4*ks+2*hh}, v{a}, v{a+1}")
                e(f"v_cvt_pk_bf16_f32 v{vXA+4*ks+2*hh+1}, v{a+2}, v{a+3}")
        if q>0:
            tneg={3:1,1:2,2:3}[q]
            msk=(0x11111111<<tneg)&0xffffffff
            e(f"s_mov_b32 exec_lo, {hex(msk)}\ns_mov_b32 exec_hi, {hex(msk)}")
            for k in range(8): e(f"v_xor_b32 v{vXA+k}, 0x80008000, v{vXA+k}")
            e("s_mov_b64 exec, -1")
        e(f"ds_write_b128 v{vSW}, {vr(vXA,4)}")
        e(f"ds_write_b128 v{vSW}, {vr(vXA+4,4)} offset:{S_KS}")
        e("s_waitcnt lgkmcnt(0)\ns_barrier")
        stamp((f"s{sS}",16))
        e(f"s_cmp_ge_u32 s{sWave}, 8\ns_cbranch_scc1 K2_gw_{var}")
        if q==0: plan=[(0,0,0),(1,2,1),(2,2,2),(3,2,3)]
        else:
            k=q-1; plan=[(0,3,q),(q,1,0)]
            for j in range(3):
                if j!=k: plan.append((1+j,4,1+(3-j-k)))
        items=[(t,m,o,ks,mt) for (t,m,o) in plan for ks in range(2) for mt in range(3)]
        n=len(items); assert n==24
        def rd(i):
            t,m,o,ks,mt=items[i]
            e(f"ds_read_b128 {vr(bufs[i%8],4)}, v{vSR} offset:{t*S_T+ks*S_KS+mt*1024}")
        for i in range(7): rd(i)
        npost=len(post)
        pos=[int(round((j+0.5)*24/npost-1)) for j in range(npost)] if (npost and npost!=8) else (DPOS if npost else [])
        pj=0
        for i in range(n):
            t,m,o,ks,mt=items[i]
            e(f"s_waitcnt lgkmcnt({min(6,n-1-i)})")
            acc=vA2+(o*3+mt)*4
            e(f"v_mfma_f32_16x16x32_bf16 {vr(acc,4)}, {vr(vW+(m*2+ks)*4,4)}, {vr(bufs[i%8],4)}, {vr(acc,4)}")
            if i+7<n: rd(i+7)
            while pj<npost and pos[pj]<=i:
                dma(post[pj][0],post[pj][1],sOffN); pj+=1
        assert pj==npost
        e(f"s_branch K2_gn_{var}")
        e(f"K2_gw_{var}:")
        for (c,i) in post: dma(c,i,sOffN)
        e(f"K2_gn_{var}:")
        stamp((f"s{sS}",24))
        if not fin:
            e(f"s_mov_b32 s{sOffC}, s{sOffN}\ns_add_u32 s{sS}, s{sS}, 1\ns_branch K2_slice")
    e(f"s_cmp_eq_u32 s{sMode}, 0\ns_cbranch_scc1 K2_epi")
    e(f"s_add_u32 s{sLo}, s{sLo}, {CAP}\ns_cmp_ge_u32 s{sLo}, s{sTot}\ns_cbranch_scc1 K2_epi")
    e("s_waitcnt vmcnt(0)\ns_branch K2_round")
    e("K2_epi:")
    e(f"s_cmp_ge_u32 s{sWave}, 8\ns_cbranch_scc1 K2_fin")
    e(f"v_mbcnt_lo_u32_b32 v2, -1, 0\nv_mbcnt_hi_u32_b32 v2, -1, v2")
    e(f"v_and_b32 v3, 15, v2\nv_lshrrev_b32 v1, 4, v2\nv_lshlrev_b32 v1, 3, v1\nv_lshl_add_u32 v1, v3, 10, v1")
    e(f"v_mov_b32 v0, {OOB}\nv_cmp_gt_u32 vcc, 8, v3\ns_mul_i32 s{sT0}, s{sB}, {NPB*1024}\ns_lshl_b32 s{sT1}, s{sWave}, 5\ns_add_u32 s40, s{sT0}, s{sT1}")
    e(f"v_cndmask_b32 v0, v0, v1, vcc")
    e("s_add_u32 s41, s40, 16384\ns_add_u32 s42, s41, 16384")
    e("s_mov_b32 s43, 0xbfb8aa3b")
    for mt in range(3):
        a0=vA2+mt*4
        g=vXA
        for r in range(4): e(f"v_mul_f32 v{g+r}, s43, v{a0+r}")
        for r in range(4): e(f"v_exp_f32 v{g+r}, v{g+r}")
        e("s_nop 0")
        for r in range(4): e(f"v_add_f32 v{g+r}, 1.0, v{g+r}")
        for r in range(4): e(f"v_rcp_f32 v{g+r}, v{g+r}")
        pk=vA1+mt*8 if mt<2 else vCF
        e(f"v_cvt_pk_bf16_f32 v{pk}, v{a0}, v{a0+1}\nv_cvt_pk_bf16_f32 v{pk+1}, v{a0+2}, v{a0+3}")
        for o in range(1,4):
            a=vA2+(o*3+mt)*4
            for r in range(4): e(f"v_mul_f32 v{a+r}, v{a+r}, v{g+r}")
            e(f"v_cvt_pk_bf16_f32 v{pk+2*o}, v{a}, v{a+1}\nv_cvt_pk_bf16_f32 v{pk+2*o+1}, v{a+2}, v{a+3}")
        for o in range(4):
            e(f"buffer_store_dwordx2 {vr(pk+2*o,2)}, v{0 if mt==2 else 1}, s[{sOUT}:{sOUT+3}], s{40+mt} offen offset:{o*256}")
    e("K2_fin:")
    stamp(6)
    if ts:
        e("s_waitcnt vmcnt(0)")
        stamp(7)
        e(f"v_mbcnt_lo_u32_b32 v2, -1, 0\nv_mbcnt_hi_u32_b32 v2, -1, v2\nv_lshlrev_b32 v2, 2, v2")
        e(f"s_mul_i32 s40, s{sB}, 10\ns_add_u32 s40, s40, s{sWave}\ns_lshl_b32 s40, s40, 8\ns_add_u32 s40, s40, {5<<20}")
        e(f"s_mov_b32 s{sWS+2}, {8<<20}\nbuffer_store_dword v{NV}, v2, s[{sWS}:{sWS+3}], s40 offen")
    e("s_waitcnt vmcnt(0) lgkmcnt(0)\ns_endpgm")
    e("K2_overflow:")
    e(f"s_cmp_lg_u32 s{sMode}, 0\ns_cbranch_scc1 K2_nover")
    e(f"s_mov_b32 s{sMode}, 1\ns_mov_b32 s{sLo}, 0")
    e(f"v_lshlrev_b32 v{t0}, 2, v{P}\nv_add_u32 v{t0}, {PREF_OFF}, v{t0}")
    e(f"ds_write_b32 v{t0}, v{CNT}")
    e("s_waitcnt lgkmcnt(0)\ns_barrier")
    e(f"v_mov_b32 v{RB}, 0\nv_mov_b32 v{HI}, 0\ns_mov_b32 s{sT0}, 0")
    e("K2_pl:")
    e(f"s_lshl_b32 s{sT1}, s{sT0}, 2\ns_add_u32 s{sT1}, s{sT1}, {PREF_OFF}\nv_mov_b32 v{t1}, s{sT1}\nds_read_b32 v{t1}, v{t1}")
    e(f"v_cmp_lt_u32 vcc, s{sT0}, v{P}")
    e("s_waitcnt lgkmcnt(0)")
    e(f"v_add_u32 v{HI}, v{HI}, v{t1}\nv_cndmask_b32 v{t1}, 0, v{t1}, vcc\nv_add_u32 v{RB}, v{RB}, v{t1}")
    e(f"s_add_u32 s{sT0}, s{sT0}, 1\ns_cmp_lt_u32 s{sT0}, 128\ns_cbranch_scc1 K2_pl")
    e("s_barrier")
    e(f"ds_write_b32 v{t0}, v{RB}")
    e(f"v_readfirstlane_b32 s{sTot}, v{HI}")
    e("s_waitcnt vmcnt(0) lgkmcnt(0)\ns_barrier\ns_branch K2_round")
    e("K2_done:\ns_endpgm")
    return e.text()

HEADER=open("standalone__tensor_product_equiv_equiformer__graph.s.ref").read().split("; Override launch geometry")[0]

def desc(name,nv,ns):
    return f""".p2align 6
.amdhsa_kernel {name}
  .amdhsa_next_free_vgpr {nv}
  .amdhsa_next_free_sgpr {ns}
  .amdhsa_accum_offset {(nv+3)//4*4}
  .amdhsa_group_segment_fixed_size 0
  .amdhsa_kernarg_size 96
  .amdhsa_user_sgpr_count 2
  .amdhsa_user_sgpr_kernarg_segment_ptr 1
  .amdhsa_system_sgpr_workgroup_id_x 1
.end_amdhsa_kernel"""

def build(opt={}):
    s=HEADER
    s+=f"; Two launches: (1) bin edges by destination + fold weights + prefetch, (2) gather/aggregate + GEMM + gate.\n"
    K1G=opt.get('k1g',144 if opt.get('pf',0)==0 else 256)
    L1=f"; @launch kernel={K1} grid=({K1G},1,1) block=(640,1,1) lds={K1_LDS}\n"
    L2=f"; @launch kernel={K2} grid=({NB},1,1) block=(640,1,1) lds={K2_LDS}\n"
    L0=f"; @launch kernel=eqf_nop_kernel grid=(1,1,1) block=(64,1,1) lds=0\n"
    seq=opt.get('seq','12')
    for ch in str(seq): s+={'1':L1,'2':L2,'0':L0}[ch]
    s+='.amdgcn_target "amdgcn-amd-amdhsa--gfx950"\n.text\n'
    s+=gen_k1(opt)+"\n"+gen_k2(opt)+"\n"
    if '0' in str(seq): s+=".globl eqf_nop_kernel\n.p2align 8\n.type eqf_nop_kernel,@function\neqf_nop_kernel:\n    s_endpgm\n"
    s+='.section .rodata,"a"\n'+(".p2align 7\n" if opt.get('kdal') else "")+desc(K1,76 if opt.get("ts") else 72,64)+"\n"+desc(K2,NV+(1 if opt.get("ts") else 0),64)+"\n"
    if '0' in str(seq): s+=desc("eqf_nop_kernel",8,16)+"\n"
    for m in re.finditer(r"buffer_\w+ .*offset:(\d+)", s):
        assert int(m.group(1))<4096, m.group(0)
    for m in re.finditer(r"ds_\w+ .*offset:(\d+)", s):
        assert int(m.group(1))<65536, m.group(0)
    return s

if __name__=="__main__":
    out=sys.argv[1] if len(sys.argv)>1 else "standalone__tensor_product_equiv_equiformer__graph.s"
    opt={}
    for a in sys.argv[2:]:
        k,v=a.split("="); opt[k]=eval(v)
    open(out,"w").write(build(opt))
    print("wrote",out)
```

```python
import re, sys

N=10000; E=320000
NPROD=128; EPW=2500
NB=250; NPB=40
TAB_OFF=0; WF_OFF=131072; REC_OFF=294912
WS_USED=REC_OFF+NPROD*EPW*12
XBYTES=N*1024
OOB=0x40000000
CAP=192
RING=12288
S_OFF=10*RING
S_T=5136; S_KS=2560
IDX_OFF=S_OFF+4*S_T
GC_OFF=IDX_OFF+10*768
PREF_OFF=GC_OFF+64
K2_LDS=PREF_OFF+512
K1_CNT=30016; K1_START=31040; K1_LDS=32064

K1="eqf_bin_kernel"
K2="standalone__tensor_product_equiv_equiformer__graph_kernel"

class A:
    def __init__(s): s.L=[]; s.n=0
    def __call__(s, txt):
        for ln in txt.split("\n"):
            ln=ln.strip()
            if ln: s.L.append(ln)
    def lab(s, base):
        s.n+=1; return f"{base}_{s.n}"
    def text(s):
        out=[]
        for l in s.L:
            out.append(l if l.endswith(":") or l.startswith(".") else "    "+l)
        return "\n".join(out)

def vr(a,n): return f"v[{a}:{a+n-1}]"
def sr(a,n): return f"s[{a}:{a+n-1}]"

def srd(e, d, plo, nbytes):
    e(f"s_mov_b32 s{d}, s{plo}\ns_mov_b32 s{d+1}, s{plo+1}\ns_mov_b32 s{d+2}, {nbytes}\ns_mov_b32 s{d+3}, 0x20000")

def gen_k1(opt):
    e=A()
    ts=opt.get('ts')
    TV=72
    def stamp(k):
        if not ts: return
        e(f"s_memrealtime s[60:61]\ns_waitcnt lgkmcnt(0)\nv_writelane_b32 v{TV}, s60, {k}")
    def dump():
        if not ts: return
        e("s_waitcnt vmcnt(0)")
        stamp(7)
        e(f"v_mbcnt_lo_u32_b32 v2, -1, 0\nv_mbcnt_hi_u32_b32 v2, -1, v2\nv_lshlrev_b32 v2, 2, v2")
        e(f"v_lshrrev_b32 v1, 6, v0\ns_nop 1\nv_readfirstlane_b32 s58, v1")
        e(f"s_mul_i32 s59, s2, 10\ns_add_u32 s59, s59, s58\ns_lshl_b32 s59, s59, 8\ns_add_u32 s59, s59, {6<<20}")
        e(f"s_mov_b32 s40, s20\ns_mov_b32 s41, s21\ns_mov_b32 s42, {8<<20}\ns_mov_b32 s43, 0x20000")
        e(f"buffer_store_dword v{TV}, v2, s[40:43], s59 offen")
    e(f".globl {K1}\n.p2align 8\n.type {K1},@function\n{K1}:")
    K1G=opt.get('k1g',144 if opt.get('pf',0)==0 else 256)
    e(f"s_cmp_ge_u32 s2, {K1G}\ns_cbranch_scc1 K1_done")
    if ts: e(f"v_mov_b32 v{TV}, 0")
    stamp(0)
    e("s_load_dwordx4 s[4:7], s[0:1], 0")
    e("s_load_dwordx4 s[8:11], s[0:1], 16")
    e("s_load_dwordx4 s[12:15], s[0:1], 32")
    e("s_load_dwordx4 s[16:19], s[0:1], 48")
    e("s_load_dwordx2 s[20:21], s[0:1], 88")
    e("s_cmp_ge_u32 s2, 128\ns_cbranch_scc1 K1_helper")
    e("v_lshlrev_b32 v1, 2, v0\nv_mov_b32 v2, 0")
    e("v_cmp_gt_u32 vcc, 0x100, v0\ns_and_saveexec_b64 s[22:23], vcc")
    e(f"ds_write_b32 v1, v2 offset:{K1_CNT}")
    e("s_mov_b64 exec, s[22:23]")
    e("v_lshlrev_b32 v1, 4, v0")
    e("v_mul_u32_u24 v2, 24, v0")
    e("v_lshlrev_b32 v3, 3, v0")
    e("s_mul_i32 s44, s2, 10000\ns_mul_i32 s45, s2, 15000\ns_mul_i32 s46, s2, 5000")
    e("v_cmp_gt_u32 vcc, 0x271, v0")
    e("s_waitcnt lgkmcnt(0)")
    stamp(1)
    srd(e,24,10,E*4)
    srd(e,28,12,E*4)
    srd(e,32,6,E*6)
    srd(e,36,8,E*2)
    srd(e,40,20,WS_USED)
    if opt.get('k1nost'): e("s_mov_b32 s42, 0")
    e("s_and_saveexec_b64 s[48:49], vcc")
    e("s_mov_b64 s[50:51], exec")
    e("buffer_load_dwordx4 v[8:11], v1, s[28:31], s44 offen")
    e("buffer_load_dwordx4 v[4:7], v1, s[24:27], s44 offen")
    e("buffer_load_dwordx2 v[18:19], v3, s[36:39], s46 offen")
    e("buffer_load_dwordx4 v[12:15], v2, s[32:35], s45 offen")
    e("buffer_load_dwordx2 v[16:17], v2, s[32:35], s45 offen offset:16")
    e("s_barrier")
    e("v_mov_b32 v3, 1")
    e("s_mov_b32 s47, 52429")
    e("s_waitcnt vmcnt(4)")
    stamp(2)
    for r in range(4):
        e(f"v_mul_u32_u24 v{20+r}, s47, v{8+r}")
        e(f"v_lshrrev_b32 v{20+r}, 21, v{20+r}")
        e(f"v_mul_u32_u24 v{24+r}, 40, v{20+r}")
        e(f"v_sub_u32 v{24+r}, v{8+r}, v{24+r}")
        e(f"v_lshlrev_b32 v{20+r}, 2, v{20+r}")
        e(f"ds_add_rtn_u32 v{28+r}, v{20+r}, v3 offset:{K1_CNT}")
    e("s_waitcnt vmcnt(0)")
    stamp(3)
    ylo=lambda d,s: e(f"v_lshlrev_b32 v{d}, 16, v{s}")
    yhi=lambda d,s: e(f"v_and_b32 v{d}, 0xffff0000, v{s}")
    ys=[]
    for k in range(12): ys.append((12+k//2, k&1))
    for r in range(4):
        e(f"v_lshl_or_b32 v{32+4*r}, v{4+r}, 10, v{24+r}")
        (yhi if r&1 else ylo)(48, 18+r//2)
        for j in range(3):
            reg,hi=ys[3*r+j]
            (yhi if hi else ylo)(49+j, reg)
        for j in range(3):
            e(f"v_mul_f32 v{49+j}, v48, v{49+j}")
        e(f"v_cvt_pk_bf16_f32 v{33+4*r}, v48, v49")
        e(f"v_cvt_pk_bf16_f32 v{34+4*r}, v50, v51")
    e("s_mov_b64 exec, s[48:49]")
    e("s_waitcnt lgkmcnt(0)\ns_barrier")
    stamp(4)
    e("v_mbcnt_lo_u32_b32 v52, -1, 0\nv_mbcnt_hi_u32_b32 v52, -1, v52")
    e("v_lshlrev_b32 v53, 4, v52")
    e(f"ds_read_b128 v[56:59], v53 offset:{K1_CNT}")
    e("s_waitcnt lgkmcnt(0)")
    e("v_add_u32 v61, v56, v57\nv_add_u32 v62, v61, v58\nv_add_u32 v63, v62, v59")
    e("v_mov_b32 v54, v63")
    for sh in (1,2,4,8):
        e("s_nop 1")
        e(f"v_add_u32_dpp v54, v54, v54 row_shr:{sh} row_mask:0xf bank_mask:0xf bound_ctrl:0")
    e("s_nop 1\nv_add_u32_dpp v54, v54, v54 row_bcast:15 row_mask:0xa bank_mask:0xf")
    e("s_nop 1\nv_add_u32_dpp v54, v54, v54 row_bcast:31 row_mask:0xc bank_mask:0xf")
    e("v_sub_u32 v64, v54, v63")
    e("v_add_u32 v65, v64, v56\nv_add_u32 v66, v64, v61\nv_add_u32 v67, v64, v62")
    e(f"ds_write_b128 v53, v[64:67] offset:{K1_START}")
    e("v_readfirstlane_b32 s52, v0")
    for r in range(4):
        e(f"v_lshl_or_b32 v{68+r}, v{56+r}, 16, v{64+r}")
    e("s_cmp_lg_u32 s52, 0\ns_cbranch_scc1 K1_notab")
    e(f"s_lshl_b32 s53, s2, 10")
    ST=opt.get('st','')
    e(f"buffer_store_dwordx4 v[68:71], v53, s[40:43], s53 offen{ST}")
    e("K1_notab:")
    e("s_mov_b64 exec, s[50:51]")
    e("s_waitcnt lgkmcnt(0)")
    for r in range(4):
        e(f"ds_read_b32 v{56+r}, v{20+r} offset:{K1_START}")
    e("s_waitcnt lgkmcnt(0)")
    for r in range(4):
        e(f"v_add_u32 v{56+r}, v{56+r}, v{28+r}")
        e(f"v_mul_u32_u24 v{56+r}, 12, v{56+r}")
        e(f"ds_write2_b32 v{56+r}, v{32+4*r}, v{33+4*r} offset0:0 offset1:1")
        e(f"ds_write_b32 v{56+r}, v{34+4*r} offset:8")
    e("s_mov_b64 exec, s[48:49]")
    e("s_waitcnt lgkmcnt(0)\ns_barrier")
    stamp(5)
    e("v_lshlrev_b32 v1, 4, v0")
    e(f"s_mul_i32 s53, s2, {EPW*12}\ns_add_u32 s53, s53, {REC_OFF}")
    e("ds_read_b128 v[4:7], v1\nds_read_b128 v[8:11], v1 offset:10240\nds_read_b128 v[12:15], v1 offset:20480")
    e("v_add_u32 v2, 10240, v1\nv_add_u32 v3, 20480, v1")
    e(f"v_cmp_gt_u32 vcc, {1875-1280}, v0")
    e(f"s_waitcnt lgkmcnt(2)\nbuffer_store_dwordx4 v[4:7], v1, s[40:43], s53 offen{ST}")
    e(f"s_waitcnt lgkmcnt(1)\nbuffer_store_dwordx4 v[8:11], v2, s[40:43], s53 offen{ST}")
    e("s_and_saveexec_b64 s[22:23], vcc")
    e("s_cbranch_execz K1_pend")
    e(f"s_waitcnt lgkmcnt(0)\nbuffer_store_dwordx4 v[12:15], v3, s[40:43], s53 offen{ST}")
    e("K1_pend:")
    if ts:
        e("s_mov_b64 exec, -1")
        stamp(6)
        dump()
    e("s_waitcnt vmcnt(0) lgkmcnt(0)\ns_endpgm")
    e("K1_helper:")
    e("s_sub_u32 s22, s2, 128")
    e("v_lshrrev_b32 v1, 6, v0\nv_and_b32 v2, 63, v0")
    e("s_mul_i32 s23, s22, 640\nv_add_u32 v3, s23, v0\nv_lshlrev_b32 v3, 7, v3")
    e("v_readfirstlane_b32 s44, v1")
    e("s_lshr_b32 s23, s22, 3\ns_mul_i32 s23, s23, 625\nv_add_u32 v4, s23, v0\nv_lshlrev_b32 v4, 10, v4")
    e("s_waitcnt lgkmcnt(0)")
    stamp(1)
    srd(e,24,4,XBYTES)
    e("s_cmp_ge_u32 s22, 16\ns_cbranch_scc1 K1_pf")
    if opt.get('pfc'):
        e("s_getpc_b64 s[56:57]\nK1_pcb:")
        e(f"s_add_u32 s56, s56, {K2}-K1_pcb\ns_addc_u32 s57, s57, 0")
        e("v_lshlrev_b32 v60, 7, v2\nv_mov_b32 v61, s57\nv_add_co_u32 v60, vcc, s56, v60\nv_addc_co_u32 v61, vcc, 0, v61, vcc")
        e("global_load_dword v62, v[60:61], off")
        e("v_add_co_u32 v60, vcc, 0x2000, v60\nv_addc_co_u32 v61, vcc, 0, v61, vcc")
        e("v_cmp_gt_u32 vcc, 32, v2\ns_and_saveexec_b64 s[58:59], vcc\nglobal_load_dword v63, v[60:61], off\ns_mov_b64 exec, s[58:59]")
    srd(e,28,14,1280)
    srd(e,32,16,256*256)
    srd(e,36,18,384*256)
    srd(e,40,20,WS_USED)
    e("s_mul_i32 s45, s22, 10\ns_add_u32 s45, s45, s44")
    e("s_and_b32 s46, s45, 1")
    e("s_lshr_b32 s47, s45, 1")
    e("s_mul_i32 s48, s47, 52429\ns_lshr_b32 s48, s48, 18")
    e("s_mul_i32 s49, s48, 5\ns_sub_u32 s49, s47, s49")
    e("s_and_b32 s50, s48, 7\ns_lshr_b32 s51, s48, 3")
    e("s_lshl_b32 s52, s51, 6\ns_lshl_b32 s53, s46, 5\ns_add_u32 s52, s52, s53")
    e("v_lshrrev_b32 v5, 4, v2\nv_and_b32 v6, 15, v2")
    e("v_lshlrev_b32 v7, 10, v5\nv_lshl_add_u32 v7, v6, 1, v7")
    e("v_lshlrev_b32 v8, 3, v5")
    e("s_lshl_b32 s53, s49, 7\ns_add_u32 s53, s53, s52\ns_lshl_b32 s53, s53, 1")
    e("buffer_load_dwordx2 v[10:11], v8, s[28:31], s53 offen")
    e("buffer_load_dwordx2 v[12:13], v8, s[28:31], s53 offen offset:32")
    e("s_cmp_ge_u32 s49, 2\ns_cbranch_scc1 K1_w1")
    for (lab,sub,R) in (("",0,32),("K1_w1:",2,36)):
        if lab: e(lab)
        e(f"s_sub_u32 s54, s49, {sub}\ns_lshl_b32 s54, s54, 7\ns_add_u32 s54, s54, s52\ns_lshl_b32 s54, s54, 8")
        e("s_lshl_b32 s55, s50, 5\ns_add_u32 s54, s54, s55\ns_add_u32 s55, s54, 4096")
        for j in range(4): e(f"buffer_load_ushort v{16+j}, v7, s[{R}:{R+3}], s54 offen offset:{j*256}")
        for j in range(4): e(f"buffer_load_ushort v{20+j}, v7, s[{R}:{R+3}], s55 offen offset:{j*256}")
        if not lab: e("s_branch K1_wj")
    e("K1_wj:")
    PF=opt.get('pf',0)
    def pfl():
        if PF==3: return
        if PF>=1: e("buffer_load_dword v30, v3, s[24:27], 0 offen")
        if PF>=2: e("buffer_load_dword v31, v3, s[24:27], 0 offen offset:64")
        if PF>=1: e("buffer_load_dword v32, v4, s[24:27], 0 offen")
        if PF>=2: e("buffer_load_dword v33, v4, s[24:27], 0 offen offset:64")
    pfl()
    npf=2*PF if PF<3 else 0
    e(f"s_waitcnt vmcnt({npf})")
    for j in range(8):
        src=10+j//2
        if j&1: e(f"v_and_b32 v24, 0xffff0000, v{src}")
        else:   e(f"v_lshlrev_b32 v24, 16, v{src}")
        e(f"v_lshlrev_b32 v{16+j}, 16, v{16+j}")
        e(f"v_mul_f32 v{16+j}, v24, v{16+j}")
    for k in range(4): e(f"v_cvt_pk_bf16_f32 v{40+k}, v{16+2*k}, v{17+2*k}")
    e(f"s_lshl_b32 s54, s45, 10\ns_add_u32 s54, s54, {WF_OFF}")
    e("v_lshlrev_b32 v9, 4, v2")
    e(f"buffer_store_dwordx4 v[40:43], v9, s[40:43], s54 offen{ST}")
    dump()
    e("s_waitcnt vmcnt(0)\ns_endpgm")
    e("K1_pf:")
    if PF==3:
        PFK=opt.get('pfk',2)
        e("s_sub_u32 s23, s2, 144\ns_lshr_b32 s23, s23, 3\ns_mul_i32 s23, s23, 715")
        e("v_add_u32 v3, s23, v0\nv_lshlrev_b32 v3, 10, v3")
        e(f"v_add_u32 v4, {640*1024}, v3\nv_mov_b32 v5, {OOB}\nv_cmp_gt_u32 vcc, 75, v0\nv_cndmask_b32 v4, v5, v4, vcc")
        for k in range(PFK):
            e(f"buffer_load_dword v{30+2*k}, v3, s[24:27], 0 offen offset:{k*256}")
            e(f"buffer_load_dword v{31+2*k}, v4, s[24:27], 0 offen offset:{k*256}")
    else: pfl()
    e("s_waitcnt vmcnt(0)")
    dump()
    e("K1_done:\ns_endpgm")
    return e.text()

vAd=0; vP=2; vT=4; vID=8
vXA=20; vA1=36; vCF=52; vW=76; vA2=116; vSW=164; vSR=165; NV=166
sXR=8; sWS=12; sOUT=16
sWave=20; sNch=21; sRing=22; sOffC=24; sOffN=25; sS=28; sWb=29
sLo=34; sMode=35; sTot=36; sT0=37; sT1=38; sFirst=39
sK1024=50; sB=52; sWo=53
IDS=512
STG=6144

def gen_k2(opt):
    e=A()
    ts=opt.get('ts')
    DPOS=opt.get('dpos',[1,4,7,10,13,16,19,22])
    PRE=opt.get('pre',1)
    def stamp(k):
        if not ts: return
        e(f"s_memrealtime s[56:57]\ns_waitcnt lgkmcnt(0)")
        if isinstance(k,int): e(f"v_writelane_b32 v{NV}, s56, {k}")
        else:
            e(f"s_add_u32 m0, {k[0]}, {k[1]}\nv_writelane_b32 v{NV}, s56, m0")
    adn=[0]
    def dma(c,i,soff):
        ad=vAd+(adn[0]&1); adn[0]+=1
        e(f"s_add_u32 m0, s{sRing}, {(c%3)*4096+i*1024}")
        e(f"v_mad_u32_u16 v{ad}, v{vID+2*c+(i>>1)}, s{sK1024}, v{vP+(i&1)} op_sel:[{i&1},0,0,0]")
        e(f"buffer_load_dwordx4 v{ad}, s[{sXR}:{sXR+3}], s{soff} offen lds")
    def wload(ks_, hexpr):
        e(f"v_mbcnt_lo_u32_b32 v{vAd+1}, -1, 0\nv_mbcnt_hi_u32_b32 v{vAd+1}, -1, v{vAd+1}\nv_lshlrev_b32 v{vAd+1}, 4, v{vAd+1}")
        cur=0
        for k in ks_:
            while cur<k//4:
                e(f"s_add_u32 s{hexpr}, s{hexpr}, 4096"); cur+=1
            e(f"buffer_load_dwordx4 {vr(vW+4*k,4)}, v{vAd+1}, s[{sWS}:{sWS+3}], s{hexpr} offen offset:{(k%4)*1024}")
    AC=[0,1,4,5]; BDE=[2,3,6,7,8,9]
    e(f".globl {K2}\n.p2align 8\n.type {K2},@function\n{K2}:")
    e(f"s_cmp_ge_u32 s2, {NB}\ns_cbranch_scc1 K2_done")
    if ts: e(f"v_mov_b32 v{NV}, 0")
    stamp(0)
    if opt.get('k2exit'):
        e(f"s_load_dwordx2 s[{sWS}:{sWS+1}], s[0:1], 88\nv_lshrrev_b32 v1, 6, v0\ns_mov_b32 s{sB}, s2\ns_nop 1\nv_readfirstlane_b32 s{sWave}, v1\ns_mov_b32 s{sWS+3}, 0x20000\ns_waitcnt lgkmcnt(0)\ns_branch K2_fin")
    e(f"s_load_dwordx2 s[{sXR}:{sXR+1}], s[0:1], 0")
    e(f"s_load_dwordx2 s[{sWS}:{sWS+1}], s[0:1], 88")
    e(f"s_load_dwordx2 s[{sOUT}:{sOUT+1}], s[0:1], 72")
    e("v_lshrrev_b32 v1, 6, v0")
    e(f"s_mov_b32 s{sB}, s2")
    e(f"v_readfirstlane_b32 s{sWave}, v1")
    e(f"s_mov_b32 s{sK1024}, 1024")
    e(f"s_mov_b32 s{sMode}, 0\ns_mov_b32 s{sLo}, 0\ns_mov_b32 s{sTot}, 0")
    e(f"s_mov_b32 s{sXR+2}, {XBYTES}\ns_mov_b32 s{sXR+3}, 0x20000\ns_mov_b32 s{sWS+2}, {WS_USED}\ns_mov_b32 s{sWS+3}, 0x20000")
    e(f"s_mov_b32 s{sOUT+2}, {XBYTES}\ns_mov_b32 s{sOUT+3}, 0x20000")
    for r in range(48): e(f"v_mov_b32 v{vA2+r}, 0")
    e(f"s_mul_i32 s{sRing}, s{sWave}, {RING}")
    e(f"s_mul_i32 s{sWb}, s{sWave}, 10240\ns_add_u32 s{sWb}, s{sWb}, {WF_OFF}")
    e("s_waitcnt lgkmcnt(0)")
    stamp(1)
    e("K2_round:")
    L,TID,P,SUB,TABV,RB,II,HI,CNT,t0,t1,CA,i16,G,r_,cc=range(100,116)
    e(f"v_mbcnt_lo_u32_b32 v{L}, -1, 0\nv_mbcnt_hi_u32_b32 v{L}, -1, v{L}")
    e(f"s_lshl_b32 s{sT0}, s{sWave}, 6\nv_add_u32 v{TID}, s{sT0}, v{L}")
    e(f"s_mov_b32 s{sT1}, 52429\nv_mul_u32_u24 v{P}, s{sT1}, v{TID}\nv_lshrrev_b32 v{P}, 18, v{P}")
    e(f"v_lshlrev_b32 v{t0}, 10, v{P}\ns_lshl_b32 s{sT0}, s{sB}, 2")
    e(f"buffer_load_dword v{TABV}, v{t0}, s[{sWS}:{sWS+3}], s{sT0} offen")
    e(f"v_mul_u32_u24 v{SUB}, 5, v{P}\nv_sub_u32 v{SUB}, v{TID}, v{SUB}")
    Z=vXA
    for r in range(4): e(f"v_mov_b32 v{Z+r}, 0")
    e(f"v_lshlrev_b32 v{t1}, 4, v{L}\nv_add_u32 v{t1}, s{sRing}, v{t1}")
    for k in range(6): e(f"ds_write_b128 v{t1}, {vr(Z,4)} offset:{STG+k*1024}")
    e(f"s_mul_i32 s{sT0}, s{sWave}, {IDS}\ns_add_u32 s{sT0}, s{sT0}, {IDX_OFF}")
    e(f"v_lshlrev_b32 v{Z+4}, 2, v{L}\nv_add_u32 v{Z+4}, s{sT0}, v{Z+4}\nv_mov_b32 v{Z+5}, -1")
    for k in range(2): e(f"ds_write_b32 v{Z+4}, v{Z+5} offset:{k*256}")
    e(f"v_and_b32 v{Z+6}, 15, v{L}\nv_lshlrev_b32 v{Z+6}, 2, v{Z+6}\nv_add_u32 v{Z+6}, {GC_OFF}, v{Z+6}")
    e(f"ds_write_b32 v{Z+6}, v{Z}")
    e(f"v_and_b32 v{i16}, 15, v{L}\nv_lshrrev_b32 v{G}, 4, v{L}\nv_lshrrev_b32 v{r_}, 2, v{i16}\nv_and_b32 v{cc}, 3, v{L}")
    e(f"v_lshl_add_u32 v{t0}, v{G}, 3, v{r_}")
    e(f"v_lshlrev_b32 v{t0}, 7, v{t0}\nv_lshl_add_u32 v{t0}, v{cc}, 3, v{t0}\nv_add_u32 v{t0}, s{sRing}, v{t0}")
    e(f"v_lshrrev_b32 v{t1}, 1, v{r_}\nv_and_b32 v{Z+7}, 1, v{G}\nv_lshl_add_u32 v{t1}, v{Z+7}, 1, v{t1}")
    e(f"v_lshl_add_u32 v{vT}, v{t1}, 5, v{t0}")
    for ct in range(1,4): e(f"v_xor_b32 v{vT+ct}, {ct*32}, v{vT}")
    IB=Z+8
    e(f"v_lshrrev_b32 v{t0}, 3, v{L}\nv_lshlrev_b32 v{t0}, 2, v{t0}\nv_add_u32 v{IB}, s{sT0}, v{t0}")
    e(f"v_and_b32 v{t0}, 7, v{L}\nv_and_b32 v{t1}, 1, v{G}\nv_lshlrev_b32 v{t1}, 1, v{t1}\nv_xor_b32 v{t0}, v{t0}, v{t1}")
    e(f"v_lshlrev_b32 v{vP}, 4, v{t0}\nv_xor_b32 v{vP+1}, 64, v{vP}")
    e(f"s_lshl_b32 s{sT1}, s{sWave}, 2\nv_add_u32 v{t0}, s{sT1}, v{r_}")
    e(f"v_and_b32 v{t1}, 8, v{t0}\nv_lshrrev_b32 v{t1}, 2, v{t1}\nv_xor_b32 v{t1}, v{t1}, v{G}")
    e(f"v_lshlrev_b32 v{t0}, 6, v{t0}\nv_lshl_add_u32 v{t0}, v{t1}, 4, v{t0}")
    e(f"v_mul_u32_u24 v{t1}, {S_T}, v{cc}\nv_add_u32 v{t0}, v{t0}, v{t1}\nv_add_u32 v{vSW}, {S_OFF}, v{t0}")
    e(f"v_and_b32 v{t1}, 8, v{i16}\nv_lshrrev_b32 v{t1}, 2, v{t1}\nv_xor_b32 v{t1}, v{t1}, v{G}")
    e(f"v_lshlrev_b32 v{t0}, 6, v{i16}\nv_lshl_add_u32 v{t0}, v{t1}, 4, v{t0}\nv_add_u32 v{vSR}, {S_OFF}, v{t0}")
    e(f"v_lshlrev_b32 v{CA}, 8, v{G}\nv_lshl_add_u32 v{CA}, v{i16}, 3, v{CA}\nv_add_u32 v{CA}, s{sRing}, v{CA}")
    e("s_waitcnt lgkmcnt(0)\ns_barrier")
    e("s_waitcnt vmcnt(0)")
    stamp(2)
    e(f"v_lshrrev_b32 v{CNT}, 16, v{TABV}\nv_and_b32 v{RB}, 0xffff, v{TABV}")
    e(f"v_mul_u32_u24 v{t0}, {EPW}, v{P}\nv_add_u32 v{RB}, v{RB}, v{t0}\nv_mul_u32_u24 v{RB}, 12, v{RB}")
    e(f"s_cmp_eq_u32 s{sMode}, 0\ns_cbranch_scc0 K2_slowwin")
    e(f"v_mov_b32 v{II}, v{SUB}\nv_mov_b32 v{HI}, v{CNT}")
    e("s_branch K2_winok")
    e("K2_slowwin:")
    e(f"v_lshlrev_b32 v{t0}, 2, v{P}\nv_add_u32 v{t0}, {PREF_OFF}, v{t0}\nds_read_b32 v{t0}, v{t0}")
    e("s_waitcnt lgkmcnt(0)")
    e(f"v_sub_u32 v{t0}, s{sLo}, v{t0}")
    e(f"v_add_u32 v{t1}, {CAP}, v{t0}")
    e(f"v_med3_i32 v{t0}, v{t0}, 0, v{CNT}\nv_med3_i32 v{HI}, v{t1}, 0, v{CNT}")
    e(f"v_add_u32 v{II}, v{t0}, v{SUB}")
    e("K2_winok:")
    e(f"s_mov_b32 s{sFirst}, 1")
    R=36
    e("K2_bin:")
    for r in range(5):
        e(f"v_add_u32 v{t0}, {5*r}, v{II}")
        e(f"v_cmp_lt_u32 vcc, v{t0}, v{HI}")
        e(f"v_mul_u32_u24 v{t0}, 12, v{t0}\nv_add_u32 v{t0}, v{t0}, v{RB}")
        e(f"s_mov_b64 s[{40+2*r}:{41+2*r}], vcc")
        e(f"v_mov_b32 v{t1}, {OOB}\nv_cndmask_b32 v{R+4*r+3}, v{t1}, v{t0}, vcc")
    e(f"s_mov_b32 s{sT0}, {REC_OFF}")
    for r in range(5):
        e(f"buffer_load_dwordx3 v[{R+4*r}:{R+4*r+2}], v{R+4*r+3}, s[{sWS}:{sWS+3}], s{sT0} offen")
    e(f"s_cmp_eq_u32 s{sFirst}, 0\ns_cbranch_scc1 K2_bin_w0")
    e(f"s_mov_b32 s{sFirst}, 0")
    e(f"s_cmp_ge_u32 s{sWave}, 8\ns_cbranch_scc1 K2_bin_w0")
    e(f"s_mov_b32 s{sWo}, s{sWb}")
    wload(AC,sWo)
    e("s_waitcnt vmcnt(4)\ns_branch K2_bin_go")
    e("K2_bin_w0:")
    e("s_waitcnt vmcnt(0)")
    e("K2_bin_go:")
    stamp(3)
    e(f"v_mov_b32 v{t1}, 1\ns_mov_b32 s{sT1}, {GC_OFF}")
    assert GC_OFF%64==0
    for r in range(5):
        lab=e.lab("K2_ba")
        e(f"s_mov_b64 exec, s[{40+2*r}:{41+2*r}]\ns_cbranch_execz {lab}")
        e(f"v_and_or_b32 v{t0}, v{R+4*r}, 60, s{sT1}")
        e(f"ds_add_rtn_u32 v{R+4*r+3}, v{t0}, v{t1}")
        e(f"{lab}:")
    e("s_mov_b64 exec, -1\ns_waitcnt lgkmcnt(0)")
    e(f"s_movk_i32 s{sT1}, {CAP}")
    for r in range(5):
        lab=e.lab("K2_bw")
        w0=R+4*r; rk=w0+3
        u=Z+10
        e(f"s_mov_b64 exec, s[{40+2*r}:{41+2*r}]\ns_cbranch_execz {lab}")
        e(f"v_cmp_gt_u32 vcc, s{sT1}, v{rk}\ns_and_b64 exec, exec, vcc")
        e(f"v_bfe_u32 v{t0}, v{w0}, 2, 4")
        e(f"v_and_b32 v{u}, 0xf0, v{rk}\nv_lshlrev_b32 v{t1}, 9, v{t0}\nv_lshl_add_u32 v{t1}, v{u}, 1, v{t1}")
        e(f"v_and_b32 v{u}, 7, v{rk}\nv_lshl_add_u32 v{t1}, v{u}, 2, v{t1}")
        e(f"v_bfe_u32 v{u}, v{rk}, 3, 1\nv_lshl_add_u32 v{t1}, v{u}, 1, v{t1}")
        e(f"v_mul_u32_u24 v{t0}, {RING}, v{t0}\nv_lshl_add_u32 v{t0}, v{rk}, 5, v{t0}")
        e(f"v_and_b32 v{rk}, 3, v{w0}\nv_lshl_add_u32 v{t0}, v{rk}, 3, v{t0}")
        e(f"v_lshrrev_b32 v{w0}, 10, v{w0}")
        e(f"v_add_u32 v{t1}, {IDX_OFF}, v{t1}\nds_write_b16 v{t1}, v{w0}")
        e(f"v_add_u32 v{t0}, {STG}, v{t0}")
        e(f"ds_write2_b32 v{t0}, v{w0+1}, v{w0+2} offset0:0 offset1:1")
        e(f"{lab}:")
    e("s_mov_b64 exec, -1")
    e(f"v_add_u32 v{II}, 25, v{II}\nv_cmp_lt_u32 vcc, v{II}, v{HI}")
    e("s_cbranch_vccnz K2_bin")
    e("s_waitcnt lgkmcnt(0)\ns_barrier")
    stamp(4)
    e(f"v_and_b32 v{t0}, 15, v{L}\nv_lshlrev_b32 v{t0}, 2, v{t0}\nv_add_u32 v{t0}, {GC_OFF}, v{t0}\nds_read_b32 v{t0}, v{t0}")
    for c in range(6):
        for p in range(2): e(f"ds_read_b32 v{vID+2*c+p}, v{IB} offset:{64*c+32*p}")
    e("s_waitcnt lgkmcnt(12)")
    e(f"v_cmp_lt_u32 vcc, {CAP}, v{t0}")
    e(f"v_readlane_b32 s{sNch}, v{t0}, s{sWave}")
    e("s_cbranch_vccnz K2_overflow")
    e("K2_nover:")
    for c in range(6):
        e(f"ds_read_b64_tr_b16 {vr(vCF+4*c,2)}, v{CA} offset:{STG+c*1024}")
        e(f"ds_read_b64_tr_b16 {vr(vCF+4*c+2,2)}, v{CA} offset:{STG+c*1024+128}")
    e(f"s_add_u32 s{sNch}, s{sNch}, 31\ns_lshr_b32 s{sNch}, s{sNch}, 5\ns_max_u32 s{sNch}, s{sNch}, 1")
    e(f"s_mov_b32 s{sS}, 0\ns_mov_b32 s{sOffC}, 0")
    e("s_waitcnt lgkmcnt(12)")
    for i in range(4): dma(0,i,sOffC)
    e("s_waitcnt lgkmcnt(0)")
    for c in (1,2):
        for i in range(4): dma(c,i,sOffC)
    stamp(5)
    e("K2_slice:")
    for n in (4,5,3,6,2): e(f"s_cmp_eq_u32 s{sNch}, {n}\ns_cbranch_scc1 K2_n{n}")
    for n in (1,2,3,6,5,4):
        e(f"K2_n{n}:")
        for c in range(n):
            issued=max(n,3) if c==0 else None
            last=min(max(n,3)-1, c+2)
            e(f"s_waitcnt vmcnt({4*(last-c)})")
            for ct in range(4):
                e(f"ds_read_b64_tr_b16 {vr(vXA+4*ct,2)}, v{vT+ct} offset:{(c%3)*4096}")
                e(f"ds_read_b64_tr_b16 {vr(vXA+4*ct+2,2)}, v{vT+ct} offset:{(c%3)*4096+512}")
            for ct in range(4):
                e(f"s_waitcnt lgkmcnt({6-2*ct})")
                C = "0" if c==0 else vr(vA1+4*ct,4)
                e(f"v_mfma_f32_16x16x32_bf16 {vr(vA1+4*ct,4)}, {vr(vXA+4*ct,4)}, {vr(vCF+4*c,4)}, {C}")
            if c+3<n:
                for i in range(4): dma(c+3,i,sOffC)
            if c==0: e("s_barrier")
        if n!=4: e("s_branch K2_gap")
    e("K2_gap:")
    stamp((f"s{sS}",8))
    e(f"s_and_b32 s{sT0}, s{sS}, 3")
    e(f"s_cmp_eq_u32 s{sT0}, 1\ns_cbranch_scc1 K2_gap_1")
    e(f"s_cmp_eq_u32 s{sT0}, 2\ns_cbranch_scc1 K2_gap_2")
    e(f"s_cmp_eq_u32 s{sS}, 3\ns_cbranch_scc1 K2_gap_3")
    e(f"s_cmp_eq_u32 s{sS}, 7\ns_cbranch_scc1 K2_gap_F")
    bufs=[vXA+4*k for k in range(4)]+[vA1+4*k for k in range(4)]
    for var in ('0','1','2','3','F'):
        q=3 if var=='F' else int(var)
        fin = var=='F'
        e(f"K2_gap_{var}:")
        if not fin:
            if q<3: e(f"s_add_u32 s{sOffN}, s{sOffC}, 256")
            else: e(f"s_mov_b32 s{sOffN}, 128")
        if q==0:
            lab=e.lab("K2_nw")
            e(f"s_cmp_ge_u32 s{sWave}, 8\ns_cbranch_scc1 {lab}")
            e(f"s_lshr_b32 s{sWo}, s{sS}, 2\ns_mul_i32 s{sWo}, s{sWo}, 81920\ns_add_u32 s{sWo}, s{sWo}, s{sWb}")
            wload(BDE,sWo)
            e(f"{lab}:")
        if q==1:
            lab=e.lab("K2_nw")
            e(f"s_cmp_ge_u32 s{sWave}, 8\ns_cbranch_scc1 {lab}")
            e(f"s_cmp_lg_u32 s{sS}, 1\ns_cbranch_scc1 {lab}")
            e(f"s_add_u32 s{sWo}, s{sWb}, 81920")
            wload(AC,sWo)
            e(f"{lab}:")
        defer=[] if fin else [(c,i) for c in range(3) for i in range(4)]
        pre=defer[:4*PRE]; post=defer[4*PRE:]
        for (c,i) in pre: dma(c,i,sOffN)
        e("s_nop 7" if not pre else "s_nop 1")
        for ks in range(2):
            for hh in range(2):
                a=vA1+4*(2*ks+hh)
                e(f"v_cvt_pk_bf16_f32 v{vXA+4*ks+2*hh}, v{a}, v{a+1}")
                e(f"v_cvt_pk_bf16_f32 v{vXA+4*ks+2*hh+1}, v{a+2}, v{a+3}")
        if q>0:
            tneg={3:1,1:2,2:3}[q]
            msk=(0x11111111<<tneg)&0xffffffff
            e(f"s_mov_b32 exec_lo, {hex(msk)}\ns_mov_b32 exec_hi, {hex(msk)}")
            for k in range(8): e(f"v_xor_b32 v{vXA+k}, 0x80008000, v{vXA+k}")
            e("s_mov_b64 exec, -1")
        e(f"ds_write_b128 v{vSW}, {vr(vXA,4)}")
        e(f"ds_write_b128 v{vSW}, {vr(vXA+4,4)} offset:{S_KS}")
        e("s_waitcnt lgkmcnt(0)\ns_barrier")
        stamp((f"s{sS}",16))
        e(f"s_cmp_ge_u32 s{sWave}, 8\ns_cbranch_scc1 K2_gw_{var}")
        if q==0: plan=[(0,0,0),(1,2,1),(2,2,2),(3,2,3)]
        else:
            k=q-1; plan=[(0,3,q),(q,1,0)]
            for j in range(3):
                if j!=k: plan.append((1+j,4,1+(3-j-k)))
        items=[(t,m,o,ks,mt) for (t,m,o) in plan for ks in range(2) for mt in range(3)]
        n=len(items); assert n==24
        def rd(i):
            t,m,o,ks,mt=items[i]
            e(f"ds_read_b128 {vr(bufs[i%8],4)}, v{vSR} offset:{t*S_T+ks*S_KS+mt*1024}")
        for i in range(7): rd(i)
        npost=len(post)
        pos=[int(round((j+0.5)*24/npost-1)) for j in range(npost)] if (npost and npost!=8) else (DPOS if npost else [])
        pj=0
        for i in range(n):
            t,m,o,ks,mt=items[i]
            e(f"s_waitcnt lgkmcnt({min(6,n-1-i)})")
            acc=vA2+(o*3+mt)*4
            e(f"v_mfma_f32_16x16x32_bf16 {vr(acc,4)}, {vr(vW+(m*2+ks)*4,4)}, {vr(bufs[i%8],4)}, {vr(acc,4)}")
            if i+7<n: rd(i+7)
            while pj<npost and pos[pj]<=i:
                dma(post[pj][0],post[pj][1],sOffN); pj+=1
        assert pj==npost
        e(f"s_branch K2_gn_{var}")
        e(f"K2_gw_{var}:")
        for (c,i) in post: dma(c,i,sOffN)
        e(f"K2_gn_{var}:")
        stamp((f"s{sS}",24))
        if not fin:
            e(f"s_mov_b32 s{sOffC}, s{sOffN}\ns_add_u32 s{sS}, s{sS}, 1\ns_branch K2_slice")
    e(f"s_cmp_eq_u32 s{sMode}, 0\ns_cbranch_scc1 K2_epi")
    e(f"s_add_u32 s{sLo}, s{sLo}, {CAP}\ns_cmp_ge_u32 s{sLo}, s{sTot}\ns_cbranch_scc1 K2_epi")
    e("s_waitcnt vmcnt(0)\ns_branch K2_round")
    e("K2_epi:")
    e(f"s_cmp_ge_u32 s{sWave}, 8\ns_cbranch_scc1 K2_fin")
    e(f"v_mbcnt_lo_u32_b32 v2, -1, 0\nv_mbcnt_hi_u32_b32 v2, -1, v2")
    e(f"v_and_b32 v3, 15, v2\nv_lshrrev_b32 v1, 4, v2\nv_lshlrev_b32 v1, 3, v1\nv_lshl_add_u32 v1, v3, 10, v1")
    e(f"v_mov_b32 v0, {OOB}\nv_cmp_gt_u32 vcc, 8, v3\ns_mul_i32 s{sT0}, s{sB}, {NPB*1024}\ns_lshl_b32 s{sT1}, s{sWave}, 5\ns_add_u32 s40, s{sT0}, s{sT1}")
    e(f"v_cndmask_b32 v0, v0, v1, vcc")
    e("s_add_u32 s41, s40, 16384\ns_add_u32 s42, s41, 16384")
    e("s_mov_b32 s43, 0xbfb8aa3b")
    for mt in range(3):
        a0=vA2+mt*4
        g=vXA
        for r in range(4): e(f"v_mul_f32 v{g+r}, s43, v{a0+r}")
        for r in range(4): e(f"v_exp_f32 v{g+r}, v{g+r}")
        e("s_nop 0")
        for r in range(4): e(f"v_add_f32 v{g+r}, 1.0, v{g+r}")
        for r in range(4): e(f"v_rcp_f32 v{g+r}, v{g+r}")
        pk=vA1+mt*8 if mt<2 else vCF
        e(f"v_cvt_pk_bf16_f32 v{pk}, v{a0}, v{a0+1}\nv_cvt_pk_bf16_f32 v{pk+1}, v{a0+2}, v{a0+3}")
        for o in range(1,4):
            a=vA2+(o*3+mt)*4
            for r in range(4): e(f"v_mul_f32 v{a+r}, v{a+r}, v{g+r}")
            e(f"v_cvt_pk_bf16_f32 v{pk+2*o}, v{a}, v{a+1}\nv_cvt_pk_bf16_f32 v{pk+2*o+1}, v{a+2}, v{a+3}")
        for o in range(4):
            e(f"buffer_store_dwordx2 {vr(pk+2*o,2)}, v{0 if mt==2 else 1}, s[{sOUT}:{sOUT+3}], s{40+mt} offen offset:{o*256}")
    e("K2_fin:")
    stamp(6)
    if ts:
        e("s_waitcnt vmcnt(0)")
        stamp(7)
        e(f"v_mbcnt_lo_u32_b32 v2, -1, 0\nv_mbcnt_hi_u32_b32 v2, -1, v2\nv_lshlrev_b32 v2, 2, v2")
        e(f"s_mul_i32 s40, s{sB}, 10\ns_add_u32 s40, s40, s{sWave}\ns_lshl_b32 s40, s40, 8\ns_add_u32 s40, s40, {5<<20}")
        e(f"s_mov_b32 s{sWS+2}, {8<<20}\nbuffer_store_dword v{NV}, v2, s[{sWS}:{sWS+3}], s40 offen")
    e("s_waitcnt vmcnt(0) lgkmcnt(0)\ns_endpgm")
    e("K2_overflow:")
    e(f"s_cmp_lg_u32 s{sMode}, 0\ns_cbranch_scc1 K2_nover")
    e(f"s_mov_b32 s{sMode}, 1\ns_mov_b32 s{sLo}, 0")
    e(f"v_lshlrev_b32 v{t0}, 2, v{P}\nv_add_u32 v{t0}, {PREF_OFF}, v{t0}")
    e(f"ds_write_b32 v{t0}, v{CNT}")
    e("s_waitcnt lgkmcnt(0)\ns_barrier")
    e(f"v_mov_b32 v{RB}, 0\nv_mov_b32 v{HI}, 0\ns_mov_b32 s{sT0}, 0")
    e("K2_pl:")
    e(f"s_lshl_b32 s{sT1}, s{sT0}, 2\ns_add_u32 s{sT1}, s{sT1}, {PREF_OFF}\nv_mov_b32 v{t1}, s{sT1}\nds_read_b32 v{t1}, v{t1}")
    e(f"v_cmp_lt_u32 vcc, s{sT0}, v{P}")
    e("s_waitcnt lgkmcnt(0)")
    e(f"v_add_u32 v{HI}, v{HI}, v{t1}\nv_cndmask_b32 v{t1}, 0, v{t1}, vcc\nv_add_u32 v{RB}, v{RB}, v{t1}")
    e(f"s_add_u32 s{sT0}, s{sT0}, 1\ns_cmp_lt_u32 s{sT0}, 128\ns_cbranch_scc1 K2_pl")
    e("s_barrier")
    e(f"ds_write_b32 v{t0}, v{RB}")
    e(f"v_readfirstlane_b32 s{sTot}, v{HI}")
    e("s_waitcnt vmcnt(0) lgkmcnt(0)\ns_barrier\ns_branch K2_round")
    e("K2_done:\ns_endpgm")
    return e.text()

HEADER=open("standalone__tensor_product_equiv_equiformer__graph.s.ref").read().split("; Override launch geometry")[0]

def desc(name,nv,ns):
    return f""".p2align 6
.amdhsa_kernel {name}
  .amdhsa_next_free_vgpr {nv}
  .amdhsa_next_free_sgpr {ns}
  .amdhsa_accum_offset {(nv+3)//4*4}
  .amdhsa_group_segment_fixed_size 0
  .amdhsa_kernarg_size 96
  .amdhsa_user_sgpr_count 2
  .amdhsa_user_sgpr_kernarg_segment_ptr 1
  .amdhsa_system_sgpr_workgroup_id_x 1
.end_amdhsa_kernel"""

def build(opt={}):
    s=HEADER
    s+=f"; Two launches: (1) bin edges by destination + fold weights + prefetch, (2) gather/aggregate + GEMM + gate.\n"
    K1G=opt.get('k1g',144 if opt.get('pf',0)==0 else 256)
    L1=f"; @launch kernel={K1} grid=({K1G},1,1) block=(640,1,1) lds={K1_LDS}\n"
    L2=f"; @launch kernel={K2} grid=({NB},1,1) block=(640,1,1) lds={K2_LDS}\n"
    L0=f"; @launch kernel=eqf_nop_kernel grid=(1,1,1) block=(64,1,1) lds=0\n"
    seq=opt.get('seq','12')
    for ch in str(seq): s+={'1':L1,'2':L2,'0':L0}[ch]
    s+='.amdgcn_target "amdgcn-amd-amdhsa--gfx950"\n.text\n'
    s+=gen_k1(opt)+"\n"+gen_k2(opt)+"\n"
    if '0' in str(seq): s+=".globl eqf_nop_kernel\n.p2align 8\n.type eqf_nop_kernel,@function\neqf_nop_kernel:\n    s_endpgm\n"
    s+='.section .rodata,"a"\n'+(".p2align 7\n" if opt.get('kdal') else "")+desc(K1,76 if opt.get("ts") else 72,64)+"\n"+desc(K2,NV+(1 if opt.get("ts") else 0),64)+"\n"
    if '0' in str(seq): s+=desc("eqf_nop_kernel",8,16)+"\n"
    for m in re.finditer(r"buffer_\w+ .*offset:(\d+)", s):
        assert int(m.group(1))<4096, m.group(0)
    for m in re.finditer(r"ds_\w+ .*offset:(\d+)", s):
        assert int(m.group(1))<65536, m.group(0)
    return s

if __name__=="__main__":
    out=sys.argv[1] if len(sys.argv)>1 else "standalone__tensor_product_equiv_equiformer__graph.s"
    opt={}
    for a in sys.argv[2:]:
        k,v=a.split("="); opt[k]=eval(v)
    open(out,"w").write(build(opt))
    print("wrote",out)
```

```python
import re, sys

N=10000; E=320000
NPROD=128; EPW=2500
NB=250; NPB=40
TAB_OFF=0; WF_OFF=131072; REC_OFF=294912
WS_USED=REC_OFF+NPROD*EPW*12
XBYTES=N*1024
OOB=0x40000000
CAP=192
RING=12288
S_OFF=10*RING
S_T=5136; S_KS=2560
IDX_OFF=S_OFF+4*S_T
GC_OFF=IDX_OFF+10*768
PREF_OFF=GC_OFF+64
K2_LDS=PREF_OFF+512
K1_CNT=30016; K1_START=31040; K1_LDS=32064

K1="eqf_bin_kernel"
K2="standalone__tensor_product_equiv_equiformer__graph_kernel"

class A:
    def __init__(s): s.L=[]; s.n=0
    def __call__(s, txt):
        for ln in txt.split("\n"):
            ln=ln.strip()
            if ln: s.L.append(ln)
    def lab(s, base):
        s.n+=1; return f"{base}_{s.n}"
    def text(s):
        out=[]
        for l in s.L:
            out.append(l if l.endswith(":") or l.startswith(".") else "    "+l)
        return "\n".join(out)

def vr(a,n): return f"v[{a}:{a+n-1}]"
def sr(a,n): return f"s[{a}:{a+n-1}]"

def srd(e, d, plo, nbytes):
    e(f"s_mov_b32 s{d}, s{plo}\ns_mov_b32 s{d+1}, s{plo+1}\ns_mov_b32 s{d+2}, {nbytes}\ns_mov_b32 s{d+3}, 0x20000")

def gen_k1(opt):
    e=A()
    ts=opt.get('ts')
    TV=72
    def stamp(k):
        if not ts: return
        e(f"s_memrealtime s[60:61]\ns_waitcnt lgkmcnt(0)\nv_writelane_b32 v{TV}, s60, {k}")
    def dump():
        if not ts: return
        e("s_waitcnt vmcnt(0)")
        stamp(7)
        e(f"v_mbcnt_lo_u32_b32 v2, -1, 0\nv_mbcnt_hi_u32_b32 v2, -1, v2\nv_lshlrev_b32 v2, 2, v2")
        e(f"v_lshrrev_b32 v1, 6, v0\ns_nop 1\nv_readfirstlane_b32 s58, v1")
        e(f"s_mul_i32 s59, s2, 10\ns_add_u32 s59, s59, s58\ns_lshl_b32 s59, s59, 8\ns_add_u32 s59, s59, {6<<20}")
        e(f"s_mov_b32 s40, s20\ns_mov_b32 s41, s21\ns_mov_b32 s42, {8<<20}\ns_mov_b32 s43, 0x20000")
        e(f"buffer_store_dword v{TV}, v2, s[40:43], s59 offen")
    e(f".globl {K1}\n.p2align 8\n.type {K1},@function\n{K1}:")
    K1G=opt.get('k1g',144 if opt.get('pf',0) in (0,4) else 256)
    e(f"s_cmp_ge_u32 s2, {K1G}\ns_cbranch_scc1 K1_done")
    if ts: e(f"v_mov_b32 v{TV}, 0")
    stamp(0)
    e("s_load_dwordx4 s[4:7], s[0:1], 0")
    e("s_load_dwordx4 s[8:11], s[0:1], 16")
    e("s_load_dwordx4 s[12:15], s[0:1], 32")
    e("s_load_dwordx4 s[16:19], s[0:1], 48")
    e("s_load_dwordx2 s[20:21], s[0:1], 88")
    e("s_cmp_ge_u32 s2, 128\ns_cbranch_scc1 K1_helper")
    e("v_lshlrev_b32 v1, 2, v0\nv_mov_b32 v2, 0")
    e("v_cmp_gt_u32 vcc, 0x100, v0\ns_and_saveexec_b64 s[22:23], vcc")
    e(f"ds_write_b32 v1, v2 offset:{K1_CNT}")
    e("s_mov_b64 exec, s[22:23]")
    e("v_lshlrev_b32 v1, 4, v0")
    e("v_mul_u32_u24 v2, 24, v0")
    e("v_lshlrev_b32 v3, 3, v0")
    e("s_mul_i32 s44, s2, 10000\ns_mul_i32 s45, s2, 15000\ns_mul_i32 s46, s2, 5000")
    e("v_cmp_gt_u32 vcc, 0x271, v0")
    e("s_waitcnt lgkmcnt(0)")
    stamp(1)
    srd(e,24,10,E*4)
    srd(e,28,12,E*4)
    srd(e,32,6,E*6)
    srd(e,36,8,E*2)
    srd(e,40,20,WS_USED)
    if opt.get('k1nost'): e("s_mov_b32 s42, 0")
    e("s_and_saveexec_b64 s[48:49], vcc")
    e("s_mov_b64 s[50:51], exec")
    e("buffer_load_dwordx4 v[8:11], v1, s[28:31], s44 offen")
    e("buffer_load_dwordx4 v[4:7], v1, s[24:27], s44 offen")
    e("buffer_load_dwordx2 v[18:19], v3, s[36:39], s46 offen")
    e("buffer_load_dwordx4 v[12:15], v2, s[32:35], s45 offen")
    e("buffer_load_dwordx2 v[16:17], v2, s[32:35], s45 offen offset:16")
    e("s_barrier")
    e("v_mov_b32 v3, 1")
    e("s_mov_b32 s47, 52429")
    e("s_waitcnt vmcnt(4)")
    stamp(2)
    for r in range(4):
        e(f"v_mul_u32_u24 v{20+r}, s47, v{8+r}")
        e(f"v_lshrrev_b32 v{20+r}, 21, v{20+r}")
        e(f"v_mul_u32_u24 v{24+r}, 40, v{20+r}")
        e(f"v_sub_u32 v{24+r}, v{8+r}, v{24+r}")
        e(f"v_lshlrev_b32 v{20+r}, 2, v{20+r}")
        e(f"ds_add_rtn_u32 v{28+r}, v{20+r}, v3 offset:{K1_CNT}")
    e("s_waitcnt vmcnt(0)")
    stamp(3)
    if opt.get('pf',0)==4:
        srd(e,24,4,XBYTES)
        e("s_lshr_b32 s54, s2, 3\ns_mul_i32 s54, s54, 625\nv_add_u32 v73, s54, v0\nv_lshlrev_b32 v73, 10, v73")
        for k in range(opt.get('pfk',1)):
            e(f"buffer_load_dword v{74+k}, v73, s[24:27], 0 offen offset:{k*256}")
    ylo=lambda d,s: e(f"v_lshlrev_b32 v{d}, 16, v{s}")
    yhi=lambda d,s: e(f"v_and_b32 v{d}, 0xffff0000, v{s}")
    ys=[]
    for k in range(12): ys.append((12+k//2, k&1))
    for r in range(4):
        e(f"v_lshl_or_b32 v{32+4*r}, v{4+r}, 10, v{24+r}")
        (yhi if r&1 else ylo)(48, 18+r//2)
        for j in range(3):
            reg,hi=ys[3*r+j]
            (yhi if hi else ylo)(49+j, reg)
        for j in range(3):
            e(f"v_mul_f32 v{49+j}, v48, v{49+j}")
        e(f"v_cvt_pk_bf16_f32 v{33+4*r}, v48, v49")
        e(f"v_cvt_pk_bf16_f32 v{34+4*r}, v50, v51")
    e("s_mov_b64 exec, s[48:49]")
    e("s_waitcnt lgkmcnt(0)\ns_barrier")
    stamp(4)
    e("v_mbcnt_lo_u32_b32 v52, -1, 0\nv_mbcnt_hi_u32_b32 v52, -1, v52")
    e("v_lshlrev_b32 v53, 4, v52")
    e(f"ds_read_b128 v[56:59], v53 offset:{K1_CNT}")
    e("s_waitcnt lgkmcnt(0)")
    e("v_add_u32 v61, v56, v57\nv_add_u32 v62, v61, v58\nv_add_u32 v63, v62, v59")
    e("v_mov_b32 v54, v63")
    for sh in (1,2,4,8):
        e("s_nop 1")
        e(f"v_add_u32_dpp v54, v54, v54 row_shr:{sh} row_mask:0xf bank_mask:0xf bound_ctrl:0")
    e("s_nop 1\nv_add_u32_dpp v54, v54, v54 row_bcast:15 row_mask:0xa bank_mask:0xf")
    e("s_nop 1\nv_add_u32_dpp v54, v54, v54 row_bcast:31 row_mask:0xc bank_mask:0xf")
    e("v_sub_u32 v64, v54, v63")
    e("v_add_u32 v65, v64, v56\nv_add_u32 v66, v64, v61\nv_add_u32 v67, v64, v62")
    e(f"ds_write_b128 v53, v[64:67] offset:{K1_START}")
    e("v_readfirstlane_b32 s52, v0")
    for r in range(4):
        e(f"v_lshl_or_b32 v{68+r}, v{56+r}, 16, v{64+r}")
    e("s_cmp_lg_u32 s52, 0\ns_cbranch_scc1 K1_notab")
    e(f"s_lshl_b32 s53, s2, 10")
    ST=opt.get('st','')
    e(f"buffer_store_dwordx4 v[68:71], v53, s[40:43], s53 offen{ST}")
    e("K1_notab:")
    e("s_mov_b64 exec, s[50:51]")
    e("s_waitcnt lgkmcnt(0)")
    for r in range(4):
        e(f"ds_read_b32 v{56+r}, v{20+r} offset:{K1_START}")
    e("s_waitcnt lgkmcnt(0)")
    for r in range(4):
        e(f"v_add_u32 v{56+r}, v{56+r}, v{28+r}")
        e(f"v_mul_u32_u24 v{56+r}, 12, v{56+r}")
        e(f"ds_write2_b32 v{56+r}, v{32+4*r}, v{33+4*r} offset0:0 offset1:1")
        e(f"ds_write_b32 v{56+r}, v{34+4*r} offset:8")
    e("s_mov_b64 exec, s[48:49]")
    e("s_waitcnt lgkmcnt(0)\ns_barrier")
    stamp(5)
    e("v_lshlrev_b32 v1, 4, v0")
    e(f"s_mul_i32 s53, s2, {EPW*12}\ns_add_u32 s53, s53, {REC_OFF}")
    e("ds_read_b128 v[4:7], v1\nds_read_b128 v[8:11], v1 offset:10240\nds_read_b128 v[12:15], v1 offset:20480")
    e("v_add_u32 v2, 10240, v1\nv_add_u32 v3, 20480, v1")
    e(f"v_cmp_gt_u32 vcc, {1875-1280}, v0")
    e(f"s_waitcnt lgkmcnt(2)\nbuffer_store_dwordx4 v[4:7], v1, s[40:43], s53 offen{ST}")
    e(f"s_waitcnt lgkmcnt(1)\nbuffer_store_dwordx4 v[8:11], v2, s[40:43], s53 offen{ST}")
    e("s_and_saveexec_b64 s[22:23], vcc")
    e("s_cbranch_execz K1_pend")
    e(f"s_waitcnt lgkmcnt(0)\nbuffer_store_dwordx4 v[12:15], v3, s[40:43], s53 offen{ST}")
    e("K1_pend:")
    if ts:
        e("s_mov_b64 exec, -1")
        stamp(6)
        dump()
    e("s_waitcnt vmcnt(0) lgkmcnt(0)\ns_endpgm")
    e("K1_helper:")
    e("s_sub_u32 s22, s2, 128")
    e("v_lshrrev_b32 v1, 6, v0\nv_and_b32 v2, 63, v0")
    e("s_mul_i32 s23, s22, 640\nv_add_u32 v3, s23, v0\nv_lshlrev_b32 v3, 7, v3")
    e("v_readfirstlane_b32 s44, v1")
    e("s_lshr_b32 s23, s22, 3\ns_mul_i32 s23, s23, 625\nv_add_u32 v4, s23, v0\nv_lshlrev_b32 v4, 10, v4")
    e("s_waitcnt lgkmcnt(0)")
    stamp(1)
    srd(e,24,4,XBYTES)
    e("s_cmp_ge_u32 s22, 16\ns_cbranch_scc1 K1_pf")
    if opt.get('pfc'):
        e("s_getpc_b64 s[56:57]\nK1_pcb:")
        e(f"s_add_u32 s56, s56, {K2}-K1_pcb\ns_addc_u32 s57, s57, 0")
        e("v_lshlrev_b32 v60, 7, v2\nv_mov_b32 v61, s57\nv_add_co_u32 v60, vcc, s56, v60\nv_addc_co_u32 v61, vcc, 0, v61, vcc")
        e("global_load_dword v62, v[60:61], off")
        e("v_add_co_u32 v60, vcc, 0x2000, v60\nv_addc_co_u32 v61, vcc, 0, v61, vcc")
        e("v_cmp_gt_u32 vcc, 32, v2\ns_and_saveexec_b64 s[58:59], vcc\nglobal_load_dword v63, v[60:61], off\ns_mov_b64 exec, s[58:59]")
    srd(e,28,14,1280)
    srd(e,32,16,256*256)
    srd(e,36,18,384*256)
    srd(e,40,20,WS_USED)
    e("s_mul_i32 s45, s22, 10\ns_add_u32 s45, s45, s44")
    e("s_and_b32 s46, s45, 1")
    e("s_lshr_b32 s47, s45, 1")
    e("s_mul_i32 s48, s47, 52429\ns_lshr_b32 s48, s48, 18")
    e("s_mul_i32 s49, s48, 5\ns_sub_u32 s49, s47, s49")
    e("s_and_b32 s50, s48, 7\ns_lshr_b32 s51, s48, 3")
    e("s_lshl_b32 s52, s51, 6\ns_lshl_b32 s53, s46, 5\ns_add_u32 s52, s52, s53")
    e("v_lshrrev_b32 v5, 4, v2\nv_and_b32 v6, 15, v2")
    e("v_lshlrev_b32 v7, 10, v5\nv_lshl_add_u32 v7, v6, 1, v7")
    e("v_lshlrev_b32 v8, 3, v5")
    e("s_lshl_b32 s53, s49, 7\ns_add_u32 s53, s53, s52\ns_lshl_b32 s53, s53, 1")
    e("buffer_load_dwordx2 v[10:11], v8, s[28:31], s53 offen")
    e("buffer_load_dwordx2 v[12:13], v8, s[28:31], s53 offen offset:32")
    e("s_cmp_ge_u32 s49, 2\ns_cbranch_scc1 K1_w1")
    for (lab,sub,R) in (("",0,32),("K1_w1:",2,36)):
        if lab: e(lab)
        e(f"s_sub_u32 s54, s49, {sub}\ns_lshl_b32 s54, s54, 7\ns_add_u32 s54, s54, s52\ns_lshl_b32 s54, s54, 8")
        e("s_lshl_b32 s55, s50, 5\ns_add_u32 s54, s54, s55\ns_add_u32 s55, s54, 4096")
        for j in range(4): e(f"buffer_load_ushort v{16+j}, v7, s[{R}:{R+3}], s54 offen offset:{j*256}")
        for j in range(4): e(f"buffer_load_ushort v{20+j}, v7, s[{R}:{R+3}], s55 offen offset:{j*256}")
        if not lab: e("s_branch K1_wj")
    e("K1_wj:")
    PF=opt.get('pf',0)
    def pfl():
        if PF>=3: return
        if PF>=1: e("buffer_load_dword v30, v3, s[24:27], 0 offen")
        if PF>=2: e("buffer_load_dword v31, v3, s[24:27], 0 offen offset:64")
        if PF>=1: e("buffer_load_dword v32, v4, s[24:27], 0 offen")
        if PF>=2: e("buffer_load_dword v33, v4, s[24:27], 0 offen offset:64")
    pfl()
    npf=2*PF if PF<3 else 0
    e(f"s_waitcnt vmcnt({npf})")
    for j in range(8):
        src=10+j//2
        if j&1: e(f"v_and_b32 v24, 0xffff0000, v{src}")
        else:   e(f"v_lshlrev_b32 v24, 16, v{src}")
        e(f"v_lshlrev_b32 v{16+j}, 16, v{16+j}")
        e(f"v_mul_f32 v{16+j}, v24, v{16+j}")
    for k in range(4): e(f"v_cvt_pk_bf16_f32 v{40+k}, v{16+2*k}, v{17+2*k}")
    e(f"s_lshl_b32 s54, s45, 10\ns_add_u32 s54, s54, {WF_OFF}")
    e("v_lshlrev_b32 v9, 4, v2")
    e(f"buffer_store_dwordx4 v[40:43], v9, s[40:43], s54 offen{ST}")
    dump()
    e("s_waitcnt vmcnt(0)\ns_endpgm")
    e("K1_pf:")
    if PF==3:
        PFK=opt.get('pfk',2)
        e("s_sub_u32 s23, s2, 144\ns_lshr_b32 s23, s23, 3\ns_mul_i32 s23, s23, 715")
        e("v_add_u32 v3, s23, v0\nv_lshlrev_b32 v3, 10, v3")
        e(f"v_add_u32 v4, {640*1024}, v3\nv_mov_b32 v5, {OOB}\nv_cmp_gt_u32 vcc, 75, v0\nv_cndmask_b32 v4, v5, v4, vcc")
        for k in range(PFK):
            e(f"buffer_load_dword v{30+2*k}, v3, s[24:27], 0 offen offset:{k*256}")
            e(f"buffer_load_dword v{31+2*k}, v4, s[24:27], 0 offen offset:{k*256}")
    else: pfl()
    e("s_waitcnt vmcnt(0)")
    dump()
    e("K1_done:\ns_endpgm")
    return e.text()

vAd=0; vP=2; vT=4; vID=8
vXA=20; vA1=36; vCF=52; vW=76; vA2=116; vSW=164; vSR=165; NV=166
sXR=8; sWS=12; sOUT=16
sWave=20; sNch=21; sRing=22; sOffC=24; sOffN=25; sS=28; sWb=29
sLo=34; sMode=35; sTot=36; sT0=37; sT1=38; sFirst=39
sK1024=50; sB=52; sWo=53
IDS=512
STG=6144

def gen_k2(opt):
    e=A()
    ts=opt.get('ts')
    DPOS=opt.get('dpos',[1,4,7,10,13,16,19,22])
    PRE=opt.get('pre',1)
    def stamp(k):
        if not ts: return
        e(f"s_memrealtime s[56:57]\ns_waitcnt lgkmcnt(0)")
        if isinstance(k,int): e(f"v_writelane_b32 v{NV}, s56, {k}")
        else:
            e(f"s_add_u32 m0, {k[0]}, {k[1]}\nv_writelane_b32 v{NV}, s56, m0")
    adn=[0]
    def dma(c,i,soff):
        ad=vAd+(adn[0]&1); adn[0]+=1
        e(f"s_add_u32 m0, s{sRing}, {(c%3)*4096+i*1024}")
        e(f"v_mad_u32_u16 v{ad}, v{vID+2*c+(i>>1)}, s{sK1024}, v{vP+(i&1)} op_sel:[{i&1},0,0,0]")
        e(f"buffer_load_dwordx4 v{ad}, s[{sXR}:{sXR+3}], s{soff} offen lds")
    def wload(ks_, hexpr):
        e(f"v_mbcnt_lo_u32_b32 v{vAd+1}, -1, 0\nv_mbcnt_hi_u32_b32 v{vAd+1}, -1, v{vAd+1}\nv_lshlrev_b32 v{vAd+1}, 4, v{vAd+1}")
        cur=0
        for k in ks_:
            while cur<k//4:
                e(f"s_add_u32 s{hexpr}, s{hexpr}, 4096"); cur+=1
            e(f"buffer_load_dwordx4 {vr(vW+4*k,4)}, v{vAd+1}, s[{sWS}:{sWS+3}], s{hexpr} offen offset:{(k%4)*1024}")
    AC=[0,1,4,5]; BDE=[2,3,6,7,8,9]
    e(f".globl {K2}\n.p2align 8\n.type {K2},@function\n{K2}:")
    e(f"s_cmp_ge_u32 s2, {NB}\ns_cbranch_scc1 K2_done")
    if ts: e(f"v_mov_b32 v{NV}, 0")
    stamp(0)
    if opt.get('k2exit'):
        e(f"s_load_dwordx2 s[{sWS}:{sWS+1}], s[0:1], 88\nv_lshrrev_b32 v1, 6, v0\ns_mov_b32 s{sB}, s2\ns_nop 1\nv_readfirstlane_b32 s{sWave}, v1\ns_mov_b32 s{sWS+3}, 0x20000\ns_waitcnt lgkmcnt(0)\ns_branch K2_fin")
    e(f"s_load_dwordx2 s[{sXR}:{sXR+1}], s[0:1], 0")
    e(f"s_load_dwordx2 s[{sWS}:{sWS+1}], s[0:1], 88")
    e(f"s_load_dwordx2 s[{sOUT}:{sOUT+1}], s[0:1], 72")
    e("v_lshrrev_b32 v1, 6, v0")
    e(f"s_mov_b32 s{sB}, s2")
    e(f"v_readfirstlane_b32 s{sWave}, v1")
    e(f"s_mov_b32 s{sK1024}, 1024")
    e(f"s_mov_b32 s{sMode}, 0\ns_mov_b32 s{sLo}, 0\ns_mov_b32 s{sTot}, 0")
    e(f"s_mov_b32 s{sXR+2}, {XBYTES}\ns_mov_b32 s{sXR+3}, 0x20000\ns_mov_b32 s{sWS+2}, {WS_USED}\ns_mov_b32 s{sWS+3}, 0x20000")
    e(f"s_mov_b32 s{sOUT+2}, {XBYTES}\ns_mov_b32 s{sOUT+3}, 0x20000")
    for r in range(48): e(f"v_mov_b32 v{vA2+r}, 0")
    e(f"s_mul_i32 s{sRing}, s{sWave}, {RING}")
    e(f"s_mul_i32 s{sWb}, s{sWave}, 10240\ns_add_u32 s{sWb}, s{sWb}, {WF_OFF}")
    e("s_waitcnt lgkmcnt(0)")
    stamp(1)
    e("K2_round:")
    L,TID,P,SUB,TABV,RB,II,HI,CNT,t0,t1,CA,i16,G,r_,cc=range(100,116)
    e(f"v_mbcnt_lo_u32_b32 v{L}, -1, 0\nv_mbcnt_hi_u32_b32 v{L}, -1, v{L}")
    e(f"s_lshl_b32 s{sT0}, s{sWave}, 6\nv_add_u32 v{TID}, s{sT0}, v{L}")
    e(f"s_mov_b32 s{sT1}, 52429\nv_mul_u32_u24 v{P}, s{sT1}, v{TID}\nv_lshrrev_b32 v{P}, 18, v{P}")
    e(f"v_lshlrev_b32 v{t0}, 10, v{P}\ns_lshl_b32 s{sT0}, s{sB}, 2")
    e(f"buffer_load_dword v{TABV}, v{t0}, s[{sWS}:{sWS+3}], s{sT0} offen")
    e(f"v_mul_u32_u24 v{SUB}, 5, v{P}\nv_sub_u32 v{SUB}, v{TID}, v{SUB}")
    Z=vXA
    for r in range(4): e(f"v_mov_b32 v{Z+r}, 0")
    e(f"v_lshlrev_b32 v{t1}, 4, v{L}\nv_add_u32 v{t1}, s{sRing}, v{t1}")
    for k in range(6): e(f"ds_write_b128 v{t1}, {vr(Z,4)} offset:{STG+k*1024}")
    e(f"s_mul_i32 s{sT0}, s{sWave}, {IDS}\ns_add_u32 s{sT0}, s{sT0}, {IDX_OFF}")
    e(f"v_lshlrev_b32 v{Z+4}, 2, v{L}\nv_add_u32 v{Z+4}, s{sT0}, v{Z+4}\nv_mov_b32 v{Z+5}, -1")
    for k in range(2): e(f"ds_write_b32 v{Z+4}, v{Z+5} offset:{k*256}")
    e(f"v_and_b32 v{Z+6}, 15, v{L}\nv_lshlrev_b32 v{Z+6}, 2, v{Z+6}\nv_add_u32 v{Z+6}, {GC_OFF}, v{Z+6}")
    e(f"ds_write_b32 v{Z+6}, v{Z}")
    e(f"v_and_b32 v{i16}, 15, v{L}\nv_lshrrev_b32 v{G}, 4, v{L}\nv_lshrrev_b32 v{r_}, 2, v{i16}\nv_and_b32 v{cc}, 3, v{L}")
    e(f"v_lshl_add_u32 v{t0}, v{G}, 3, v{r_}")
    e(f"v_lshlrev_b32 v{t0}, 7, v{t0}\nv_lshl_add_u32 v{t0}, v{cc}, 3, v{t0}\nv_add_u32 v{t0}, s{sRing}, v{t0}")
    e(f"v_lshrrev_b32 v{t1}, 1, v{r_}\nv_and_b32 v{Z+7}, 1, v{G}\nv_lshl_add_u32 v{t1}, v{Z+7}, 1, v{t1}")
    e(f"v_lshl_add_u32 v{vT}, v{t1}, 5, v{t0}")
    for ct in range(1,4): e(f"v_xor_b32 v{vT+ct}, {ct*32}, v{vT}")
    IB=Z+8
    e(f"v_lshrrev_b32 v{t0}, 3, v{L}\nv_lshlrev_b32 v{t0}, 2, v{t0}\nv_add_u32 v{IB}, s{sT0}, v{t0}")
    e(f"v_and_b32 v{t0}, 7, v{L}\nv_and_b32 v{t1}, 1, v{G}\nv_lshlrev_b32 v{t1}, 1, v{t1}\nv_xor_b32 v{t0}, v{t0}, v{t1}")
    e(f"v_lshlrev_b32 v{vP}, 4, v{t0}\nv_xor_b32 v{vP+1}, 64, v{vP}")
    e(f"s_lshl_b32 s{sT1}, s{sWave}, 2\nv_add_u32 v{t0}, s{sT1}, v{r_}")
    e(f"v_and_b32 v{t1}, 8, v{t0}\nv_lshrrev_b32 v{t1}, 2, v{t1}\nv_xor_b32 v{t1}, v{t1}, v{G}")
    e(f"v_lshlrev_b32 v{t0}, 6, v{t0}\nv_lshl_add_u32 v{t0}, v{t1}, 4, v{t0}")
    e(f"v_mul_u32_u24 v{t1}, {S_T}, v{cc}\nv_add_u32 v{t0}, v{t0}, v{t1}\nv_add_u32 v{vSW}, {S_OFF}, v{t0}")
    e(f"v_and_b32 v{t1}, 8, v{i16}\nv_lshrrev_b32 v{t1}, 2, v{t1}\nv_xor_b32 v{t1}, v{t1}, v{G}")
    e(f"v_lshlrev_b32 v{t0}, 6, v{i16}\nv_lshl_add_u32 v{t0}, v{t1}, 4, v{t0}\nv_add_u32 v{vSR}, {S_OFF}, v{t0}")
    e(f"v_lshlrev_b32 v{CA}, 8, v{G}\nv_lshl_add_u32 v{CA}, v{i16}, 3, v{CA}\nv_add_u32 v{CA}, s{sRing}, v{CA}")
    e("s_waitcnt lgkmcnt(0)\ns_barrier")
    e("s_waitcnt vmcnt(0)")
    stamp(2)
    e(f"v_lshrrev_b32 v{CNT}, 16, v{TABV}\nv_and_b32 v{RB}, 0xffff, v{TABV}")
    e(f"v_mul_u32_u24 v{t0}, {EPW}, v{P}\nv_add_u32 v{RB}, v{RB}, v{t0}\nv_mul_u32_u24 v{RB}, 12, v{RB}")
    e(f"s_cmp_eq_u32 s{sMode}, 0\ns_cbranch_scc0 K2_slowwin")
    e(f"v_mov_b32 v{II}, v{SUB}\nv_mov_b32 v{HI}, v{CNT}")
    e("s_branch K2_winok")
    e("K2_slowwin:")
    e(f"v_lshlrev_b32 v{t0}, 2, v{P}\nv_add_u32 v{t0}, {PREF_OFF}, v{t0}\nds_read_b32 v{t0}, v{t0}")
    e("s_waitcnt lgkmcnt(0)")
    e(f"v_sub_u32 v{t0}, s{sLo}, v{t0}")
    e(f"v_add_u32 v{t1}, {CAP}, v{t0}")
    e(f"v_med3_i32 v{t0}, v{t0}, 0, v{CNT}\nv_med3_i32 v{HI}, v{t1}, 0, v{CNT}")
    e(f"v_add_u32 v{II}, v{t0}, v{SUB}")
    e("K2_winok:")
    e(f"s_mov_b32 s{sFirst}, 1")
    R=36
    e("K2_bin:")
    for r in range(5):
        e(f"v_add_u32 v{t0}, {5*r}, v{II}")
        e(f"v_cmp_lt_u32 vcc, v{t0}, v{HI}")
        e(f"v_mul_u32_u24 v{t0}, 12, v{t0}\nv_add_u32 v{t0}, v{t0}, v{RB}")
        e(f"s_mov_b64 s[{40+2*r}:{41+2*r}], vcc")
        e(f"v_mov_b32 v{t1}, {OOB}\nv_cndmask_b32 v{R+4*r+3}, v{t1}, v{t0}, vcc")
    e(f"s_mov_b32 s{sT0}, {REC_OFF}")
    for r in range(5):
        e(f"buffer_load_dwordx3 v[{R+4*r}:{R+4*r+2}], v{R+4*r+3}, s[{sWS}:{sWS+3}], s{sT0} offen")
    e(f"s_cmp_eq_u32 s{sFirst}, 0\ns_cbranch_scc1 K2_bin_w0")
    e(f"s_mov_b32 s{sFirst}, 0")
    e(f"s_cmp_ge_u32 s{sWave}, 8\ns_cbranch_scc1 K2_bin_w0")
    e(f"s_mov_b32 s{sWo}, s{sWb}")
    wload(AC,sWo)
    e("s_waitcnt vmcnt(4)\ns_branch K2_bin_go")
    e("K2_bin_w0:")
    e("s_waitcnt vmcnt(0)")
    e("K2_bin_go:")
    stamp(3)
    e(f"v_mov_b32 v{t1}, 1\ns_mov_b32 s{sT1}, {GC_OFF}")
    assert GC_OFF%64==0
    for r in range(5):
        lab=e.lab("K2_ba")
        e(f"s_mov_b64 exec, s[{40+2*r}:{41+2*r}]\ns_cbranch_execz {lab}")
        e(f"v_and_or_b32 v{t0}, v{R+4*r}, 60, s{sT1}")
        e(f"ds_add_rtn_u32 v{R+4*r+3}, v{t0}, v{t1}")
        e(f"{lab}:")
    e("s_mov_b64 exec, -1\ns_waitcnt lgkmcnt(0)")
    e(f"s_movk_i32 s{sT1}, {CAP}")
    for r in range(5):
        lab=e.lab("K2_bw")
        w0=R+4*r; rk=w0+3
        u=Z+10
        e(f"s_mov_b64 exec, s[{40+2*r}:{41+2*r}]\ns_cbranch_execz {lab}")
        e(f"v_cmp_gt_u32 vcc, s{sT1}, v{rk}\ns_and_b64 exec, exec, vcc")
        e(f"v_bfe_u32 v{t0}, v{w0}, 2, 4")
        e(f"v_and_b32 v{u}, 0xf0, v{rk}\nv_lshlrev_b32 v{t1}, 9, v{t0}\nv_lshl_add_u32 v{t1}, v{u}, 1, v{t1}")
        e(f"v_and_b32 v{u}, 7, v{rk}\nv_lshl_add_u32 v{t1}, v{u}, 2, v{t1}")
        e(f"v_bfe_u32 v{u}, v{rk}, 3, 1\nv_lshl_add_u32 v{t1}, v{u}, 1, v{t1}")
        e(f"v_mul_u32_u24 v{t0}, {RING}, v{t0}\nv_lshl_add_u32 v{t0}, v{rk}, 5, v{t0}")
        e(f"v_and_b32 v{rk}, 3, v{w0}\nv_lshl_add_u32 v{t0}, v{rk}, 3, v{t0}")
        e(f"v_lshrrev_b32 v{w0}, 10, v{w0}")
        e(f"v_add_u32 v{t1}, {IDX_OFF}, v{t1}\nds_write_b16 v{t1}, v{w0}")
        e(f"v_add_u32 v{t0}, {STG}, v{t0}")
        e(f"ds_write2_b32 v{t0}, v{w0+1}, v{w0+2} offset0:0 offset1:1")
        e(f"{lab}:")
    e("s_mov_b64 exec, -1")
    e(f"v_add_u32 v{II}, 25, v{II}\nv_cmp_lt_u32 vcc, v{II}, v{HI}")
    e("s_cbranch_vccnz K2_bin")
    e("s_waitcnt lgkmcnt(0)\ns_barrier")
    stamp(4)
    e(f"v_and_b32 v{t0}, 15, v{L}\nv_lshlrev_b32 v{t0}, 2, v{t0}\nv_add_u32 v{t0}, {GC_OFF}, v{t0}\nds_read_b32 v{t0}, v{t0}")
    for c in range(6):
        for p in range(2): e(f"ds_read_b32 v{vID+2*c+p}, v{IB} offset:{64*c+32*p}")
    e("s_waitcnt lgkmcnt(12)")
    e(f"v_cmp_lt_u32 vcc, {CAP}, v{t0}")
    e(f"v_readlane_b32 s{sNch}, v{t0}, s{sWave}")
    e("s_cbranch_vccnz K2_overflow")
    e("K2_nover:")
    for c in range(6):
        e(f"ds_read_b64_tr_b16 {vr(vCF+4*c,2)}, v{CA} offset:{STG+c*1024}")
        e(f"ds_read_b64_tr_b16 {vr(vCF+4*c+2,2)}, v{CA} offset:{STG+c*1024+128}")
    e(f"s_add_u32 s{sNch}, s{sNch}, 31\ns_lshr_b32 s{sNch}, s{sNch}, 5\ns_max_u32 s{sNch}, s{sNch}, 1")
    e(f"s_mov_b32 s{sS}, 0\ns_mov_b32 s{sOffC}, 0")
    e("s_waitcnt lgkmcnt(12)")
    for i in range(4): dma(0,i,sOffC)
    e("s_waitcnt lgkmcnt(0)")
    for c in (1,2):
        for i in range(4): dma(c,i,sOffC)
    stamp(5)
    e("K2_slice:")
    for n in (4,5,3,6,2): e(f"s_cmp_eq_u32 s{sNch}, {n}\ns_cbranch_scc1 K2_n{n}")
    for n in (1,2,3,6,5,4):
        e(f"K2_n{n}:")
        for c in range(n):
            issued=max(n,3) if c==0 else None
            last=min(max(n,3)-1, c+2)
            e(f"s_waitcnt vmcnt({4*(last-c)})")
            for ct in range(4):
                e(f"ds_read_b64_tr_b16 {vr(vXA+4*ct,2)}, v{vT+ct} offset:{(c%3)*4096}")
                e(f"ds_read_b64_tr_b16 {vr(vXA+4*ct+2,2)}, v{vT+ct} offset:{(c%3)*4096+512}")
            for ct in range(4):
                e(f"s_waitcnt lgkmcnt({6-2*ct})")
                C = "0" if c==0 else vr(vA1+4*ct,4)
                e(f"v_mfma_f32_16x16x32_bf16 {vr(vA1+4*ct,4)}, {vr(vXA+4*ct,4)}, {vr(vCF+4*c,4)}, {C}")
            if c+3<n:
                for i in range(4): dma(c+3,i,sOffC)
            if c==0: e("s_barrier")
        if n!=4: e("s_branch K2_gap")
    e("K2_gap:")
    stamp((f"s{sS}",8))
    e(f"s_and_b32 s{sT0}, s{sS}, 3")
    e(f"s_cmp_eq_u32 s{sT0}, 1\ns_cbranch_scc1 K2_gap_1")
    e(f"s_cmp_eq_u32 s{sT0}, 2\ns_cbranch_scc1 K2_gap_2")
    e(f"s_cmp_eq_u32 s{sS}, 3\ns_cbranch_scc1 K2_gap_3")
    e(f"s_cmp_eq_u32 s{sS}, 7\ns_cbranch_scc1 K2_gap_F")
    bufs=[vXA+4*k for k in range(4)]+[vA1+4*k for k in range(4)]
    for var in ('0','1','2','3','F'):
        q=3 if var=='F' else int(var)
        fin = var=='F'
        e(f"K2_gap_{var}:")
        if not fin:
            if q<3: e(f"s_add_u32 s{sOffN}, s{sOffC}, 256")
            else: e(f"s_mov_b32 s{sOffN}, 128")
        if q==0:
            lab=e.lab("K2_nw")
            e(f"s_cmp_ge_u32 s{sWave}, 8\ns_cbranch_scc1 {lab}")
            e(f"s_lshr_b32 s{sWo}, s{sS}, 2\ns_mul_i32 s{sWo}, s{sWo}, 81920\ns_add_u32 s{sWo}, s{sWo}, s{sWb}")
            wload(BDE,sWo)
            e(f"{lab}:")
        if q==1:
            lab=e.lab("K2_nw")
            e(f"s_cmp_ge_u32 s{sWave}, 8\ns_cbranch_scc1 {lab}")
            e(f"s_cmp_lg_u32 s{sS}, 1\ns_cbranch_scc1 {lab}")
            e(f"s_add_u32 s{sWo}, s{sWb}, 81920")
            wload(AC,sWo)
            e(f"{lab}:")
        defer=[] if fin else [(c,i) for c in range(3) for i in range(4)]
        pre=defer[:4*PRE]; post=defer[4*PRE:]
        for (c,i) in pre: dma(c,i,sOffN)
        e("s_nop 7" if not pre else "s_nop 1")
        for ks in range(2):
            for hh in range(2):
                a=vA1+4*(2*ks+hh)
                e(f"v_cvt_pk_bf16_f32 v{vXA+4*ks+2*hh}, v{a}, v{a+1}")
                e(f"v_cvt_pk_bf16_f32 v{vXA+4*ks+2*hh+1}, v{a+2}, v{a+3}")
        if q>0:
            tneg={3:1,1:2,2:3}[q]
            msk=(0x11111111<<tneg)&0xffffffff
            e(f"s_mov_b32 exec_lo, {hex(msk)}\ns_mov_b32 exec_hi, {hex(msk)}")
            for k in range(8): e(f"v_xor_b32 v{vXA+k}, 0x80008000, v{vXA+k}")
            e("s_mov_b64 exec, -1")
        e(f"ds_write_b128 v{vSW}, {vr(vXA,4)}")
        e(f"ds_write_b128 v{vSW}, {vr(vXA+4,4)} offset:{S_KS}")
        e("s_waitcnt lgkmcnt(0)\ns_barrier")
        stamp((f"s{sS}",16))
        e(f"s_cmp_ge_u32 s{sWave}, 8\ns_cbranch_scc1 K2_gw_{var}")
        if q==0: plan=[(0,0,0),(1,2,1),(2,2,2),(3,2,3)]
        else:
            k=q-1; plan=[(0,3,q),(q,1,0)]
            for j in range(3):
                if j!=k: plan.append((1+j,4,1+(3-j-k)))
        items=[(t,m,o,ks,mt) for (t,m,o) in plan for ks in range(2) for mt in range(3)]
        n=len(items); assert n==24
        def rd(i):
            t,m,o,ks,mt=items[i]
            e(f"ds_read_b128 {vr(bufs[i%8],4)}, v{vSR} offset:{t*S_T+ks*S_KS+mt*1024}")
        for i in range(7): rd(i)
        npost=len(post)
        pos=[int(round((j+0.5)*24/npost-1)) for j in range(npost)] if (npost and npost!=8) else (DPOS if npost else [])
        pj=0
        for i in range(n):
            t,m,o,ks,mt=items[i]
            e(f"s_waitcnt lgkmcnt({min(6,n-1-i)})")
            acc=vA2+(o*3+mt)*4
            e(f"v_mfma_f32_16x16x32_bf16 {vr(acc,4)}, {vr(vW+(m*2+ks)*4,4)}, {vr(bufs[i%8],4)}, {vr(acc,4)}")
            if i+7<n: rd(i+7)
            while pj<npost and pos[pj]<=i:
                dma(post[pj][0],post[pj][1],sOffN); pj+=1
        assert pj==npost
        e(f"s_branch K2_gn_{var}")
        e(f"K2_gw_{var}:")
        for (c,i) in post: dma(c,i,sOffN)
        e(f"K2_gn_{var}:")
        stamp((f"s{sS}",24))
        if not fin:
            e(f"s_mov_b32 s{sOffC}, s{sOffN}\ns_add_u32 s{sS}, s{sS}, 1\ns_branch K2_slice")
    e(f"s_cmp_eq_u32 s{sMode}, 0\ns_cbranch_scc1 K2_epi")
    e(f"s_add_u32 s{sLo}, s{sLo}, {CAP}\ns_cmp_ge_u32 s{sLo}, s{sTot}\ns_cbranch_scc1 K2_epi")
    e("s_waitcnt vmcnt(0)\ns_branch K2_round")
    e("K2_epi:")
    e(f"s_cmp_ge_u32 s{sWave}, 8\ns_cbranch_scc1 K2_fin")
    e(f"v_mbcnt_lo_u32_b32 v2, -1, 0\nv_mbcnt_hi_u32_b32 v2, -1, v2")
    e(f"v_and_b32 v3, 15, v2\nv_lshrrev_b32 v1, 4, v2\nv_lshlrev_b32 v1, 3, v1\nv_lshl_add_u32 v1, v3, 10, v1")
    e(f"v_mov_b32 v0, {OOB}\nv_cmp_gt_u32 vcc, 8, v3\ns_mul_i32 s{sT0}, s{sB}, {NPB*1024}\ns_lshl_b32 s{sT1}, s{sWave}, 5\ns_add_u32 s40, s{sT0}, s{sT1}")
    e(f"v_cndmask_b32 v0, v0, v1, vcc")
    e("s_add_u32 s41, s40, 16384\ns_add_u32 s42, s41, 16384")
    e("s_mov_b32 s43, 0xbfb8aa3b")
    for mt in range(3):
        a0=vA2+mt*4
        g=vXA
        for r in range(4): e(f"v_mul_f32 v{g+r}, s43, v{a0+r}")
        for r in range(4): e(f"v_exp_f32 v{g+r}, v{g+r}")
        e("s_nop 0")
        for r in range(4): e(f"v_add_f32 v{g+r}, 1.0, v{g+r}")
        for r in range(4): e(f"v_rcp_f32 v{g+r}, v{g+r}")
        pk=vA1+mt*8 if mt<2 else vCF
        e(f"v_cvt_pk_bf16_f32 v{pk}, v{a0}, v{a0+1}\nv_cvt_pk_bf16_f32 v{pk+1}, v{a0+2}, v{a0+3}")
        for o in range(1,4):
            a=vA2+(o*3+mt)*4
            for r in range(4): e(f"v_mul_f32 v{a+r}, v{a+r}, v{g+r}")
            e(f"v_cvt_pk_bf16_f32 v{pk+2*o}, v{a}, v{a+1}\nv_cvt_pk_bf16_f32 v{pk+2*o+1}, v{a+2}, v{a+3}")
        for o in range(4):
            e(f"buffer_store_dwordx2 {vr(pk+2*o,2)}, v{0 if mt==2 else 1}, s[{sOUT}:{sOUT+3}], s{40+mt} offen offset:{o*256}")
    e("K2_fin:")
    stamp(6)
    if ts:
        e("s_waitcnt vmcnt(0)")
        stamp(7)
        e(f"v_mbcnt_lo_u32_b32 v2, -1, 0\nv_mbcnt_hi_u32_b32 v2, -1, v2\nv_lshlrev_b32 v2, 2, v2")
        e(f"s_mul_i32 s40, s{sB}, 10\ns_add_u32 s40, s40, s{sWave}\ns_lshl_b32 s40, s40, 8\ns_add_u32 s40, s40, {5<<20}")
        e(f"s_mov_b32 s{sWS+2}, {8<<20}\nbuffer_store_dword v{NV}, v2, s[{sWS}:{sWS+3}], s40 offen")
    e("s_waitcnt vmcnt(0) lgkmcnt(0)\ns_endpgm")
    e("K2_overflow:")
    e(f"s_cmp_lg_u32 s{sMode}, 0\ns_cbranch_scc1 K2_nover")
    e(f"s_mov_b32 s{sMode}, 1\ns_mov_b32 s{sLo}, 0")
    e(f"v_lshlrev_b32 v{t0}, 2, v{P}\nv_add_u32 v{t0}, {PREF_OFF}, v{t0}")
    e(f"ds_write_b32 v{t0}, v{CNT}")
    e("s_waitcnt lgkmcnt(0)\ns_barrier")
    e(f"v_mov_b32 v{RB}, 0\nv_mov_b32 v{HI}, 0\ns_mov_b32 s{sT0}, 0")
    e("K2_pl:")
    e(f"s_lshl_b32 s{sT1}, s{sT0}, 2\ns_add_u32 s{sT1}, s{sT1}, {PREF_OFF}\nv_mov_b32 v{t1}, s{sT1}\nds_read_b32 v{t1}, v{t1}")
    e(f"v_cmp_lt_u32 vcc, s{sT0}, v{P}")
    e("s_waitcnt lgkmcnt(0)")
    e(f"v_add_u32 v{HI}, v{HI}, v{t1}\nv_cndmask_b32 v{t1}, 0, v{t1}, vcc\nv_add_u32 v{RB}, v{RB}, v{t1}")
    e(f"s_add_u32 s{sT0}, s{sT0}, 1\ns_cmp_lt_u32 s{sT0}, 128\ns_cbranch_scc1 K2_pl")
    e("s_barrier")
    e(f"ds_write_b32 v{t0}, v{RB}")
    e(f"v_readfirstlane_b32 s{sTot}, v{HI}")
    e("s_waitcnt vmcnt(0) lgkmcnt(0)\ns_barrier\ns_branch K2_round")
    e("K2_done:\ns_endpgm")
    return e.text()

HEADER=open("standalone__tensor_product_equiv_equiformer__graph.s.ref").read().split("; Override launch geometry")[0]

def desc(name,nv,ns):
    return f""".p2align 6
.amdhsa_kernel {name}
  .amdhsa_next_free_vgpr {nv}
  .amdhsa_next_free_sgpr {ns}
  .amdhsa_accum_offset {(nv+3)//4*4}
  .amdhsa_group_segment_fixed_size 0
  .amdhsa_kernarg_size 96
  .amdhsa_user_sgpr_count 2
  .amdhsa_user_sgpr_kernarg_segment_ptr 1
  .amdhsa_system_sgpr_workgroup_id_x 1
.end_amdhsa_kernel"""

def build(opt={}):
    s=HEADER
    s+=f"; Two launches: (1) bin edges by destination + fold weights + prefetch, (2) gather/aggregate + GEMM + gate.\n"
    K1G=opt.get('k1g',144 if opt.get('pf',0) in (0,4) else 256)
    L1=f"; @launch kernel={K1} grid=({K1G},1,1) block=(640,1,1) lds={K1_LDS}\n"
    L2=f"; @launch kernel={K2} grid=({NB},1,1) block=(640,1,1) lds={K2_LDS}\n"
    L0=f"; @launch kernel=eqf_nop_kernel grid=(1,1,1) block=(64,1,1) lds=0\n"
    seq=opt.get('seq','12')
    for ch in str(seq): s+={'1':L1,'2':L2,'0':L0}[ch]
    s+='.amdgcn_target "amdgcn-amd-amdhsa--gfx950"\n.text\n'
    s+=gen_k1(opt)+"\n"+gen_k2(opt)+"\n"
    if '0' in str(seq): s+=".globl eqf_nop_kernel\n.p2align 8\n.type eqf_nop_kernel,@function\neqf_nop_kernel:\n    s_endpgm\n"
    s+='.section .rodata,"a"\n'+(".p2align 7\n" if opt.get('kdal') else "")+desc(K1,80,64)+"\n"+desc(K2,NV+(1 if opt.get("ts") else 0),64)+"\n"
    if '0' in str(seq): s+=desc("eqf_nop_kernel",8,16)+"\n"
    for m in re.finditer(r"buffer_\w+ .*offset:(\d+)", s):
        assert int(m.group(1))<4096, m.group(0)
    for m in re.finditer(r"ds_\w+ .*offset:(\d+)", s):
        assert int(m.group(1))<65536, m.group(0)
    return s

if __name__=="__main__":
    out=sys.argv[1] if len(sys.argv)>1 else "standalone__tensor_product_equiv_equiformer__graph.s"
    opt={}
    for a in sys.argv[2:]:
        k,v=a.split("="); opt[k]=eval(v)
    open(out,"w").write(build(opt))
    print("wrote",out)
```

```python
import re, sys

N=10000; E=320000
NPROD=128; EPW=2500
NB=250; NPB=40
TAB_OFF=0; WF_OFF=131072; REC_OFF=294912
WS_USED=REC_OFF+NPROD*EPW*12
XBYTES=N*1024
OOB=0x40000000
CAP=192
RING=12288
S_OFF=10*RING
S_T=5136; S_KS=2560
IDX_OFF=S_OFF+4*S_T
GC_OFF=IDX_OFF+10*768
PREF_OFF=GC_OFF+64
K2_LDS=PREF_OFF+512
K1_CNT=30016; K1_START=31040; K1_LDS=32064

K1="eqf_bin_kernel"
K2="standalone__tensor_product_equiv_equiformer__graph_kernel"

class A:
    def __init__(s): s.L=[]; s.n=0
    def __call__(s, txt):
        for ln in txt.split("\n"):
            ln=ln.strip()
            if ln: s.L.append(ln)
    def lab(s, base):
        s.n+=1; return f"{base}_{s.n}"
    def text(s):
        out=[]
        for l in s.L:
            out.append(l if l.endswith(":") or l.startswith(".") else "    "+l)
        return "\n".join(out)

def vr(a,n): return f"v[{a}:{a+n-1}]"
def sr(a,n): return f"s[{a}:{a+n-1}]"

def srd(e, d, plo, nbytes):
    e(f"s_mov_b32 s{d}, s{plo}\ns_mov_b32 s{d+1}, s{plo+1}\ns_mov_b32 s{d+2}, {nbytes}\ns_mov_b32 s{d+3}, 0x20000")

def gen_k1(opt):
    e=A()
    ts=opt.get('ts')
    TV=72
    def stamp(k):
        if not ts: return
        e(f"s_memrealtime s[60:61]\ns_waitcnt lgkmcnt(0)\nv_writelane_b32 v{TV}, s60, {k}")
    def dump():
        if not ts: return
        e("s_waitcnt vmcnt(0)")
        stamp(7)
        e(f"v_mbcnt_lo_u32_b32 v2, -1, 0\nv_mbcnt_hi_u32_b32 v2, -1, v2\nv_lshlrev_b32 v2, 2, v2")
        e(f"v_lshrrev_b32 v1, 6, v0\ns_nop 1\nv_readfirstlane_b32 s58, v1")
        e(f"s_mul_i32 s59, s2, 10\ns_add_u32 s59, s59, s58\ns_lshl_b32 s59, s59, 8\ns_add_u32 s59, s59, {6<<20}")
        e(f"s_mov_b32 s40, s20\ns_mov_b32 s41, s21\ns_mov_b32 s42, {8<<20}\ns_mov_b32 s43, 0x20000")
        e(f"buffer_store_dword v{TV}, v2, s[40:43], s59 offen")
    e(f".globl {K1}\n.p2align 8\n.type {K1},@function\n{K1}:")
    K1G=opt.get('k1g',144 if opt.get('pf',0) in (0,4) else 256)
    e(f"s_cmp_ge_u32 s2, {K1G}\ns_cbranch_scc1 K1_done")
    if ts: e(f"v_mov_b32 v{TV}, 0")
    stamp(0)
    e("s_load_dwordx4 s[4:7], s[0:1], 0")
    e("s_load_dwordx4 s[8:11], s[0:1], 16")
    e("s_load_dwordx4 s[12:15], s[0:1], 32")
    e("s_load_dwordx4 s[16:19], s[0:1], 48")
    e("s_load_dwordx2 s[20:21], s[0:1], 88")
    e("s_cmp_ge_u32 s2, 128\ns_cbranch_scc1 K1_helper")
    e("v_lshlrev_b32 v1, 2, v0\nv_mov_b32 v2, 0")
    e("v_cmp_gt_u32 vcc, 0x100, v0\ns_and_saveexec_b64 s[22:23], vcc")
    e(f"ds_write_b32 v1, v2 offset:{K1_CNT}")
    e("s_mov_b64 exec, s[22:23]")
    e("v_lshlrev_b32 v1, 4, v0")
    e("v_mul_u32_u24 v2, 24, v0")
    e("v_lshlrev_b32 v3, 3, v0")
    e("s_mul_i32 s44, s2, 10000\ns_mul_i32 s45, s2, 15000\ns_mul_i32 s46, s2, 5000")
    e("v_cmp_gt_u32 vcc, 0x271, v0")
    e("s_waitcnt lgkmcnt(0)")
    stamp(1)
    srd(e,24,10,E*4)
    srd(e,28,12,E*4)
    srd(e,32,6,E*6)
    srd(e,36,8,E*2)
    srd(e,40,20,WS_USED)
    if opt.get('k1nost'): e("s_mov_b32 s42, 0")
    e("s_and_saveexec_b64 s[48:49], vcc")
    e("s_mov_b64 s[50:51], exec")
    e("buffer_load_dwordx4 v[8:11], v1, s[28:31], s44 offen")
    e("buffer_load_dwordx4 v[4:7], v1, s[24:27], s44 offen")
    e("buffer_load_dwordx2 v[18:19], v3, s[36:39], s46 offen")
    e("buffer_load_dwordx4 v[12:15], v2, s[32:35], s45 offen")
    e("buffer_load_dwordx2 v[16:17], v2, s[32:35], s45 offen offset:16")
    def pf4():
        srd(e,56,4,XBYTES)
        e("s_lshr_b32 s62, s2, 3\ns_mul_i32 s62, s62, 625\nv_add_u32 v73, s62, v0\nv_lshlrev_b32 v73, 10, v73")
        for k in range(opt.get('pfk',1)):
            e(f"buffer_load_dword v{74+k}, v73, s[56:59], 0 offen offset:{k*256}")
    NPF=opt.get('pfk',1) if (opt.get('pf',0)==4 and opt.get('pfpos',1)==0) else 0
    if NPF: pf4()
    e("s_barrier")
    e("v_mov_b32 v3, 1")
    e("s_mov_b32 s47, 52429")
    e(f"s_waitcnt vmcnt({4+NPF})")
    stamp(2)
    for r in range(4):
        e(f"v_mul_u32_u24 v{20+r}, s47, v{8+r}")
        e(f"v_lshrrev_b32 v{20+r}, 21, v{20+r}")
        e(f"v_mul_u32_u24 v{24+r}, 40, v{20+r}")
        e(f"v_sub_u32 v{24+r}, v{8+r}, v{24+r}")
        e(f"v_lshlrev_b32 v{20+r}, 2, v{20+r}")
        e(f"ds_add_rtn_u32 v{28+r}, v{20+r}, v3 offset:{K1_CNT}")
    e(f"s_waitcnt vmcnt({NPF})")
    stamp(3)
    if opt.get('pf',0)==4 and opt.get('pfpos',1)==1: pf4()
    ylo=lambda d,s: e(f"v_lshlrev_b32 v{d}, 16, v{s}")
    yhi=lambda d,s: e(f"v_and_b32 v{d}, 0xffff0000, v{s}")
    ys=[]
    for k in range(12): ys.append((12+k//2, k&1))
    for r in range(4):
        e(f"v_lshl_or_b32 v{32+4*r}, v{4+r}, 10, v{24+r}")
        (yhi if r&1 else ylo)(48, 18+r//2)
        for j in range(3):
            reg,hi=ys[3*r+j]
            (yhi if hi else ylo)(49+j, reg)
        for j in range(3):
            e(f"v_mul_f32 v{49+j}, v48, v{49+j}")
        e(f"v_cvt_pk_bf16_f32 v{33+4*r}, v48, v49")
        e(f"v_cvt_pk_bf16_f32 v{34+4*r}, v50, v51")
    e("s_mov_b64 exec, s[48:49]")
    e("s_waitcnt lgkmcnt(0)\ns_barrier")
    stamp(4)
    e("v_mbcnt_lo_u32_b32 v52, -1, 0\nv_mbcnt_hi_u32_b32 v52, -1, v52")
    e("v_lshlrev_b32 v53, 4, v52")
    e(f"ds_read_b128 v[56:59], v53 offset:{K1_CNT}")
    e("s_waitcnt lgkmcnt(0)")
    e("v_add_u32 v61, v56, v57\nv_add_u32 v62, v61, v58\nv_add_u32 v63, v62, v59")
    e("v_mov_b32 v54, v63")
    for sh in (1,2,4,8):
        e("s_nop 1")
        e(f"v_add_u32_dpp v54, v54, v54 row_shr:{sh} row_mask:0xf bank_mask:0xf bound_ctrl:0")
    e("s_nop 1\nv_add_u32_dpp v54, v54, v54 row_bcast:15 row_mask:0xa bank_mask:0xf")
    e("s_nop 1\nv_add_u32_dpp v54, v54, v54 row_bcast:31 row_mask:0xc bank_mask:0xf")
    e("v_sub_u32 v64, v54, v63")
    e("v_add_u32 v65, v64, v56\nv_add_u32 v66, v64, v61\nv_add_u32 v67, v64, v62")
    e(f"ds_write_b128 v53, v[64:67] offset:{K1_START}")
    e("v_readfirstlane_b32 s52, v0")
    for r in range(4):
        e(f"v_lshl_or_b32 v{68+r}, v{56+r}, 16, v{64+r}")
    e("s_cmp_lg_u32 s52, 0\ns_cbranch_scc1 K1_notab")
    e(f"s_lshl_b32 s53, s2, 10")
    ST=opt.get('st','')
    e(f"buffer_store_dwordx4 v[68:71], v53, s[40:43], s53 offen{ST}")
    e("K1_notab:")
    e("s_mov_b64 exec, s[50:51]")
    e("s_waitcnt lgkmcnt(0)")
    for r in range(4):
        e(f"ds_read_b32 v{56+r}, v{20+r} offset:{K1_START}")
    e("s_waitcnt lgkmcnt(0)")
    for r in range(4):
        e(f"v_add_u32 v{56+r}, v{56+r}, v{28+r}")
        e(f"v_mul_u32_u24 v{56+r}, 12, v{56+r}")
        e(f"ds_write2_b32 v{56+r}, v{32+4*r}, v{33+4*r} offset0:0 offset1:1")
        e(f"ds_write_b32 v{56+r}, v{34+4*r} offset:8")
    e("s_mov_b64 exec, s[48:49]")
    e("s_waitcnt lgkmcnt(0)\ns_barrier")
    stamp(5)
    e("v_lshlrev_b32 v1, 4, v0")
    e(f"s_mul_i32 s53, s2, {EPW*12}\ns_add_u32 s53, s53, {REC_OFF}")
    e("ds_read_b128 v[4:7], v1\nds_read_b128 v[8:11], v1 offset:10240\nds_read_b128 v[12:15], v1 offset:20480")
    e("v_add_u32 v2, 10240, v1\nv_add_u32 v3, 20480, v1")
    e(f"v_cmp_gt_u32 vcc, {1875-1280}, v0")
    e(f"s_waitcnt lgkmcnt(2)\nbuffer_store_dwordx4 v[4:7], v1, s[40:43], s53 offen{ST}")
    e(f"s_waitcnt lgkmcnt(1)\nbuffer_store_dwordx4 v[8:11], v2, s[40:43], s53 offen{ST}")
    e("s_and_saveexec_b64 s[22:23], vcc")
    e("s_cbranch_execz K1_pend")
    e(f"s_waitcnt lgkmcnt(0)\nbuffer_store_dwordx4 v[12:15], v3, s[40:43], s53 offen{ST}")
    e("K1_pend:")
    if ts:
        e("s_mov_b64 exec, -1")
        stamp(6)
        dump()
    e("s_waitcnt vmcnt(0) lgkmcnt(0)\ns_endpgm")
    e("K1_helper:")
    e("s_sub_u32 s22, s2, 128")
    e("v_lshrrev_b32 v1, 6, v0\nv_and_b32 v2, 63, v0")
    e("s_mul_i32 s23, s22, 640\nv_add_u32 v3, s23, v0\nv_lshlrev_b32 v3, 7, v3")
    e("v_readfirstlane_b32 s44, v1")
    e("s_lshr_b32 s23, s22, 3\ns_mul_i32 s23, s23, 625\nv_add_u32 v4, s23, v0\nv_lshlrev_b32 v4, 10, v4")
    e("s_waitcnt lgkmcnt(0)")
    stamp(1)
    srd(e,24,4,XBYTES)
    e("s_cmp_ge_u32 s22, 16\ns_cbranch_scc1 K1_pf")
    if opt.get('pfc'):
        e("s_getpc_b64 s[56:57]\nK1_pcb:")
        e(f"s_add_u32 s56, s56, {K2}-K1_pcb\ns_addc_u32 s57, s57, 0")
        e("v_lshlrev_b32 v60, 7, v2\nv_mov_b32 v61, s57\nv_add_co_u32 v60, vcc, s56, v60\nv_addc_co_u32 v61, vcc, 0, v61, vcc")
        e("global_load_dword v62, v[60:61], off")
        e("v_add_co_u32 v60, vcc, 0x2000, v60\nv_addc_co_u32 v61, vcc, 0, v61, vcc")
        e("v_cmp_gt_u32 vcc, 32, v2\ns_and_saveexec_b64 s[58:59], vcc\nglobal_load_dword v63, v[60:61], off\ns_mov_b64 exec, s[58:59]")
    srd(e,28,14,1280)
    srd(e,32,16,256*256)
    srd(e,36,18,384*256)
    srd(e,40,20,WS_USED)
    e("s_mul_i32 s45, s22, 10\ns_add_u32 s45, s45, s44")
    e("s_and_b32 s46, s45, 1")
    e("s_lshr_b32 s47, s45, 1")
    e("s_mul_i32 s48, s47, 52429\ns_lshr_b32 s48, s48, 18")
    e("s_mul_i32 s49, s48, 5\ns_sub_u32 s49, s47, s49")
    e("s_and_b32 s50, s48, 7\ns_lshr_b32 s51, s48, 3")
    e("s_lshl_b32 s52, s51, 6\ns_lshl_b32 s53, s46, 5\ns_add_u32 s52, s52, s53")
    e("v_lshrrev_b32 v5, 4, v2\nv_and_b32 v6, 15, v2")
    e("v_lshlrev_b32 v7, 10, v5\nv_lshl_add_u32 v7, v6, 1, v7")
    e("v_lshlrev_b32 v8, 3, v5")
    e("s_lshl_b32 s53, s49, 7\ns_add_u32 s53, s53, s52\ns_lshl_b32 s53, s53, 1")
    e("buffer_load_dwordx2 v[10:11], v8, s[28:31], s53 offen")
    e("buffer_load_dwordx2 v[12:13], v8, s[28:31], s53 offen offset:32")
    e("s_cmp_ge_u32 s49, 2\ns_cbranch_scc1 K1_w1")
    for (lab,sub,R) in (("",0,32),("K1_w1:",2,36)):
        if lab: e(lab)
        e(f"s_sub_u32 s54, s49, {sub}\ns_lshl_b32 s54, s54, 7\ns_add_u32 s54, s54, s52\ns_lshl_b32 s54, s54, 8")
        e("s_lshl_b32 s55, s50, 5\ns_add_u32 s54, s54, s55\ns_add_u32 s55, s54, 4096")
        for j in range(4): e(f"buffer_load_ushort v{16+j}, v7, s[{R}:{R+3}], s54 offen offset:{j*256}")
        for j in range(4): e(f"buffer_load_ushort v{20+j}, v7, s[{R}:{R+3}], s55 offen offset:{j*256}")
        if not lab: e("s_branch K1_wj")
    e("K1_wj:")
    PF=opt.get('pf',0)
    def pfl():
        if PF>=3: return
        if PF>=1: e("buffer_load_dword v30, v3, s[24:27], 0 offen")
        if PF>=2: e("buffer_load_dword v31, v3, s[24:27], 0 offen offset:64")
        if PF>=1: e("buffer_load_dword v32, v4, s[24:27], 0 offen")
        if PF>=2: e("buffer_load_dword v33, v4, s[24:27], 0 offen offset:64")
    pfl()
    npf=2*PF if PF<3 else 0
    e(f"s_waitcnt vmcnt({npf})")
    for j in range(8):
        src=10+j//2
        if j&1: e(f"v_and_b32 v24, 0xffff0000, v{src}")
        else:   e(f"v_lshlrev_b32 v24, 16, v{src}")
        e(f"v_lshlrev_b32 v{16+j}, 16, v{16+j}")
        e(f"v_mul_f32 v{16+j}, v24, v{16+j}")
    for k in range(4): e(f"v_cvt_pk_bf16_f32 v{40+k}, v{16+2*k}, v{17+2*k}")
    e(f"s_lshl_b32 s54, s45, 10\ns_add_u32 s54, s54, {WF_OFF}")
    e("v_lshlrev_b32 v9, 4, v2")
    e(f"buffer_store_dwordx4 v[40:43], v9, s[40:43], s54 offen{ST}")
    dump()
    e("s_waitcnt vmcnt(0)\ns_endpgm")
    e("K1_pf:")
    if PF==3:
        PFK=opt.get('pfk',2)
        e("s_sub_u32 s23, s2, 144\ns_lshr_b32 s23, s23, 3\ns_mul_i32 s23, s23, 715")
        e("v_add_u32 v3, s23, v0\nv_lshlrev_b32 v3, 10, v3")
        e(f"v_add_u32 v4, {640*1024}, v3\nv_mov_b32 v5, {OOB}\nv_cmp_gt_u32 vcc, 75, v0\nv_cndmask_b32 v4, v5, v4, vcc")
        for k in range(PFK):
            e(f"buffer_load_dword v{30+2*k}, v3, s[24:27], 0 offen offset:{k*256}")
            e(f"buffer_load_dword v{31+2*k}, v4, s[24:27], 0 offen offset:{k*256}")
    else: pfl()
    e("s_waitcnt vmcnt(0)")
    dump()
    e("K1_done:\ns_endpgm")
    return e.text()

vAd=0; vP=2; vT=4; vID=8
vXA=20; vA1=36; vCF=52; vW=76; vA2=116; vSW=164; vSR=165; NV=166
sXR=8; sWS=12; sOUT=16
sWave=20; sNch=21; sRing=22; sOffC=24; sOffN=25; sS=28; sWb=29
sLo=34; sMode=35; sTot=36; sT0=37; sT1=38; sFirst=39
sK1024=50; sB=52; sWo=53
IDS=512
STG=6144

def gen_k2(opt):
    e=A()
    ts=opt.get('ts')
    DPOS=opt.get('dpos',[1,4,7,10,13,16,19,22])
    PRE=opt.get('pre',1)
    def stamp(k):
        if not ts: return
        e(f"s_memrealtime s[56:57]\ns_waitcnt lgkmcnt(0)")
        if isinstance(k,int): e(f"v_writelane_b32 v{NV}, s56, {k}")
        else:
            e(f"s_add_u32 m0, {k[0]}, {k[1]}\nv_writelane_b32 v{NV}, s56, m0")
    adn=[0]
    def dma(c,i,soff):
        ad=vAd+(adn[0]&1); adn[0]+=1
        e(f"s_add_u32 m0, s{sRing}, {(c%3)*4096+i*1024}")
        e(f"v_mad_u32_u16 v{ad}, v{vID+2*c+(i>>1)}, s{sK1024}, v{vP+(i&1)} op_sel:[{i&1},0,0,0]")
        e(f"buffer_load_dwordx4 v{ad}, s[{sXR}:{sXR+3}], s{soff} offen lds")
    def wload(ks_, hexpr):
        e(f"v_mbcnt_lo_u32_b32 v{vAd+1}, -1, 0\nv_mbcnt_hi_u32_b32 v{vAd+1}, -1, v{vAd+1}\nv_lshlrev_b32 v{vAd+1}, 4, v{vAd+1}")
        cur=0
        for k in ks_:
            while cur<k//4:
                e(f"s_add_u32 s{hexpr}, s{hexpr}, 4096"); cur+=1
            e(f"buffer_load_dwordx4 {vr(vW+4*k,4)}, v{vAd+1}, s[{sWS}:{sWS+3}], s{hexpr} offen offset:{(k%4)*1024}")
    AC=[0,1,4,5]; BDE=[2,3,6,7,8,9]
    e(f".globl {K2}\n.p2align 8\n.type {K2},@function\n{K2}:")
    e(f"s_cmp_ge_u32 s2, {NB}\ns_cbranch_scc1 K2_done")
    if ts: e(f"v_mov_b32 v{NV}, 0")
    stamp(0)
    if opt.get('k2exit'):
        e(f"s_load_dwordx2 s[{sWS}:{sWS+1}], s[0:1], 88\nv_lshrrev_b32 v1, 6, v0\ns_mov_b32 s{sB}, s2\ns_nop 1\nv_readfirstlane_b32 s{sWave}, v1\ns_mov_b32 s{sWS+3}, 0x20000\ns_waitcnt lgkmcnt(0)\ns_branch K2_fin")
    e(f"s_load_dwordx2 s[{sXR}:{sXR+1}], s[0:1], 0")
    e(f"s_load_dwordx2 s[{sWS}:{sWS+1}], s[0:1], 88")
    e(f"s_load_dwordx2 s[{sOUT}:{sOUT+1}], s[0:1], 72")
    e("v_lshrrev_b32 v1, 6, v0")
    e(f"s_mov_b32 s{sB}, s2")
    e(f"v_readfirstlane_b32 s{sWave}, v1")
    e(f"s_mov_b32 s{sK1024}, 1024")
    e(f"s_mov_b32 s{sMode}, 0\ns_mov_b32 s{sLo}, 0\ns_mov_b32 s{sTot}, 0")
    e(f"s_mov_b32 s{sXR+2}, {XBYTES}\ns_mov_b32 s{sXR+3}, 0x20000\ns_mov_b32 s{sWS+2}, {WS_USED}\ns_mov_b32 s{sWS+3}, 0x20000")
    e(f"s_mov_b32 s{sOUT+2}, {XBYTES}\ns_mov_b32 s{sOUT+3}, 0x20000")
    for r in range(48): e(f"v_mov_b32 v{vA2+r}, 0")
    e(f"s_mul_i32 s{sRing}, s{sWave}, {RING}")
    e(f"s_mul_i32 s{sWb}, s{sWave}, 10240\ns_add_u32 s{sWb}, s{sWb}, {WF_OFF}")
    e("s_waitcnt lgkmcnt(0)")
    stamp(1)
    e("K2_round:")
    L,TID,P,SUB,TABV,RB,II,HI,CNT,t0,t1,CA,i16,G,r_,cc=range(100,116)
    e(f"v_mbcnt_lo_u32_b32 v{L}, -1, 0\nv_mbcnt_hi_u32_b32 v{L}, -1, v{L}")
    e(f"s_lshl_b32 s{sT0}, s{sWave}, 6\nv_add_u32 v{TID}, s{sT0}, v{L}")
    e(f"s_mov_b32 s{sT1}, 52429\nv_mul_u32_u24 v{P}, s{sT1}, v{TID}\nv_lshrrev_b32 v{P}, 18, v{P}")
    e(f"v_lshlrev_b32 v{t0}, 10, v{P}\ns_lshl_b32 s{sT0}, s{sB}, 2")
    e(f"buffer_load_dword v{TABV}, v{t0}, s[{sWS}:{sWS+3}], s{sT0} offen")
    e(f"v_mul_u32_u24 v{SUB}, 5, v{P}\nv_sub_u32 v{SUB}, v{TID}, v{SUB}")
    Z=vXA
    for r in range(4): e(f"v_mov_b32 v{Z+r}, 0")
    e(f"v_lshlrev_b32 v{t1}, 4, v{L}\nv_add_u32 v{t1}, s{sRing}, v{t1}")
    for k in range(6): e(f"ds_write_b128 v{t1}, {vr(Z,4)} offset:{STG+k*1024}")
    e(f"s_mul_i32 s{sT0}, s{sWave}, {IDS}\ns_add_u32 s{sT0}, s{sT0}, {IDX_OFF}")
    e(f"v_lshlrev_b32 v{Z+4}, 2, v{L}\nv_add_u32 v{Z+4}, s{sT0}, v{Z+4}\nv_mov_b32 v{Z+5}, -1")
    for k in range(2): e(f"ds_write_b32 v{Z+4}, v{Z+5} offset:{k*256}")
    e(f"v_and_b32 v{Z+6}, 15, v{L}\nv_lshlrev_b32 v{Z+6}, 2, v{Z+6}\nv_add_u32 v{Z+6}, {GC_OFF}, v{Z+6}")
    e(f"ds_write_b32 v{Z+6}, v{Z}")
    e(f"v_and_b32 v{i16}, 15, v{L}\nv_lshrrev_b32 v{G}, 4, v{L}\nv_lshrrev_b32 v{r_}, 2, v{i16}\nv_and_b32 v{cc}, 3, v{L}")
    e(f"v_lshl_add_u32 v{t0}, v{G}, 3, v{r_}")
    e(f"v_lshlrev_b32 v{t0}, 7, v{t0}\nv_lshl_add_u32 v{t0}, v{cc}, 3, v{t0}\nv_add_u32 v{t0}, s{sRing}, v{t0}")
    e(f"v_lshrrev_b32 v{t1}, 1, v{r_}\nv_and_b32 v{Z+7}, 1, v{G}\nv_lshl_add_u32 v{t1}, v{Z+7}, 1, v{t1}")
    e(f"v_lshl_add_u32 v{vT}, v{t1}, 5, v{t0}")
    for ct in range(1,4): e(f"v_xor_b32 v{vT+ct}, {ct*32}, v{vT}")
    IB=Z+8
    e(f"v_lshrrev_b32 v{t0}, 3, v{L}\nv_lshlrev_b32 v{t0}, 2, v{t0}\nv_add_u32 v{IB}, s{sT0}, v{t0}")
    e(f"v_and_b32 v{t0}, 7, v{L}\nv_and_b32 v{t1}, 1, v{G}\nv_lshlrev_b32 v{t1}, 1, v{t1}\nv_xor_b32 v{t0}, v{t0}, v{t1}")
    e(f"v_lshlrev_b32 v{vP}, 4, v{t0}\nv_xor_b32 v{vP+1}, 64, v{vP}")
    e(f"s_lshl_b32 s{sT1}, s{sWave}, 2\nv_add_u32 v{t0}, s{sT1}, v{r_}")
    e(f"v_and_b32 v{t1}, 8, v{t0}\nv_lshrrev_b32 v{t1}, 2, v{t1}\nv_xor_b32 v{t1}, v{t1}, v{G}")
    e(f"v_lshlrev_b32 v{t0}, 6, v{t0}\nv_lshl_add_u32 v{t0}, v{t1}, 4, v{t0}")
    e(f"v_mul_u32_u24 v{t1}, {S_T}, v{cc}\nv_add_u32 v{t0}, v{t0}, v{t1}\nv_add_u32 v{vSW}, {S_OFF}, v{t0}")
    e(f"v_and_b32 v{t1}, 8, v{i16}\nv_lshrrev_b32 v{t1}, 2, v{t1}\nv_xor_b32 v{t1}, v{t1}, v{G}")
    e(f"v_lshlrev_b32 v{t0}, 6, v{i16}\nv_lshl_add_u32 v{t0}, v{t1}, 4, v{t0}\nv_add_u32 v{vSR}, {S_OFF}, v{t0}")
    e(f"v_lshlrev_b32 v{CA}, 8, v{G}\nv_lshl_add_u32 v{CA}, v{i16}, 3, v{CA}\nv_add_u32 v{CA}, s{sRing}, v{CA}")
    e("s_waitcnt lgkmcnt(0)\ns_barrier")
    e("s_waitcnt vmcnt(0)")
    stamp(2)
    e(f"v_lshrrev_b32 v{CNT}, 16, v{TABV}\nv_and_b32 v{RB}, 0xffff, v{TABV}")
    e(f"v_mul_u32_u24 v{t0}, {EPW}, v{P}\nv_add_u32 v{RB}, v{RB}, v{t0}\nv_mul_u32_u24 v{RB}, 12, v{RB}")
    e(f"s_cmp_eq_u32 s{sMode}, 0\ns_cbranch_scc0 K2_slowwin")
    e(f"v_mov_b32 v{II}, v{SUB}\nv_mov_b32 v{HI}, v{CNT}")
    e("s_branch K2_winok")
    e("K2_slowwin:")
    e(f"v_lshlrev_b32 v{t0}, 2, v{P}\nv_add_u32 v{t0}, {PREF_OFF}, v{t0}\nds_read_b32 v{t0}, v{t0}")
    e("s_waitcnt lgkmcnt(0)")
    e(f"v_sub_u32 v{t0}, s{sLo}, v{t0}")
    e(f"v_add_u32 v{t1}, {CAP}, v{t0}")
    e(f"v_med3_i32 v{t0}, v{t0}, 0, v{CNT}\nv_med3_i32 v{HI}, v{t1}, 0, v{CNT}")
    e(f"v_add_u32 v{II}, v{t0}, v{SUB}")
    e("K2_winok:")
    e(f"s_mov_b32 s{sFirst}, 1")
    R=36
    e("K2_bin:")
    for r in range(5):
        e(f"v_add_u32 v{t0}, {5*r}, v{II}")
        e(f"v_cmp_lt_u32 vcc, v{t0}, v{HI}")
        e(f"v_mul_u32_u24 v{t0}, 12, v{t0}\nv_add_u32 v{t0}, v{t0}, v{RB}")
        e(f"s_mov_b64 s[{40+2*r}:{41+2*r}], vcc")
        e(f"v_mov_b32 v{t1}, {OOB}\nv_cndmask_b32 v{R+4*r+3}, v{t1}, v{t0}, vcc")
    e(f"s_mov_b32 s{sT0}, {REC_OFF}")
    for r in range(5):
        e(f"buffer_load_dwordx3 v[{R+4*r}:{R+4*r+2}], v{R+4*r+3}, s[{sWS}:{sWS+3}], s{sT0} offen")
    e(f"s_cmp_eq_u32 s{sFirst}, 0\ns_cbranch_scc1 K2_bin_w0")
    e(f"s_mov_b32 s{sFirst}, 0")
    e(f"s_cmp_ge_u32 s{sWave}, 8\ns_cbranch_scc1 K2_bin_w0")
    e(f"s_mov_b32 s{sWo}, s{sWb}")
    wload(AC,sWo)
    e("s_waitcnt vmcnt(4)\ns_branch K2_bin_go")
    e("K2_bin_w0:")
    e("s_waitcnt vmcnt(0)")
    e("K2_bin_go:")
    stamp(3)
    e(f"v_mov_b32 v{t1}, 1\ns_mov_b32 s{sT1}, {GC_OFF}")
    assert GC_OFF%64==0
    for r in range(5):
        lab=e.lab("K2_ba")
        e(f"s_mov_b64 exec, s[{40+2*r}:{41+2*r}]\ns_cbranch_execz {lab}")
        e(f"v_and_or_b32 v{t0}, v{R+4*r}, 60, s{sT1}")
        e(f"ds_add_rtn_u32 v{R+4*r+3}, v{t0}, v{t1}")
        e(f"{lab}:")
    e("s_mov_b64 exec, -1\ns_waitcnt lgkmcnt(0)")
    e(f"s_movk_i32 s{sT1}, {CAP}")
    for r in range(5):
        lab=e.lab("K2_bw")
        w0=R+4*r; rk=w0+3
        u=Z+10
        e(f"s_mov_b64 exec, s[{40+2*r}:{41+2*r}]\ns_cbranch_execz {lab}")
        e(f"v_cmp_gt_u32 vcc, s{sT1}, v{rk}\ns_and_b64 exec, exec, vcc")
        e(f"v_bfe_u32 v{t0}, v{w0}, 2, 4")
        e(f"v_and_b32 v{u}, 0xf0, v{rk}\nv_lshlrev_b32 v{t1}, 9, v{t0}\nv_lshl_add_u32 v{t1}, v{u}, 1, v{t1}")
        e(f"v_and_b32 v{u}, 7, v{rk}\nv_lshl_add_u32 v{t1}, v{u}, 2, v{t1}")
        e(f"v_bfe_u32 v{u}, v{rk}, 3, 1\nv_lshl_add_u32 v{t1}, v{u}, 1, v{t1}")
        e(f"v_mul_u32_u24 v{t0}, {RING}, v{t0}\nv_lshl_add_u32 v{t0}, v{rk}, 5, v{t0}")
        e(f"v_and_b32 v{rk}, 3, v{w0}\nv_lshl_add_u32 v{t0}, v{rk}, 3, v{t0}")
        e(f"v_lshrrev_b32 v{w0}, 10, v{w0}")
        e(f"v_add_u32 v{t1}, {IDX_OFF}, v{t1}\nds_write_b16 v{t1}, v{w0}")
        e(f"v_add_u32 v{t0}, {STG}, v{t0}")
        e(f"ds_write2_b32 v{t0}, v{w0+1}, v{w0+2} offset0:0 offset1:1")
        e(f"{lab}:")
    e("s_mov_b64 exec, -1")
    e(f"v_add_u32 v{II}, 25, v{II}\nv_cmp_lt_u32 vcc, v{II}, v{HI}")
    e("s_cbranch_vccnz K2_bin")
    e("s_waitcnt lgkmcnt(0)\ns_barrier")
    stamp(4)
    e(f"v_and_b32 v{t0}, 15, v{L}\nv_lshlrev_b32 v{t0}, 2, v{t0}\nv_add_u32 v{t0}, {GC_OFF}, v{t0}\nds_read_b32 v{t0}, v{t0}")
    for c in range(6):
        for p in range(2): e(f"ds_read_b32 v{vID+2*c+p}, v{IB} offset:{64*c+32*p}")
    e("s_waitcnt lgkmcnt(12)")
    e(f"v_cmp_lt_u32 vcc, {CAP}, v{t0}")
    e(f"v_readlane_b32 s{sNch}, v{t0}, s{sWave}")
    e("s_cbranch_vccnz K2_overflow")
    e("K2_nover:")
    for c in range(6):
        e(f"ds_read_b64_tr_b16 {vr(vCF+4*c,2)}, v{CA} offset:{STG+c*1024}")
        e(f"ds_read_b64_tr_b16 {vr(vCF+4*c+2,2)}, v{CA} offset:{STG+c*1024+128}")
    e(f"s_add_u32 s{sNch}, s{sNch}, 31\ns_lshr_b32 s{sNch}, s{sNch}, 5\ns_max_u32 s{sNch}, s{sNch}, 1")
    e(f"s_mov_b32 s{sS}, 0\ns_mov_b32 s{sOffC}, 0")
    e("s_waitcnt lgkmcnt(12)")
    for i in range(4): dma(0,i,sOffC)
    e("s_waitcnt lgkmcnt(0)")
    for c in (1,2):
        for i in range(4): dma(c,i,sOffC)
    stamp(5)
    e("K2_slice:")
    for n in (4,5,3,6,2): e(f"s_cmp_eq_u32 s{sNch}, {n}\ns_cbranch_scc1 K2_n{n}")
    for n in (1,2,3,6,5,4):
        e(f"K2_n{n}:")
        for c in range(n):
            issued=max(n,3) if c==0 else None
            last=min(max(n,3)-1, c+2)
            e(f"s_waitcnt vmcnt({4*(last-c)})")
            for ct in range(4):
                e(f"ds_read_b64_tr_b16 {vr(vXA+4*ct,2)}, v{vT+ct} offset:{(c%3)*4096}")
                e(f"ds_read_b64_tr_b16 {vr(vXA+4*ct+2,2)}, v{vT+ct} offset:{(c%3)*4096+512}")
            for ct in range(4):
                e(f"s_waitcnt lgkmcnt({6-2*ct})")
                C = "0" if c==0 else vr(vA1+4*ct,4)
                e(f"v_mfma_f32_16x16x32_bf16 {vr(vA1+4*ct,4)}, {vr(vXA+4*ct,4)}, {vr(vCF+4*c,4)}, {C}")
            if c+3<n:
                for i in range(4): dma(c+3,i,sOffC)
            if c==0: e("s_barrier")
        if n!=4: e("s_branch K2_gap")
    e("K2_gap:")
    stamp((f"s{sS}",8))
    e(f"s_and_b32 s{sT0}, s{sS}, 3")
    e(f"s_cmp_eq_u32 s{sT0}, 1\ns_cbranch_scc1 K2_gap_1")
    e(f"s_cmp_eq_u32 s{sT0}, 2\ns_cbranch_scc1 K2_gap_2")
    e(f"s_cmp_eq_u32 s{sS}, 3\ns_cbranch_scc1 K2_gap_3")
    e(f"s_cmp_eq_u32 s{sS}, 7\ns_cbranch_scc1 K2_gap_F")
    bufs=[vXA+4*k for k in range(4)]+[vA1+4*k for k in range(4)]
    for var in ('0','1','2','3','F'):
        q=3 if var=='F' else int(var)
        fin = var=='F'
        e(f"K2_gap_{var}:")
        if not fin:
            if q<3: e(f"s_add_u32 s{sOffN}, s{sOffC}, 256")
            else: e(f"s_mov_b32 s{sOffN}, 128")
        if q==0:
            lab=e.lab("K2_nw")
            e(f"s_cmp_ge_u32 s{sWave}, 8\ns_cbranch_scc1 {lab}")
            e(f"s_lshr_b32 s{sWo}, s{sS}, 2\ns_mul_i32 s{sWo}, s{sWo}, 81920\ns_add_u32 s{sWo}, s{sWo}, s{sWb}")
            wload(BDE,sWo)
            e(f"{lab}:")
        if q==1:
            lab=e.lab("K2_nw")
            e(f"s_cmp_ge_u32 s{sWave}, 8\ns_cbranch_scc1 {lab}")
            e(f"s_cmp_lg_u32 s{sS}, 1\ns_cbranch_scc1 {lab}")
            e(f"s_add_u32 s{sWo}, s{sWb}, 81920")
            wload(AC,sWo)
            e(f"{lab}:")
        defer=[] if fin else [(c,i) for c in range(3) for i in range(4)]
        pre=defer[:4*PRE]; post=defer[4*PRE:]
        for (c,i) in pre: dma(c,i,sOffN)
        e("s_nop 7" if not pre else "s_nop 1")
        for ks in range(2):
            for hh in range(2):
                a=vA1+4*(2*ks+hh)
                e(f"v_cvt_pk_bf16_f32 v{vXA+4*ks+2*hh}, v{a}, v{a+1}")
                e(f"v_cvt_pk_bf16_f32 v{vXA+4*ks+2*hh+1}, v{a+2}, v{a+3}")
        if q>0:
            tneg={3:1,1:2,2:3}[q]
            msk=(0x11111111<<tneg)&0xffffffff
            e(f"s_mov_b32 exec_lo, {hex(msk)}\ns_mov_b32 exec_hi, {hex(msk)}")
            for k in range(8): e(f"v_xor_b32 v{vXA+k}, 0x80008000, v{vXA+k}")
            e("s_mov_b64 exec, -1")
        e(f"ds_write_b128 v{vSW}, {vr(vXA,4)}")
        e(f"ds_write_b128 v{vSW}, {vr(vXA+4,4)} offset:{S_KS}")
        e("s_waitcnt lgkmcnt(0)\ns_barrier")
        stamp((f"s{sS}",16))
        e(f"s_cmp_ge_u32 s{sWave}, 8\ns_cbranch_scc1 K2_gw_{var}")
        if q==0: plan=[(0,0,0),(1,2,1),(2,2,2),(3,2,3)]
        else:
            k=q-1; plan=[(0,3,q),(q,1,0)]
            for j in range(3):
                if j!=k: plan.append((1+j,4,1+(3-j-k)))
        items=[(t,m,o,ks,mt) for (t,m,o) in plan for ks in range(2) for mt in range(3)]
        n=len(items); assert n==24
        def rd(i):
            t,m,o,ks,mt=items[i]
            e(f"ds_read_b128 {vr(bufs[i%8],4)}, v{vSR} offset:{t*S_T+ks*S_KS+mt*1024}")
        for i in range(7): rd(i)
        npost=len(post)
        pos=[int(round((j+0.5)*24/npost-1)) for j in range(npost)] if (npost and npost!=8) else (DPOS if npost else [])
        pj=0
        for i in range(n):
            t,m,o,ks,mt=items[i]
            e(f"s_waitcnt lgkmcnt({min(6,n-1-i)})")
            acc=vA2+(o*3+mt)*4
            e(f"v_mfma_f32_16x16x32_bf16 {vr(acc,4)}, {vr(vW+(m*2+ks)*4,4)}, {vr(bufs[i%8],4)}, {vr(acc,4)}")
            if i+7<n: rd(i+7)
            while pj<npost and pos[pj]<=i:
                dma(post[pj][0],post[pj][1],sOffN); pj+=1
        assert pj==npost
        e(f"s_branch K2_gn_{var}")
        e(f"K2_gw_{var}:")
        for (c,i) in post: dma(c,i,sOffN)
        e(f"K2_gn_{var}:")
        stamp((f"s{sS}",24))
        if not fin:
            e(f"s_mov_b32 s{sOffC}, s{sOffN}\ns_add_u32 s{sS}, s{sS}, 1\ns_branch K2_slice")
    e(f"s_cmp_eq_u32 s{sMode}, 0\ns_cbranch_scc1 K2_epi")
    e(f"s_add_u32 s{sLo}, s{sLo}, {CAP}\ns_cmp_ge_u32 s{sLo}, s{sTot}\ns_cbranch_scc1 K2_epi")
    e("s_waitcnt vmcnt(0)\ns_branch K2_round")
    e("K2_epi:")
    e(f"s_cmp_ge_u32 s{sWave}, 8\ns_cbranch_scc1 K2_fin")
    e(f"v_mbcnt_lo_u32_b32 v2, -1, 0\nv_mbcnt_hi_u32_b32 v2, -1, v2")
    e(f"v_and_b32 v3, 15, v2\nv_lshrrev_b32 v1, 4, v2\nv_lshlrev_b32 v1, 3, v1\nv_lshl_add_u32 v1, v3, 10, v1")
    e(f"v_mov_b32 v0, {OOB}\nv_cmp_gt_u32 vcc, 8, v3\ns_mul_i32 s{sT0}, s{sB}, {NPB*1024}\ns_lshl_b32 s{sT1}, s{sWave}, 5\ns_add_u32 s40, s{sT0}, s{sT1}")
    e(f"v_cndmask_b32 v0, v0, v1, vcc")
    e("s_add_u32 s41, s40, 16384\ns_add_u32 s42, s41, 16384")
    e("s_mov_b32 s43, 0xbfb8aa3b")
    for mt in range(3):
        a0=vA2+mt*4
        g=vXA
        for r in range(4): e(f"v_mul_f32 v{g+r}, s43, v{a0+r}")
        for r in range(4): e(f"v_exp_f32 v{g+r}, v{g+r}")
        e("s_nop 0")
        for r in range(4): e(f"v_add_f32 v{g+r}, 1.0, v{g+r}")
        for r in range(4): e(f"v_rcp_f32 v{g+r}, v{g+r}")
        pk=vA1+mt*8 if mt<2 else vCF
        e(f"v_cvt_pk_bf16_f32 v{pk}, v{a0}, v{a0+1}\nv_cvt_pk_bf16_f32 v{pk+1}, v{a0+2}, v{a0+3}")
        for o in range(1,4):
            a=vA2+(o*3+mt)*4
            for r in range(4): e(f"v_mul_f32 v{a+r}, v{a+r}, v{g+r}")
            e(f"v_cvt_pk_bf16_f32 v{pk+2*o}, v{a}, v{a+1}\nv_cvt_pk_bf16_f32 v{pk+2*o+1}, v{a+2}, v{a+3}")
        for o in range(4):
            e(f"buffer_store_dwordx2 {vr(pk+2*o,2)}, v{0 if mt==2 else 1}, s[{sOUT}:{sOUT+3}], s{40+mt} offen offset:{o*256}")
    e("K2_fin:")
    stamp(6)
    if ts:
        e("s_waitcnt vmcnt(0)")
        stamp(7)
        e(f"v_mbcnt_lo_u32_b32 v2, -1, 0\nv_mbcnt_hi_u32_b32 v2, -1, v2\nv_lshlrev_b32 v2, 2, v2")
        e(f"s_mul_i32 s40, s{sB}, 10\ns_add_u32 s40, s40, s{sWave}\ns_lshl_b32 s40, s40, 8\ns_add_u32 s40, s40, {5<<20}")
        e(f"s_mov_b32 s{sWS+2}, {8<<20}\nbuffer_store_dword v{NV}, v2, s[{sWS}:{sWS+3}], s40 offen")
    e("s_waitcnt vmcnt(0) lgkmcnt(0)\ns_endpgm")
    e("K2_overflow:")
    e(f"s_cmp_lg_u32 s{sMode}, 0\ns_cbranch_scc1 K2_nover")
    e(f"s_mov_b32 s{sMode}, 1\ns_mov_b32 s{sLo}, 0")
    e(f"v_lshlrev_b32 v{t0}, 2, v{P}\nv_add_u32 v{t0}, {PREF_OFF}, v{t0}")
    e(f"ds_write_b32 v{t0}, v{CNT}")
    e("s_waitcnt lgkmcnt(0)\ns_barrier")
    e(f"v_mov_b32 v{RB}, 0\nv_mov_b32 v{HI}, 0\ns_mov_b32 s{sT0}, 0")
    e("K2_pl:")
    e(f"s_lshl_b32 s{sT1}, s{sT0}, 2\ns_add_u32 s{sT1}, s{sT1}, {PREF_OFF}\nv_mov_b32 v{t1}, s{sT1}\nds_read_b32 v{t1}, v{t1}")
    e(f"v_cmp_lt_u32 vcc, s{sT0}, v{P}")
    e("s_waitcnt lgkmcnt(0)")
    e(f"v_add_u32 v{HI}, v{HI}, v{t1}\nv_cndmask_b32 v{t1}, 0, v{t1}, vcc\nv_add_u32 v{RB}, v{RB}, v{t1}")
    e(f"s_add_u32 s{sT0}, s{sT0}, 1\ns_cmp_lt_u32 s{sT0}, 128\ns_cbranch_scc1 K2_pl")
    e("s_barrier")
    e(f"ds_write_b32 v{t0}, v{RB}")
    e(f"v_readfirstlane_b32 s{sTot}, v{HI}")
    e("s_waitcnt vmcnt(0) lgkmcnt(0)\ns_barrier\ns_branch K2_round")
    e("K2_done:\ns_endpgm")
    return e.text()

HEADER=open("standalone__tensor_product_equiv_equiformer__graph.s.ref").read().split("; Override launch geometry")[0]

def desc(name,nv,ns):
    return f""".p2align 6
.amdhsa_kernel {name}
  .amdhsa_next_free_vgpr {nv}
  .amdhsa_next_free_sgpr {ns}
  .amdhsa_accum_offset {(nv+3)//4*4}
  .amdhsa_group_segment_fixed_size 0
  .amdhsa_kernarg_size 96
  .amdhsa_user_sgpr_count 2
  .amdhsa_user_sgpr_kernarg_segment_ptr 1
  .amdhsa_system_sgpr_workgroup_id_x 1
.end_amdhsa_kernel"""

def build(opt={}):
    s=HEADER
    s+=f"; Two launches: (1) bin edges by destination + fold weights + prefetch, (2) gather/aggregate + GEMM + gate.\n"
    K1G=opt.get('k1g',144 if opt.get('pf',0) in (0,4) else 256)
    L1=f"; @launch kernel={K1} grid=({K1G},1,1) block=(640,1,1) lds={K1_LDS}\n"
    L2=f"; @launch kernel={K2} grid=({NB},1,1) block=(640,1,1) lds={K2_LDS}\n"
    L0=f"; @launch kernel=eqf_nop_kernel grid=(1,1,1) block=(64,1,1) lds=0\n"
    seq=opt.get('seq','12')
    for ch in str(seq): s+={'1':L1,'2':L2,'0':L0}[ch]
    s+='.amdgcn_target "amdgcn-amd-amdhsa--gfx950"\n.text\n'
    s+=gen_k1(opt)+"\n"+gen_k2(opt)+"\n"
    if '0' in str(seq): s+=".globl eqf_nop_kernel\n.p2align 8\n.type eqf_nop_kernel,@function\neqf_nop_kernel:\n    s_endpgm\n"
    s+='.section .rodata,"a"\n'+(".p2align 7\n" if opt.get('kdal') else "")+desc(K1,80,64)+"\n"+desc(K2,NV+(1 if opt.get("ts") else 0),64)+"\n"
    if '0' in str(seq): s+=desc("eqf_nop_kernel",8,16)+"\n"
    for m in re.finditer(r"buffer_\w+ .*offset:(\d+)", s):
        assert int(m.group(1))<4096, m.group(0)
    for m in re.finditer(r"ds_\w+ .*offset:(\d+)", s):
        assert int(m.group(1))<65536, m.group(0)
    return s

if __name__=="__main__":
    out=sys.argv[1] if len(sys.argv)>1 else "standalone__tensor_product_equiv_equiformer__graph.s"
    opt={'pf':4,'pfk':1,'kdal':1}
    for a in sys.argv[2:]:
        k,v=a.split("="); opt[k]=eval(v)
    open(out,"w").write(build(opt))
    print("wrote",out)
```

```python
import re, sys

N=10000; E=320000
NPROD=128; EPW=2500
NB=250; NPB=40
TAB_OFF=0; WF_OFF=131072; REC_OFF=294912
WS_USED=REC_OFF+NPROD*EPW*12
XBYTES=N*1024
OOB=0x40000000
CAP=192
RING=12288
S_OFF=10*RING
S_T=5136; S_KS=2560
IDX_OFF=S_OFF+4*S_T
GC_OFF=IDX_OFF+10*768
PREF_OFF=GC_OFF+64
K2_LDS=PREF_OFF+512
K1_CNT=30016; K1_START=31040; K1_LDS=32064

K1="eqf_bin_kernel"
K2="standalone__tensor_product_equiv_equiformer__graph_kernel"

class A:
    def __init__(s): s.L=[]; s.n=0
    def __call__(s, txt):
        for ln in txt.split("\n"):
            ln=ln.strip()
            if ln: s.L.append(ln)
    def lab(s, base):
        s.n+=1; return f"{base}_{s.n}"
    def text(s):
        out=[]
        for l in s.L:
            out.append(l if l.endswith(":") or l.startswith(".") else "    "+l)
        return "\n".join(out)

def vr(a,n): return f"v[{a}:{a+n-1}]"
def sr(a,n): return f"s[{a}:{a+n-1}]"

def srd(e, d, plo, nbytes):
    e(f"s_mov_b32 s{d}, s{plo}\ns_mov_b32 s{d+1}, s{plo+1}\ns_mov_b32 s{d+2}, {nbytes}\ns_mov_b32 s{d+3}, 0x20000")

def gen_k1(opt):
    e=A()
    ts=opt.get('ts')
    TV=72
    def stamp(k):
        if not ts: return
        e(f"s_memrealtime s[60:61]\ns_waitcnt lgkmcnt(0)\nv_writelane_b32 v{TV}, s60, {k}")
    def dump():
        if not ts: return
        e("s_waitcnt vmcnt(0)")
        stamp(7)
        e(f"v_mbcnt_lo_u32_b32 v2, -1, 0\nv_mbcnt_hi_u32_b32 v2, -1, v2\nv_lshlrev_b32 v2, 2, v2")
        e(f"v_lshrrev_b32 v1, 6, v0\ns_nop 1\nv_readfirstlane_b32 s58, v1")
        e(f"s_mul_i32 s59, s2, 10\ns_add_u32 s59, s59, s58\ns_lshl_b32 s59, s59, 8\ns_add_u32 s59, s59, {6<<20}")
        e(f"s_mov_b32 s40, s20\ns_mov_b32 s41, s21\ns_mov_b32 s42, {8<<20}\ns_mov_b32 s43, 0x20000")
        e(f"buffer_store_dword v{TV}, v2, s[40:43], s59 offen")
    e(f".globl {K1}\n.p2align 8\n.type {K1},@function\n{K1}:")
    K1G=opt.get('k1g',144 if opt.get('pf',0) in (0,4) else 256)
    e(f"s_cmp_ge_u32 s2, {K1G}\ns_cbranch_scc1 K1_done")
    if ts: e(f"v_mov_b32 v{TV}, 0")
    stamp(0)
    e("s_load_dwordx4 s[4:7], s[0:1], 0")
    e("s_load_dwordx4 s[8:11], s[0:1], 16")
    e("s_load_dwordx4 s[12:15], s[0:1], 32")
    e("s_load_dwordx4 s[16:19], s[0:1], 48")
    e("s_load_dwordx2 s[20:21], s[0:1], 88")
    e("s_cmp_ge_u32 s2, 128\ns_cbranch_scc1 K1_helper")
    e("v_lshlrev_b32 v1, 2, v0\nv_mov_b32 v2, 0")
    e("v_cmp_gt_u32 vcc, 0x100, v0\ns_and_saveexec_b64 s[22:23], vcc")
    e(f"ds_write_b32 v1, v2 offset:{K1_CNT}")
    e("s_mov_b64 exec, s[22:23]")
    e("v_lshlrev_b32 v1, 4, v0")
    e("v_mul_u32_u24 v2, 24, v0")
    e("v_lshlrev_b32 v3, 3, v0")
    e("s_mul_i32 s44, s2, 10000\ns_mul_i32 s45, s2, 15000\ns_mul_i32 s46, s2, 5000")
    e("v_cmp_gt_u32 vcc, 0x271, v0")
    e("s_waitcnt lgkmcnt(0)")
    stamp(1)
    srd(e,24,10,E*4)
    srd(e,28,12,E*4)
    srd(e,32,6,E*6)
    srd(e,36,8,E*2)
    srd(e,40,20,WS_USED)
    if opt.get('k1nost'): e("s_mov_b32 s42, 0")
    e("s_and_saveexec_b64 s[48:49], vcc")
    e("s_mov_b64 s[50:51], exec")
    e("buffer_load_dwordx4 v[8:11], v1, s[28:31], s44 offen")
    e("buffer_load_dwordx4 v[4:7], v1, s[24:27], s44 offen")
    e("buffer_load_dwordx2 v[18:19], v3, s[36:39], s46 offen")
    e("buffer_load_dwordx4 v[12:15], v2, s[32:35], s45 offen")
    e("buffer_load_dwordx2 v[16:17], v2, s[32:35], s45 offen offset:16")
    def pf4():
        srd(e,56,4,XBYTES)
        e("s_lshr_b32 s62, s2, 3\ns_mul_i32 s62, s62, 625\nv_add_u32 v73, s62, v0\nv_lshlrev_b32 v73, 10, v73")
        for k in range(opt.get('pfk',1)):
            e(f"buffer_load_dword v{74+k}, v73, s[56:59], 0 offen offset:{k*256}")
    NPF=opt.get('pfk',1) if (opt.get('pf',0)==4 and opt.get('pfpos',1)==0) else 0
    if NPF: pf4()
    e("s_barrier")
    e("v_mov_b32 v3, 1")
    e("s_mov_b32 s47, 52429")
    e(f"s_waitcnt vmcnt({4+NPF})")
    stamp(2)
    for r in range(4):
        e(f"v_mul_u32_u24 v{20+r}, s47, v{8+r}")
        e(f"v_lshrrev_b32 v{20+r}, 21, v{20+r}")
        e(f"v_mul_u32_u24 v{24+r}, 40, v{20+r}")
        e(f"v_sub_u32 v{24+r}, v{8+r}, v{24+r}")
        e(f"v_lshlrev_b32 v{20+r}, 2, v{20+r}")
        e(f"ds_add_rtn_u32 v{28+r}, v{20+r}, v3 offset:{K1_CNT}")
    e(f"s_waitcnt vmcnt({NPF})")
    stamp(3)
    if opt.get('pf',0)==4 and opt.get('pfpos',1)==1: pf4()
    ylo=lambda d,s: e(f"v_lshlrev_b32 v{d}, 16, v{s}")
    yhi=lambda d,s: e(f"v_and_b32 v{d}, 0xffff0000, v{s}")
    ys=[]
    for k in range(12): ys.append((12+k//2, k&1))
    for r in range(4):
        e(f"v_lshl_or_b32 v{32+4*r}, v{4+r}, 10, v{24+r}")
        (yhi if r&1 else ylo)(48, 18+r//2)
        for j in range(3):
            reg,hi=ys[3*r+j]
            (yhi if hi else ylo)(49+j, reg)
        for j in range(3):
            e(f"v_mul_f32 v{49+j}, v48, v{49+j}")
        e(f"v_cvt_pk_bf16_f32 v{33+4*r}, v48, v49")
        e(f"v_cvt_pk_bf16_f32 v{34+4*r}, v50, v51")
    e("s_mov_b64 exec, s[48:49]")
    e("s_waitcnt lgkmcnt(0)\ns_barrier")
    stamp(4)
    e("v_mbcnt_lo_u32_b32 v52, -1, 0\nv_mbcnt_hi_u32_b32 v52, -1, v52")
    e("v_lshlrev_b32 v53, 4, v52")
    e(f"ds_read_b128 v[56:59], v53 offset:{K1_CNT}")
    e("s_waitcnt lgkmcnt(0)")
    e("v_add_u32 v61, v56, v57\nv_add_u32 v62, v61, v58\nv_add_u32 v63, v62, v59")
    e("v_mov_b32 v54, v63")
    for sh in (1,2,4,8):
        e("s_nop 1")
        e(f"v_add_u32_dpp v54, v54, v54 row_shr:{sh} row_mask:0xf bank_mask:0xf bound_ctrl:0")
    e("s_nop 1\nv_add_u32_dpp v54, v54, v54 row_bcast:15 row_mask:0xa bank_mask:0xf")
    e("s_nop 1\nv_add_u32_dpp v54, v54, v54 row_bcast:31 row_mask:0xc bank_mask:0xf")
    e("v_sub_u32 v64, v54, v63")
    e("v_add_u32 v65, v64, v56\nv_add_u32 v66, v64, v61\nv_add_u32 v67, v64, v62")
    e(f"ds_write_b128 v53, v[64:67] offset:{K1_START}")
    e("v_readfirstlane_b32 s52, v0")
    for r in range(4):
        e(f"v_lshl_or_b32 v{68+r}, v{56+r}, 16, v{64+r}")
    e("s_cmp_lg_u32 s52, 0\ns_cbranch_scc1 K1_notab")
    e(f"s_lshl_b32 s53, s2, 10")
    ST=opt.get('st','')
    e(f"buffer_store_dwordx4 v[68:71], v53, s[40:43], s53 offen{ST}")
    e("K1_notab:")
    e("s_mov_b64 exec, s[50:51]")
    e("s_waitcnt lgkmcnt(0)")
    for r in range(4):
        e(f"ds_read_b32 v{56+r}, v{20+r} offset:{K1_START}")
    e("s_waitcnt lgkmcnt(0)")
    for r in range(4):
        e(f"v_add_u32 v{56+r}, v{56+r}, v{28+r}")
        e(f"v_mul_u32_u24 v{56+r}, 12, v{56+r}")
        e(f"ds_write2_b32 v{56+r}, v{32+4*r}, v{33+4*r} offset0:0 offset1:1")
        e(f"ds_write_b32 v{56+r}, v{34+4*r} offset:8")
    e("s_mov_b64 exec, s[48:49]")
    e("s_waitcnt lgkmcnt(0)\ns_barrier")
    stamp(5)
    e("v_lshlrev_b32 v1, 4, v0")
    e(f"s_mul_i32 s53, s2, {EPW*12}\ns_add_u32 s53, s53, {REC_OFF}")
    e("ds_read_b128 v[4:7], v1\nds_read_b128 v[8:11], v1 offset:10240\nds_read_b128 v[12:15], v1 offset:20480")
    e("v_add_u32 v2, 10240, v1\nv_add_u32 v3, 20480, v1")
    e(f"v_cmp_gt_u32 vcc, {1875-1280}, v0")
    e(f"s_waitcnt lgkmcnt(2)\nbuffer_store_dwordx4 v[4:7], v1, s[40:43], s53 offen{ST}")
    e(f"s_waitcnt lgkmcnt(1)\nbuffer_store_dwordx4 v[8:11], v2, s[40:43], s53 offen{ST}")
    e("s_and_saveexec_b64 s[22:23], vcc")
    e("s_cbranch_execz K1_pend")
    e(f"s_waitcnt lgkmcnt(0)\nbuffer_store_dwordx4 v[12:15], v3, s[40:43], s53 offen{ST}")
    e("K1_pend:")
    if ts:
        e("s_mov_b64 exec, -1")
        stamp(6)
        dump()
    e("s_waitcnt vmcnt(0) lgkmcnt(0)\ns_endpgm")
    e("K1_helper:")
    e("s_sub_u32 s22, s2, 128")
    e("v_lshrrev_b32 v1, 6, v0\nv_and_b32 v2, 63, v0")
    e("s_mul_i32 s23, s22, 640\nv_add_u32 v3, s23, v0\nv_lshlrev_b32 v3, 7, v3")
    e("v_readfirstlane_b32 s44, v1")
    e("s_lshr_b32 s23, s22, 3\ns_mul_i32 s23, s23, 625\nv_add_u32 v4, s23, v0\nv_lshlrev_b32 v4, 10, v4")
    e("s_waitcnt lgkmcnt(0)")
    stamp(1)
    srd(e,24,4,XBYTES)
    e("s_cmp_ge_u32 s22, 16\ns_cbranch_scc1 K1_pf")
    if opt.get('pfc'):
        e("s_getpc_b64 s[56:57]\nK1_pcb:")
        e(f"s_add_u32 s56, s56, {K2}-K1_pcb\ns_addc_u32 s57, s57, 0")
        e("v_lshlrev_b32 v60, 7, v2\nv_mov_b32 v61, s57\nv_add_co_u32 v60, vcc, s56, v60\nv_addc_co_u32 v61, vcc, 0, v61, vcc")
        e("global_load_dword v62, v[60:61], off")
        e("v_add_co_u32 v60, vcc, 0x2000, v60\nv_addc_co_u32 v61, vcc, 0, v61, vcc")
        e("v_cmp_gt_u32 vcc, 32, v2\ns_and_saveexec_b64 s[58:59], vcc\nglobal_load_dword v63, v[60:61], off\ns_mov_b64 exec, s[58:59]")
    srd(e,28,14,1280)
    srd(e,32,16,256*256)
    srd(e,36,18,384*256)
    srd(e,40,20,WS_USED)
    e("s_mul_i32 s45, s22, 10\ns_add_u32 s45, s45, s44")
    e("s_and_b32 s46, s45, 1")
    e("s_lshr_b32 s47, s45, 1")
    e("s_mul_i32 s48, s47, 52429\ns_lshr_b32 s48, s48, 18")
    e("s_mul_i32 s49, s48, 5\ns_sub_u32 s49, s47, s49")
    e("s_and_b32 s50, s48, 7\ns_lshr_b32 s51, s48, 3")
    e("s_lshl_b32 s52, s51, 6\ns_lshl_b32 s53, s46, 5\ns_add_u32 s52, s52, s53")
    e("v_lshrrev_b32 v5, 4, v2\nv_and_b32 v6, 15, v2")
    e("v_lshlrev_b32 v7, 10, v5\nv_lshl_add_u32 v7, v6, 1, v7")
    e("v_lshlrev_b32 v8, 3, v5")
    e("s_lshl_b32 s53, s49, 7\ns_add_u32 s53, s53, s52\ns_lshl_b32 s53, s53, 1")
    e("buffer_load_dwordx2 v[10:11], v8, s[28:31], s53 offen")
    e("buffer_load_dwordx2 v[12:13], v8, s[28:31], s53 offen offset:32")
    e("s_cmp_ge_u32 s49, 2\ns_cbranch_scc1 K1_w1")
    for (lab,sub,R) in (("",0,32),("K1_w1:",2,36)):
        if lab: e(lab)
        e(f"s_sub_u32 s54, s49, {sub}\ns_lshl_b32 s54, s54, 7\ns_add_u32 s54, s54, s52\ns_lshl_b32 s54, s54, 8")
        e("s_lshl_b32 s55, s50, 5\ns_add_u32 s54, s54, s55\ns_add_u32 s55, s54, 4096")
        for j in range(4): e(f"buffer_load_ushort v{16+j}, v7, s[{R}:{R+3}], s54 offen offset:{j*256}")
        for j in range(4): e(f"buffer_load_ushort v{20+j}, v7, s[{R}:{R+3}], s55 offen offset:{j*256}")
        if not lab: e("s_branch K1_wj")
    e("K1_wj:")
    PF=opt.get('pf',0)
    def pfl():
        if PF>=3: return
        if PF>=1: e("buffer_load_dword v30, v3, s[24:27], 0 offen")
        if PF>=2: e("buffer_load_dword v31, v3, s[24:27], 0 offen offset:64")
        if PF>=1: e("buffer_load_dword v32, v4, s[24:27], 0 offen")
        if PF>=2: e("buffer_load_dword v33, v4, s[24:27], 0 offen offset:64")
    pfl()
    npf=2*PF if PF<3 else 0
    e(f"s_waitcnt vmcnt({npf})")
    for j in range(8):
        src=10+j//2
        if j&1: e(f"v_and_b32 v24, 0xffff0000, v{src}")
        else:   e(f"v_lshlrev_b32 v24, 16, v{src}")
        e(f"v_lshlrev_b32 v{16+j}, 16, v{16+j}")
        e(f"v_mul_f32 v{16+j}, v24, v{16+j}")
    for k in range(4): e(f"v_cvt_pk_bf16_f32 v{40+k}, v{16+2*k}, v{17+2*k}")
    e(f"s_lshl_b32 s54, s45, 10\ns_add_u32 s54, s54, {WF_OFF}")
    e("v_lshlrev_b32 v9, 4, v2")
    e(f"buffer_store_dwordx4 v[40:43], v9, s[40:43], s54 offen{ST}")
    dump()
    e("s_waitcnt vmcnt(0)\ns_endpgm")
    e("K1_pf:")
    if PF==3:
        PFK=opt.get('pfk',2)
        e("s_sub_u32 s23, s2, 144\ns_lshr_b32 s23, s23, 3\ns_mul_i32 s23, s23, 715")
        e("v_add_u32 v3, s23, v0\nv_lshlrev_b32 v3, 10, v3")
        e(f"v_add_u32 v4, {640*1024}, v3\nv_mov_b32 v5, {OOB}\nv_cmp_gt_u32 vcc, 75, v0\nv_cndmask_b32 v4, v5, v4, vcc")
        for k in range(PFK):
            e(f"buffer_load_dword v{30+2*k}, v3, s[24:27], 0 offen offset:{k*256}")
            e(f"buffer_load_dword v{31+2*k}, v4, s[24:27], 0 offen offset:{k*256}")
    else: pfl()
    e("s_waitcnt vmcnt(0)")
    dump()
    e("K1_done:\ns_endpgm")
    return e.text()

vAd=0; vP=2; vT=4; vID=8
vXA=20; vA1=36; vCF=52; vW=76; vA2=116; vSW=164; vSR=165; NV=166
sXR=8; sWS=12; sOUT=16
sWave=20; sNch=21; sRing=22; sOffC=24; sOffN=25; sS=28; sWb=29
sLo=34; sMode=35; sTot=36; sT0=37; sT1=38; sFirst=39
sK1024=50; sB=52; sWo=53
IDS=512
STG=6144

def gen_k2(opt):
    e=A()
    ts=opt.get('ts')
    DPOS=opt.get('dpos',[1,4,7,10,13,16,19,22])
    PRE=opt.get('pre',1)
    def stamp(k):
        if not ts: return
        e(f"s_memrealtime s[56:57]\ns_waitcnt lgkmcnt(0)")
        if isinstance(k,int): e(f"v_writelane_b32 v{NV}, s56, {k}")
        else:
            e(f"s_add_u32 m0, {k[0]}, {k[1]}\nv_writelane_b32 v{NV}, s56, m0")
    adn=[0]
    def dma(c,i,soff):
        ad=vAd+(adn[0]&1); adn[0]+=1
        e(f"s_add_u32 m0, s{sRing}, {(c%3)*4096+i*1024}")
        e(f"v_mad_u32_u16 v{ad}, v{vID+2*c+(i>>1)}, s{sK1024}, v{vP+(i&1)} op_sel:[{i&1},0,0,0]")
        e(f"buffer_load_dwordx4 v{ad}, s[{sXR}:{sXR+3}], s{soff} offen lds")
    def wload(ks_, hexpr):
        e(f"v_mbcnt_lo_u32_b32 v{vAd+1}, -1, 0\nv_mbcnt_hi_u32_b32 v{vAd+1}, -1, v{vAd+1}\nv_lshlrev_b32 v{vAd+1}, 4, v{vAd+1}")
        cur=0
        for k in ks_:
            while cur<k//4:
                e(f"s_add_u32 s{hexpr}, s{hexpr}, 4096"); cur+=1
            e(f"buffer_load_dwordx4 {vr(vW+4*k,4)}, v{vAd+1}, s[{sWS}:{sWS+3}], s{hexpr} offen offset:{(k%4)*1024}")
    AC=[0,1,4,5]; BDE=[2,3,6,7,8,9]
    e(f".globl {K2}\n.p2align 8\n.type {K2},@function\n{K2}:")
    e(f"s_cmp_ge_u32 s2, {NB}\ns_cbranch_scc1 K2_done")
    if ts: e(f"v_mov_b32 v{NV}, 0")
    stamp(0)
    if opt.get('k2exit'):
        e(f"s_load_dwordx2 s[{sWS}:{sWS+1}], s[0:1], 88\nv_lshrrev_b32 v1, 6, v0\ns_mov_b32 s{sB}, s2\ns_nop 1\nv_readfirstlane_b32 s{sWave}, v1\ns_mov_b32 s{sWS+3}, 0x20000\ns_waitcnt lgkmcnt(0)\ns_branch K2_fin")
    e(f"s_load_dwordx2 s[{sXR}:{sXR+1}], s[0:1], 0")
    e(f"s_load_dwordx2 s[{sWS}:{sWS+1}], s[0:1], 88")
    e(f"s_load_dwordx2 s[{sOUT}:{sOUT+1}], s[0:1], 72")
    e("v_lshrrev_b32 v1, 6, v0")
    e(f"s_mov_b32 s{sB}, s2")
    e(f"v_readfirstlane_b32 s{sWave}, v1")
    e(f"s_mov_b32 s{sK1024}, 1024")
    e(f"s_mov_b32 s{sMode}, 0\ns_mov_b32 s{sLo}, 0\ns_mov_b32 s{sTot}, 0")
    e(f"s_mov_b32 s{sXR+2}, {XBYTES}\ns_mov_b32 s{sXR+3}, 0x20000\ns_mov_b32 s{sWS+2}, {WS_USED}\ns_mov_b32 s{sWS+3}, 0x20000")
    e(f"s_mov_b32 s{sOUT+2}, {XBYTES}\ns_mov_b32 s{sOUT+3}, 0x20000")
    for r in range(48): e(f"v_mov_b32 v{vA2+r}, 0")
    e(f"s_mul_i32 s{sRing}, s{sWave}, {RING}")
    e(f"s_mul_i32 s{sWb}, s{sWave}, 10240\ns_add_u32 s{sWb}, s{sWb}, {WF_OFF}")
    e("s_waitcnt lgkmcnt(0)")
    stamp(1)
    e("K2_round:")
    L,TID,P,SUB,TABV,RB,II,HI,CNT,t0,t1,i16,G,r_,cc=range(56,71); CA=75
    BPRE=opt.get('bpre',1)
    PF2=opt.get('pf2',0)
    vPF=vXA+15
    e(f"v_mbcnt_lo_u32_b32 v{L}, -1, 0\nv_mbcnt_hi_u32_b32 v{L}, -1, v{L}")
    e(f"s_lshl_b32 s{sT0}, s{sWave}, 6\nv_add_u32 v{TID}, s{sT0}, v{L}")
    e(f"s_mov_b32 s{sT1}, 52429\nv_mul_u32_u24 v{P}, s{sT1}, v{TID}\nv_lshrrev_b32 v{P}, 18, v{P}")
    e(f"v_lshlrev_b32 v{t0}, 10, v{P}\ns_lshl_b32 s{sT0}, s{sB}, 2")
    e(f"buffer_load_dword v{TABV}, v{t0}, s[{sWS}:{sWS+3}], s{sT0} offen")
    PFW=opt.get('pfw',0); PFWS=opt.get('pfws',3)
    def pfw(base,nlines,per,lab):
        e(f"s_cmp_lg_u32 s{sWave}, 9\ns_cbranch_scc1 {lab}")
        e(f"s_lshr_b32 s{sT0}, s{sB}, 3\ns_mul_i32 s{sT0}, s{sT0}, {per}")
        e(f"v_mbcnt_lo_u32_b32 v77, -1, 0\nv_mbcnt_hi_u32_b32 v77, -1, v77\nv_add_u32 v78, s{sT0}, v77")
        e(f"v_cmp_gt_u32 vcc, {per}, v77\nv_mov_b32 v77, {nlines}\nv_cndmask_b32 v78, v77, v78, vcc")
        e(f"v_cmp_gt_u32 vcc, {nlines}, v78\nv_lshlrev_b32 v78, 7, v78\nv_add_u32 v78, {base}, v78\nv_mov_b32 v77, {OOB}\nv_cndmask_b32 v78, v77, v78, vcc")
        e(f"buffer_load_dword v76, v78, s[{sWS}:{sWS+3}], 0 offen")
        e(f"{lab}:")
    if PFW&1: pfw(WF_OFF,1280,42,"K2_pfw0")
    e(f"v_mul_u32_u24 v{SUB}, 5, v{P}\nv_sub_u32 v{SUB}, v{TID}, v{SUB}")
    Z=vXA
    for r in range(4): e(f"v_mov_b32 v{Z+r}, 0")
    e(f"v_lshlrev_b32 v{t1}, 4, v{L}\nv_add_u32 v{t1}, s{sRing}, v{t1}")
    for k in range(6): e(f"ds_write_b128 v{t1}, {vr(Z,4)} offset:{STG+k*1024}")
    e(f"s_mul_i32 s{sT0}, s{sWave}, {IDS}\ns_add_u32 s{sT0}, s{sT0}, {IDX_OFF}")
    e(f"v_lshlrev_b32 v{Z+4}, 2, v{L}\nv_add_u32 v{Z+4}, s{sT0}, v{Z+4}\nv_mov_b32 v{Z+5}, -1")
    for k in range(2): e(f"ds_write_b32 v{Z+4}, v{Z+5} offset:{k*256}")
    e(f"v_and_b32 v{Z+6}, 15, v{L}\nv_lshlrev_b32 v{Z+6}, 2, v{Z+6}\nv_add_u32 v{Z+6}, {GC_OFF}, v{Z+6}")
    e(f"ds_write_b32 v{Z+6}, v{Z}")
    e(f"v_and_b32 v{i16}, 15, v{L}\nv_lshrrev_b32 v{G}, 4, v{L}\nv_lshrrev_b32 v{r_}, 2, v{i16}\nv_and_b32 v{cc}, 3, v{L}")
    e(f"v_lshl_add_u32 v{t0}, v{G}, 3, v{r_}")
    e(f"v_lshlrev_b32 v{t0}, 7, v{t0}\nv_lshl_add_u32 v{t0}, v{cc}, 3, v{t0}\nv_add_u32 v{t0}, s{sRing}, v{t0}")
    e(f"v_lshrrev_b32 v{t1}, 1, v{r_}\nv_and_b32 v{Z+7}, 1, v{G}\nv_lshl_add_u32 v{t1}, v{Z+7}, 1, v{t1}")
    e(f"v_lshl_add_u32 v{vT}, v{t1}, 5, v{t0}")
    for ct in range(1,4): e(f"v_xor_b32 v{vT+ct}, {ct*32}, v{vT}")
    IB=Z+8
    e(f"v_lshrrev_b32 v{t0}, 3, v{L}\nv_lshlrev_b32 v{t0}, 2, v{t0}\nv_add_u32 v{IB}, s{sT0}, v{t0}")
    e(f"v_and_b32 v{t0}, 7, v{L}\nv_and_b32 v{t1}, 1, v{G}\nv_lshlrev_b32 v{t1}, 1, v{t1}\nv_xor_b32 v{t0}, v{t0}, v{t1}")
    e(f"v_lshlrev_b32 v{vP}, 4, v{t0}\nv_xor_b32 v{vP+1}, 64, v{vP}")
    e(f"s_lshl_b32 s{sT1}, s{sWave}, 2\nv_add_u32 v{t0}, s{sT1}, v{r_}")
    e(f"v_and_b32 v{t1}, 8, v{t0}\nv_lshrrev_b32 v{t1}, 2, v{t1}\nv_xor_b32 v{t1}, v{t1}, v{G}")
    e(f"v_lshlrev_b32 v{t0}, 6, v{t0}\nv_lshl_add_u32 v{t0}, v{t1}, 4, v{t0}")
    e(f"v_mul_u32_u24 v{t1}, {S_T}, v{cc}\nv_add_u32 v{t0}, v{t0}, v{t1}\nv_add_u32 v{vSW}, {S_OFF}, v{t0}")
    e(f"v_and_b32 v{t1}, 8, v{i16}\nv_lshrrev_b32 v{t1}, 2, v{t1}\nv_xor_b32 v{t1}, v{t1}, v{G}")
    e(f"v_lshlrev_b32 v{t0}, 6, v{i16}\nv_lshl_add_u32 v{t0}, v{t1}, 4, v{t0}\nv_add_u32 v{vSR}, {S_OFF}, v{t0}")
    e(f"v_lshlrev_b32 v{CA}, 8, v{G}\nv_lshl_add_u32 v{CA}, v{i16}, 3, v{CA}\nv_add_u32 v{CA}, s{sRing}, v{CA}")
    e("s_waitcnt lgkmcnt(0)\ns_barrier")
    e("s_waitcnt vmcnt(0)")
    stamp(2)
    e(f"v_lshrrev_b32 v{CNT}, 16, v{TABV}\nv_and_b32 v{RB}, 0xffff, v{TABV}")
    e(f"v_mul_u32_u24 v{t0}, {EPW}, v{P}\nv_add_u32 v{RB}, v{RB}, v{t0}\nv_mul_u32_u24 v{RB}, 12, v{RB}")
    e(f"s_cmp_eq_u32 s{sMode}, 0\ns_cbranch_scc0 K2_slowwin")
    e(f"v_mov_b32 v{II}, v{SUB}\nv_mov_b32 v{HI}, v{CNT}")
    e("s_branch K2_winok")
    e("K2_slowwin:")
    e(f"v_lshlrev_b32 v{t0}, 2, v{P}\nv_add_u32 v{t0}, {PREF_OFF}, v{t0}\nds_read_b32 v{t0}, v{t0}")
    e("s_waitcnt lgkmcnt(0)")
    e(f"v_sub_u32 v{t0}, s{sLo}, v{t0}")
    e(f"v_add_u32 v{t1}, {CAP}, v{t0}")
    e(f"v_med3_i32 v{t0}, v{t0}, 0, v{CNT}\nv_med3_i32 v{HI}, v{t1}, 0, v{CNT}")
    e(f"v_add_u32 v{II}, v{t0}, v{SUB}")
    e("K2_winok:")
    e(f"s_mov_b32 s{sFirst}, 1")
    R=36
    e("K2_bin:")
    for r in range(5):
        e(f"v_add_u32 v{t0}, {5*r}, v{II}")
        e(f"v_cmp_lt_u32 vcc, v{t0}, v{HI}")
        e(f"v_mul_u32_u24 v{t0}, 12, v{t0}\nv_add_u32 v{t0}, v{t0}, v{RB}")
        e(f"s_mov_b64 s[{40+2*r}:{41+2*r}], vcc")
        e(f"v_mov_b32 v{t1}, {OOB}\nv_cndmask_b32 v{R+4*r+3}, v{t1}, v{t0}, vcc")
    e(f"s_mov_b32 s{sT0}, {REC_OFF}")
    for r in range(5):
        e(f"buffer_load_dwordx3 v[{R+4*r}:{R+4*r+2}], v{R+4*r+3}, s[{sWS}:{sWS+3}], s{sT0} offen")
    WPOS=opt.get('wpos',1)
    if WPOS: e("s_waitcnt vmcnt(0)")
    e(f"s_cmp_eq_u32 s{sFirst}, 0\ns_cbranch_scc1 K2_bin_w0")
    e(f"s_mov_b32 s{sFirst}, 0")
    def pf2():
        if not PF2: return 0
        e(f"s_lshr_b32 s{sT0}, s{sB}, 3\ns_mul_i32 s{sT0}, s{sT0}, 323")
        e(f"v_mov_b32 v{vAd}, {OOB}")
        if PF2==1:
            e(f"v_add_u32 v{t0}, s{sT0}, v{TID}\nv_lshlrev_b32 v{t0}, 10, v{t0}\nv_add_u32 v{t0}, 256, v{t0}")
            e(f"v_cmp_gt_u32 vcc, 323, v{TID}\nv_cndmask_b32 v{t0}, v{vAd}, v{t0}, vcc")
        else:
            e(f"v_subrev_u32 v{t1}, 323, v{TID}\nv_cmp_gt_u32 vcc, 323, v{TID}")
            e(f"v_cndmask_b32 v{t1}, v{t1}, v{TID}, vcc\nv_add_u32 v{t0}, s{sT0}, v{t1}\nv_lshlrev_b32 v{t0}, 10, v{t0}")
            e(f"v_mov_b32 v{t1}, 512\nv_mov_b32 v{vAd}, 256\nv_cndmask_b32 v{t1}, v{t1}, v{vAd}, vcc\nv_add_u32 v{t0}, v{t0}, v{t1}")
        e(f"buffer_load_dword v{vPF}, v{t0}, s[{sXR}:{sXR+3}], 0 offen")
        return 1
    PFO=opt.get('pf2o',1)
    e(f"s_cmp_ge_u32 s{sWave}, 8\ns_cbranch_scc1 K2_bin_w8")
    npf=0
    if PFO==0: npf=pf2()
    e(f"s_mov_b32 s{sWo}, s{sWb}")
    WL=sorted(AC+BDE) if BPRE else AC
    wload(WL,sWo)
    if PFO==1: npf=pf2()
    if not WPOS: e(f"s_waitcnt vmcnt({len(WL)+npf})")
    e("s_branch K2_bin_go")
    e("K2_bin_w8:")
    npf=pf2()
    if not WPOS: e(f"s_waitcnt vmcnt({npf})")
    e("s_branch K2_bin_go")
    e("K2_bin_w0:")
    e("s_waitcnt vmcnt(0)")
    e("K2_bin_go:")
    stamp(3)
    e(f"v_mov_b32 v{t1}, 1\ns_mov_b32 s{sT1}, {GC_OFF}")
    assert GC_OFF%64==0
    for r in range(5):
        lab=e.lab("K2_ba")
        e(f"s_mov_b64 exec, s[{40+2*r}:{41+2*r}]\ns_cbranch_execz {lab}")
        e(f"v_and_or_b32 v{t0}, v{R+4*r}, 60, s{sT1}")
        e(f"ds_add_rtn_u32 v{R+4*r+3}, v{t0}, v{t1}")
        e(f"{lab}:")
    e("s_mov_b64 exec, -1\ns_waitcnt lgkmcnt(0)")
    e(f"s_movk_i32 s{sT1}, {CAP}")
    for r in range(5):
        lab=e.lab("K2_bw")
        w0=R+4*r; rk=w0+3
        u=Z+10
        e(f"s_mov_b64 exec, s[{40+2*r}:{41+2*r}]\ns_cbranch_execz {lab}")
        e(f"v_cmp_gt_u32 vcc, s{sT1}, v{rk}\ns_and_b64 exec, exec, vcc")
        e(f"v_bfe_u32 v{t0}, v{w0}, 2, 4")
        e(f"v_and_b32 v{u}, 0xf0, v{rk}\nv_lshlrev_b32 v{t1}, 9, v{t0}\nv_lshl_add_u32 v{t1}, v{u}, 1, v{t1}")
        e(f"v_and_b32 v{u}, 7, v{rk}\nv_lshl_add_u32 v{t1}, v{u}, 2, v{t1}")
        e(f"v_bfe_u32 v{u}, v{rk}, 3, 1\nv_lshl_add_u32 v{t1}, v{u}, 1, v{t1}")
        e(f"v_mul_u32_u24 v{t0}, {RING}, v{t0}\nv_lshl_add_u32 v{t0}, v{rk}, 5, v{t0}")
        e(f"v_and_b32 v{rk}, 3, v{w0}\nv_lshl_add_u32 v{t0}, v{rk}, 3, v{t0}")
        e(f"v_lshrrev_b32 v{w0}, 10, v{w0}")
        e(f"v_add_u32 v{t1}, {IDX_OFF}, v{t1}\nds_write_b16 v{t1}, v{w0}")
        e(f"v_add_u32 v{t0}, {STG}, v{t0}")
        e(f"ds_write2_b32 v{t0}, v{w0+1}, v{w0+2} offset0:0 offset1:1")
        e(f"{lab}:")
    e("s_mov_b64 exec, -1")
    e(f"v_add_u32 v{II}, 25, v{II}\nv_cmp_lt_u32 vcc, v{II}, v{HI}")
    e("s_cbranch_vccnz K2_bin")
    e("s_waitcnt lgkmcnt(0)\ns_barrier")
    stamp(4)
    e(f"v_and_b32 v{t0}, 15, v{L}\nv_lshlrev_b32 v{t0}, 2, v{t0}\nv_add_u32 v{t0}, {GC_OFF}, v{t0}\nds_read_b32 v{t0}, v{t0}")
    for c in range(6):
        for p in range(2): e(f"ds_read_b32 v{vID+2*c+p}, v{IB} offset:{64*c+32*p}")
    e("s_waitcnt lgkmcnt(12)")
    e(f"v_cmp_lt_u32 vcc, {CAP}, v{t0}")
    e(f"v_readlane_b32 s{sNch}, v{t0}, s{sWave}")
    e("s_cbranch_vccnz K2_overflow")
    e("K2_nover:")
    for c in range(6):
        e(f"ds_read_b64_tr_b16 {vr(vCF+4*c,2)}, v{CA} offset:{STG+c*1024}")
        e(f"ds_read_b64_tr_b16 {vr(vCF+4*c+2,2)}, v{CA} offset:{STG+c*1024+128}")
    e(f"s_add_u32 s{sNch}, s{sNch}, 31\ns_lshr_b32 s{sNch}, s{sNch}, 5\ns_max_u32 s{sNch}, s{sNch}, 1")
    e(f"s_mov_b32 s{sS}, 0\ns_mov_b32 s{sOffC}, 0")
    e("s_waitcnt lgkmcnt(12)")
    for i in range(4): dma(0,i,sOffC)
    e("s_waitcnt lgkmcnt(0)")
    for c in (1,2):
        for i in range(4): dma(c,i,sOffC)
    stamp(5)
    e("K2_slice:")
    for n in (4,5,3,6,2): e(f"s_cmp_eq_u32 s{sNch}, {n}\ns_cbranch_scc1 K2_n{n}")
    for n in (1,2,3,6,5,4):
        e(f"K2_n{n}:")
        for c in range(n):
            issued=max(n,3) if c==0 else None
            last=min(max(n,3)-1, c+2)
            e(f"s_waitcnt vmcnt({4*(last-c)})")
            for ct in range(4):
                e(f"ds_read_b64_tr_b16 {vr(vXA+4*ct,2)}, v{vT+ct} offset:{(c%3)*4096}")
                e(f"ds_read_b64_tr_b16 {vr(vXA+4*ct+2,2)}, v{vT+ct} offset:{(c%3)*4096+512}")
            for ct in range(4):
                e(f"s_waitcnt lgkmcnt({6-2*ct})")
                C = "0" if c==0 else vr(vA1+4*ct,4)
                e(f"v_mfma_f32_16x16x32_bf16 {vr(vA1+4*ct,4)}, {vr(vXA+4*ct,4)}, {vr(vCF+4*c,4)}, {C}")
            if c+3<n:
                for i in range(4): dma(c+3,i,sOffC)
            if c==0: e("s_barrier")
        if n!=4: e("s_branch K2_gap")
    e("K2_gap:")
    stamp((f"s{sS}",8))
    e(f"s_and_b32 s{sT0}, s{sS}, 3")
    e(f"s_cmp_eq_u32 s{sT0}, 1\ns_cbranch_scc1 K2_gap_1")
    e(f"s_cmp_eq_u32 s{sT0}, 2\ns_cbranch_scc1 K2_gap_2")
    e(f"s_cmp_eq_u32 s{sS}, 3\ns_cbranch_scc1 K2_gap_3")
    e(f"s_cmp_eq_u32 s{sS}, 7\ns_cbranch_scc1 K2_gap_F")
    bufs=[vXA+4*k for k in range(4)]+[vA1+4*k for k in range(4)]
    for var in ('0','1','2','3','F'):
        q=3 if var=='F' else int(var)
        fin = var=='F'
        e(f"K2_gap_{var}:")
        if not fin:
            if q<3: e(f"s_add_u32 s{sOffN}, s{sOffC}, 256")
            else: e(f"s_mov_b32 s{sOffN}, 128")
        if q==0:
            lab=e.lab("K2_nw")
            e(f"s_cmp_ge_u32 s{sWave}, 8\ns_cbranch_scc1 {lab}")
            if BPRE: e(f"s_cmp_eq_u32 s{sS}, 0\ns_cbranch_scc1 {lab}")
            e(f"s_lshr_b32 s{sWo}, s{sS}, 2\ns_mul_i32 s{sWo}, s{sWo}, 81920\ns_add_u32 s{sWo}, s{sWo}, s{sWb}")
            wload(BDE,sWo)
            e(f"{lab}:")
        if q==1:
            lab=e.lab("K2_nw")
            e(f"s_cmp_ge_u32 s{sWave}, 8\ns_cbranch_scc1 {lab}")
            e(f"s_cmp_lg_u32 s{sS}, 1\ns_cbranch_scc1 {lab}")
            e(f"s_add_u32 s{sWo}, s{sWb}, 81920")
            wload(AC,sWo)
            e(f"{lab}:")
        defer=[] if fin else [(c,i) for c in range(3) for i in range(4)]
        pre=defer[:4*PRE]; post=defer[4*PRE:]
        for (c,i) in pre: dma(c,i,sOffN)
        e("s_nop 7" if not pre else "s_nop 1")
        for ks in range(2):
            for hh in range(2):
                a=vA1+4*(2*ks+hh)
                e(f"v_cvt_pk_bf16_f32 v{vXA+4*ks+2*hh}, v{a}, v{a+1}")
                e(f"v_cvt_pk_bf16_f32 v{vXA+4*ks+2*hh+1}, v{a+2}, v{a+3}")
        if q>0:
            tneg={3:1,1:2,2:3}[q]
            msk=(0x11111111<<tneg)&0xffffffff
            e(f"s_mov_b32 exec_lo, {hex(msk)}\ns_mov_b32 exec_hi, {hex(msk)}")
            for k in range(8): e(f"v_xor_b32 v{vXA+k}, 0x80008000, v{vXA+k}")
            e("s_mov_b64 exec, -1")
        e(f"ds_write_b128 v{vSW}, {vr(vXA,4)}")
        e(f"ds_write_b128 v{vSW}, {vr(vXA+4,4)} offset:{S_KS}")
        e("s_waitcnt lgkmcnt(0)\ns_barrier")
        stamp((f"s{sS}",16))
        e(f"s_cmp_ge_u32 s{sWave}, 8\ns_cbranch_scc1 K2_gw_{var}")
        if q==0: plan=[(0,0,0),(1,2,1),(2,2,2),(3,2,3)]
        else:
            k=q-1; plan=[(0,3,q),(q,1,0)]
            for j in range(3):
                if j!=k: plan.append((1+j,4,1+(3-j-k)))
        items=[(t,m,o,ks,mt) for (t,m,o) in plan for ks in range(2) for mt in range(3)]
        n=len(items); assert n==24
        def rd(i):
            t,m,o,ks,mt=items[i]
            e(f"ds_read_b128 {vr(bufs[i%8],4)}, v{vSR} offset:{t*S_T+ks*S_KS+mt*1024}")
        for i in range(7): rd(i)
        npost=len(post)
        pos=[int(round((j+0.5)*24/npost-1)) for j in range(npost)] if (npost and npost!=8) else (DPOS if npost else [])
        pj=0
        for i in range(n):
            t,m,o,ks,mt=items[i]
            e(f"s_waitcnt lgkmcnt({min(6,n-1-i)})")
            acc=vA2+(o*3+mt)*4
            e(f"v_mfma_f32_16x16x32_bf16 {vr(acc,4)}, {vr(vW+(m*2+ks)*4,4)}, {vr(bufs[i%8],4)}, {vr(acc,4)}")
            if i+7<n: rd(i+7)
            while pj<npost and pos[pj]<=i:
                dma(post[pj][0],post[pj][1],sOffN); pj+=1
        assert pj==npost
        e(f"s_branch K2_gn_{var}")
        e(f"K2_gw_{var}:")
        for (c,i) in post: dma(c,i,sOffN)
        if (PFW&2) and var==str(PFWS&3):
            lab=e.lab("K2_pfw")
            e(f"s_cmp_lg_u32 s{sS}, {PFWS}\ns_cbranch_scc1 {lab}")
            pfw(WF_OFF+81920,640,21,lab)
        e(f"K2_gn_{var}:")
        stamp((f"s{sS}",24))
        if not fin:
            e(f"s_mov_b32 s{sOffC}, s{sOffN}\ns_add_u32 s{sS}, s{sS}, 1\ns_branch K2_slice")
    e(f"s_cmp_eq_u32 s{sMode}, 0\ns_cbranch_scc1 K2_epi")
    e(f"s_add_u32 s{sLo}, s{sLo}, {CAP}\ns_cmp_ge_u32 s{sLo}, s{sTot}\ns_cbranch_scc1 K2_epi")
    e("s_waitcnt vmcnt(0)\ns_branch K2_round")
    e("K2_epi:")
    e(f"s_cmp_ge_u32 s{sWave}, 8\ns_cbranch_scc1 K2_fin")
    e(f"v_mbcnt_lo_u32_b32 v2, -1, 0\nv_mbcnt_hi_u32_b32 v2, -1, v2")
    e(f"v_and_b32 v3, 15, v2\nv_lshrrev_b32 v1, 4, v2\nv_lshlrev_b32 v1, 3, v1\nv_lshl_add_u32 v1, v3, 10, v1")
    e(f"v_mov_b32 v0, {OOB}\nv_cmp_gt_u32 vcc, 8, v3\ns_mul_i32 s{sT0}, s{sB}, {NPB*1024}\ns_lshl_b32 s{sT1}, s{sWave}, 5\ns_add_u32 s40, s{sT0}, s{sT1}")
    e(f"v_cndmask_b32 v0, v0, v1, vcc")
    e("s_add_u32 s41, s40, 16384\ns_add_u32 s42, s41, 16384")
    e("s_mov_b32 s43, 0xbfb8aa3b")
    for mt in range(3):
        a0=vA2+mt*4
        g=vXA
        for r in range(4): e(f"v_mul_f32 v{g+r}, s43, v{a0+r}")
        for r in range(4): e(f"v_exp_f32 v{g+r}, v{g+r}")
        e("s_nop 0")
        for r in range(4): e(f"v_add_f32 v{g+r}, 1.0, v{g+r}")
        for r in range(4): e(f"v_rcp_f32 v{g+r}, v{g+r}")
        pk=vA1+mt*8 if mt<2 else vCF
        e(f"v_cvt_pk_bf16_f32 v{pk}, v{a0}, v{a0+1}\nv_cvt_pk_bf16_f32 v{pk+1}, v{a0+2}, v{a0+3}")
        for o in range(1,4):
            a=vA2+(o*3+mt)*4
            for r in range(4): e(f"v_mul_f32 v{a+r}, v{a+r}, v{g+r}")
            e(f"v_cvt_pk_bf16_f32 v{pk+2*o}, v{a}, v{a+1}\nv_cvt_pk_bf16_f32 v{pk+2*o+1}, v{a+2}, v{a+3}")
        for o in range(4):
            e(f"buffer_store_dwordx2 {vr(pk+2*o,2)}, v{0 if mt==2 else 1}, s[{sOUT}:{sOUT+3}], s{40+mt} offen offset:{o*256}")
    e("K2_fin:")
    stamp(6)
    if ts:
        e("s_waitcnt vmcnt(0)")
        stamp(7)
        e(f"v_mbcnt_lo_u32_b32 v2, -1, 0\nv_mbcnt_hi_u32_b32 v2, -1, v2\nv_lshlrev_b32 v2, 2, v2")
        e(f"s_mul_i32 s40, s{sB}, 10\ns_add_u32 s40, s40, s{sWave}\ns_lshl_b32 s40, s40, 8\ns_add_u32 s40, s40, {5<<20}")
        e(f"s_mov_b32 s{sWS+2}, {8<<20}\nbuffer_store_dword v{NV}, v2, s[{sWS}:{sWS+3}], s40 offen")
    e("s_waitcnt vmcnt(0) lgkmcnt(0)\ns_endpgm")
    e("K2_overflow:")
    e(f"s_cmp_lg_u32 s{sMode}, 0\ns_cbranch_scc1 K2_nover")
    e(f"s_mov_b32 s{sMode}, 1\ns_mov_b32 s{sLo}, 0")
    e(f"v_lshlrev_b32 v{t0}, 2, v{P}\nv_add_u32 v{t0}, {PREF_OFF}, v{t0}")
    e(f"ds_write_b32 v{t0}, v{CNT}")
    e("s_waitcnt lgkmcnt(0)\ns_barrier")
    e(f"v_mov_b32 v{RB}, 0\nv_mov_b32 v{HI}, 0\ns_mov_b32 s{sT0}, 0")
    e("K2_pl:")
    e(f"s_lshl_b32 s{sT1}, s{sT0}, 2\ns_add_u32 s{sT1}, s{sT1}, {PREF_OFF}\nv_mov_b32 v{t1}, s{sT1}\nds_read_b32 v{t1}, v{t1}")
    e(f"v_cmp_lt_u32 vcc, s{sT0}, v{P}")
    e("s_waitcnt lgkmcnt(0)")
    e(f"v_add_u32 v{HI}, v{HI}, v{t1}\nv_cndmask_b32 v{t1}, 0, v{t1}, vcc\nv_add_u32 v{RB}, v{RB}, v{t1}")
    e(f"s_add_u32 s{sT0}, s{sT0}, 1\ns_cmp_lt_u32 s{sT0}, 128\ns_cbranch_scc1 K2_pl")
    e("s_barrier")
    e(f"ds_write_b32 v{t0}, v{RB}")
    e(f"v_readfirstlane_b32 s{sTot}, v{HI}")
    e("s_waitcnt vmcnt(0) lgkmcnt(0)\ns_barrier\ns_branch K2_round")
    e("K2_done:\ns_endpgm")
    return e.text()

HEADER=open("standalone__tensor_product_equiv_equiformer__graph.s.ref").read().split("; Override launch geometry")[0]

def desc(name,nv,ns):
    return f""".p2align 6
.amdhsa_kernel {name}
  .amdhsa_next_free_vgpr {nv}
  .amdhsa_next_free_sgpr {ns}
  .amdhsa_accum_offset {(nv+3)//4*4}
  .amdhsa_group_segment_fixed_size 0
  .amdhsa_kernarg_size 96
  .amdhsa_user_sgpr_count 2
  .amdhsa_user_sgpr_kernarg_segment_ptr 1
  .amdhsa_system_sgpr_workgroup_id_x 1
.end_amdhsa_kernel"""

def build(opt={}):
    s=HEADER
    s+=f"; Two launches: (1) bin edges by destination + fold weights + prefetch, (2) gather/aggregate + GEMM + gate.\n"
    K1G=opt.get('k1g',144 if opt.get('pf',0) in (0,4) else 256)
    L1=f"; @launch kernel={K1} grid=({K1G},1,1) block=(640,1,1) lds={K1_LDS}\n"
    L2=f"; @launch kernel={K2} grid=({NB},1,1) block=(640,1,1) lds={K2_LDS}\n"
    L0=f"; @launch kernel=eqf_nop_kernel grid=(1,1,1) block=(64,1,1) lds=0\n"
    seq=opt.get('seq','12')
    for ch in str(seq): s+={'1':L1,'2':L2,'0':L0}[ch]
    s+='.amdgcn_target "amdgcn-amd-amdhsa--gfx950"\n.text\n'
    s+=gen_k1(opt)+"\n"+gen_k2(opt)+"\n"
    if '0' in str(seq): s+=".globl eqf_nop_kernel\n.p2align 8\n.type eqf_nop_kernel,@function\neqf_nop_kernel:\n    s_endpgm\n"
    s+='.section .rodata,"a"\n'+(".p2align 7\n" if opt.get('kdal') else "")+desc(K1,80,64)+"\n"+desc(K2,NV+(1 if opt.get("ts") else 0),64)+"\n"
    if '0' in str(seq): s+=desc("eqf_nop_kernel",8,16)+"\n"
    for m in re.finditer(r"buffer_\w+ .*offset:(\d+)", s):
        assert int(m.group(1))<4096, m.group(0)
    for m in re.finditer(r"ds_\w+ .*offset:(\d+)", s):
        assert int(m.group(1))<65536, m.group(0)
    return s

if __name__=="__main__":
    out=sys.argv[1] if len(sys.argv)>1 else "standalone__tensor_product_equiv_equiformer__graph.s"
    opt={'pf':4,'pfk':1,'kdal':1}
    for a in sys.argv[2:]:
        k,v=a.split("="); opt[k]=eval(v)
    open(out,"w").write(build(opt))
    print("wrote",out)
```

```python
import re, sys

N=10000; E=320000
NPROD=128; EPW=2500
NB=250; NPB=40
TAB_OFF=0; WF_OFF=131072; REC_OFF=294912
WS_USED=REC_OFF+NPROD*EPW*12
XBYTES=N*1024
OOB=0x40000000
CAP=192
RING=12288
S_OFF=10*RING
S_T=5136; S_KS=2560
IDX_OFF=S_OFF+4*S_T
GC_OFF=IDX_OFF+10*768
PREF_OFF=GC_OFF+64
K2_LDS=PREF_OFF+512
K1_CNT=30016; K1_START=31040; K1_LDS=32064

K1="eqf_bin_kernel"
K2="standalone__tensor_product_equiv_equiformer__graph_kernel"

class A:
    def __init__(s): s.L=[]; s.n=0
    def __call__(s, txt):
        for ln in txt.split("\n"):
            ln=ln.strip()
            if ln: s.L.append(ln)
    def lab(s, base):
        s.n+=1; return f"{base}_{s.n}"
    def text(s):
        out=[]
        for l in s.L:
            out.append(l if l.endswith(":") or l.startswith(".") else "    "+l)
        return "\n".join(out)

def vr(a,n): return f"v[{a}:{a+n-1}]"
def sr(a,n): return f"s[{a}:{a+n-1}]"

def srd(e, d, plo, nbytes):
    e(f"s_mov_b32 s{d}, s{plo}\ns_mov_b32 s{d+1}, s{plo+1}\ns_mov_b32 s{d+2}, {nbytes}\ns_mov_b32 s{d+3}, 0x20000")

def gen_k1(opt):
    e=A()
    ts=opt.get('ts')
    TV=72
    def stamp(k):
        if not ts: return
        e(f"s_memrealtime s[60:61]\ns_waitcnt lgkmcnt(0)\nv_writelane_b32 v{TV}, s60, {k}")
    def dump():
        if not ts: return
        e("s_waitcnt vmcnt(0)")
        stamp(7)
        e(f"v_mbcnt_lo_u32_b32 v2, -1, 0\nv_mbcnt_hi_u32_b32 v2, -1, v2\nv_lshlrev_b32 v2, 2, v2")
        e(f"v_lshrrev_b32 v1, 6, v0\ns_nop 1\nv_readfirstlane_b32 s58, v1")
        e(f"s_mul_i32 s59, s2, 10\ns_add_u32 s59, s59, s58\ns_lshl_b32 s59, s59, 8\ns_add_u32 s59, s59, {6<<20}")
        e(f"s_mov_b32 s40, s20\ns_mov_b32 s41, s21\ns_mov_b32 s42, {8<<20}\ns_mov_b32 s43, 0x20000")
        e(f"buffer_store_dword v{TV}, v2, s[40:43], s59 offen")
    e(f".globl {K1}\n.p2align 8\n.type {K1},@function\n{K1}:")
    K1G=opt.get('k1g',144 if opt.get('pf',0) in (0,4) else 256)
    e(f"s_cmp_ge_u32 s2, {K1G}\ns_cbranch_scc1 K1_done")
    if ts: e(f"v_mov_b32 v{TV}, 0")
    stamp(0)
    e("s_load_dwordx4 s[4:7], s[0:1], 0")
    e("s_load_dwordx4 s[8:11], s[0:1], 16")
    e("s_load_dwordx4 s[12:15], s[0:1], 32")
    e("s_load_dwordx4 s[16:19], s[0:1], 48")
    e("s_load_dwordx2 s[20:21], s[0:1], 88")
    e("s_cmp_ge_u32 s2, 128\ns_cbranch_scc1 K1_helper")
    e("v_lshlrev_b32 v1, 2, v0\nv_mov_b32 v2, 0")
    e("v_cmp_gt_u32 vcc, 0x100, v0\ns_and_saveexec_b64 s[22:23], vcc")
    e(f"ds_write_b32 v1, v2 offset:{K1_CNT}")
    e("s_mov_b64 exec, s[22:23]")
    e("v_lshlrev_b32 v1, 4, v0")
    e("v_mul_u32_u24 v2, 24, v0")
    e("v_lshlrev_b32 v3, 3, v0")
    e("s_mul_i32 s44, s2, 10000\ns_mul_i32 s45, s2, 15000\ns_mul_i32 s46, s2, 5000")
    e("v_cmp_gt_u32 vcc, 0x271, v0")
    e("s_waitcnt lgkmcnt(0)")
    stamp(1)
    srd(e,24,10,E*4)
    srd(e,28,12,E*4)
    srd(e,32,6,E*6)
    srd(e,36,8,E*2)
    srd(e,40,20,WS_USED)
    if opt.get('k1nost'): e("s_mov_b32 s42, 0")
    e("s_and_saveexec_b64 s[48:49], vcc")
    e("s_mov_b64 s[50:51], exec")
    e("buffer_load_dwordx4 v[8:11], v1, s[28:31], s44 offen")
    e("buffer_load_dwordx4 v[4:7], v1, s[24:27], s44 offen")
    e("buffer_load_dwordx2 v[18:19], v3, s[36:39], s46 offen")
    e("buffer_load_dwordx4 v[12:15], v2, s[32:35], s45 offen")
    e("buffer_load_dwordx2 v[16:17], v2, s[32:35], s45 offen offset:16")
    def pf4():
        srd(e,56,4,XBYTES)
        e("s_lshr_b32 s62, s2, 3\ns_mul_i32 s62, s62, 625\nv_add_u32 v73, s62, v0\nv_lshlrev_b32 v73, 10, v73")
        for k in range(opt.get('pfk',1)):
            e(f"buffer_load_dword v{74+k}, v73, s[56:59], 0 offen offset:{k*256}")
    NPF=opt.get('pfk',1) if (opt.get('pf',0)==4 and opt.get('pfpos',1)==0) else 0
    if NPF: pf4()
    e("s_barrier")
    e("v_mov_b32 v3, 1")
    e("s_mov_b32 s47, 52429")
    e(f"s_waitcnt vmcnt({4+NPF})")
    stamp(2)
    for r in range(4):
        e(f"v_mul_u32_u24 v{20+r}, s47, v{8+r}")
        e(f"v_lshrrev_b32 v{20+r}, 21, v{20+r}")
        e(f"v_mul_u32_u24 v{24+r}, 40, v{20+r}")
        e(f"v_sub_u32 v{24+r}, v{8+r}, v{24+r}")
        e(f"v_lshlrev_b32 v{20+r}, 2, v{20+r}")
        e(f"ds_add_rtn_u32 v{28+r}, v{20+r}, v3 offset:{K1_CNT}")
    e(f"s_waitcnt vmcnt({NPF})")
    stamp(3)
    if opt.get('pf',0)==4 and opt.get('pfpos',1)==1: pf4()
    ylo=lambda d,s: e(f"v_lshlrev_b32 v{d}, 16, v{s}")
    yhi=lambda d,s: e(f"v_and_b32 v{d}, 0xffff0000, v{s}")
    ys=[]
    for k in range(12): ys.append((12+k//2, k&1))
    for r in range(4):
        e(f"v_lshl_or_b32 v{32+4*r}, v{4+r}, 10, v{24+r}")
        (yhi if r&1 else ylo)(48, 18+r//2)
        for j in range(3):
            reg,hi=ys[3*r+j]
            (yhi if hi else ylo)(49+j, reg)
        for j in range(3):
            e(f"v_mul_f32 v{49+j}, v48, v{49+j}")
        e(f"v_cvt_pk_bf16_f32 v{33+4*r}, v48, v49")
        e(f"v_cvt_pk_bf16_f32 v{34+4*r}, v50, v51")
    e("s_mov_b64 exec, s[48:49]")
    e("s_waitcnt lgkmcnt(0)\ns_barrier")
    stamp(4)
    e("v_mbcnt_lo_u32_b32 v52, -1, 0\nv_mbcnt_hi_u32_b32 v52, -1, v52")
    e("v_lshlrev_b32 v53, 4, v52")
    e(f"ds_read_b128 v[56:59], v53 offset:{K1_CNT}")
    e("s_waitcnt lgkmcnt(0)")
    e("v_add_u32 v61, v56, v57\nv_add_u32 v62, v61, v58\nv_add_u32 v63, v62, v59")
    e("v_mov_b32 v54, v63")
    for sh in (1,2,4,8):
        e("s_nop 1")
        e(f"v_add_u32_dpp v54, v54, v54 row_shr:{sh} row_mask:0xf bank_mask:0xf bound_ctrl:0")
    e("s_nop 1\nv_add_u32_dpp v54, v54, v54 row_bcast:15 row_mask:0xa bank_mask:0xf")
    e("s_nop 1\nv_add_u32_dpp v54, v54, v54 row_bcast:31 row_mask:0xc bank_mask:0xf")
    e("v_sub_u32 v64, v54, v63")
    e("v_add_u32 v65, v64, v56\nv_add_u32 v66, v64, v61\nv_add_u32 v67, v64, v62")
    e(f"ds_write_b128 v53, v[64:67] offset:{K1_START}")
    e("v_readfirstlane_b32 s52, v0")
    for r in range(4):
        e(f"v_lshl_or_b32 v{68+r}, v{56+r}, 16, v{64+r}")
    e("s_cmp_lg_u32 s52, 0\ns_cbranch_scc1 K1_notab")
    e(f"s_lshl_b32 s53, s2, 10")
    ST=opt.get('st','')
    e(f"buffer_store_dwordx4 v[68:71], v53, s[40:43], s53 offen{ST}")
    e("K1_notab:")
    e("s_mov_b64 exec, s[50:51]")
    e("s_waitcnt lgkmcnt(0)")
    for r in range(4):
        e(f"ds_read_b32 v{56+r}, v{20+r} offset:{K1_START}")
    e("s_waitcnt lgkmcnt(0)")
    for r in range(4):
        e(f"v_add_u32 v{56+r}, v{56+r}, v{28+r}")
        e(f"v_mul_u32_u24 v{56+r}, 12, v{56+r}")
        e(f"ds_write2_b32 v{56+r}, v{32+4*r}, v{33+4*r} offset0:0 offset1:1")
        e(f"ds_write_b32 v{56+r}, v{34+4*r} offset:8")
    e("s_mov_b64 exec, s[48:49]")
    e("s_waitcnt lgkmcnt(0)\ns_barrier")
    stamp(5)
    e("v_lshlrev_b32 v1, 4, v0")
    e(f"s_mul_i32 s53, s2, {EPW*12}\ns_add_u32 s53, s53, {REC_OFF}")
    e("ds_read_b128 v[4:7], v1\nds_read_b128 v[8:11], v1 offset:10240\nds_read_b128 v[12:15], v1 offset:20480")
    e("v_add_u32 v2, 10240, v1\nv_add_u32 v3, 20480, v1")
    e(f"v_cmp_gt_u32 vcc, {1875-1280}, v0")
    e(f"s_waitcnt lgkmcnt(2)\nbuffer_store_dwordx4 v[4:7], v1, s[40:43], s53 offen{ST}")
    e(f"s_waitcnt lgkmcnt(1)\nbuffer_store_dwordx4 v[8:11], v2, s[40:43], s53 offen{ST}")
    e("s_and_saveexec_b64 s[22:23], vcc")
    e("s_cbranch_execz K1_pend")
    e(f"s_waitcnt lgkmcnt(0)\nbuffer_store_dwordx4 v[12:15], v3, s[40:43], s53 offen{ST}")
    e("K1_pend:")
    if ts:
        e("s_mov_b64 exec, -1")
        stamp(6)
        dump()
    e("s_waitcnt vmcnt(0) lgkmcnt(0)\ns_endpgm")
    e("K1_helper:")
    e("s_sub_u32 s22, s2, 128")
    e("v_lshrrev_b32 v1, 6, v0\nv_and_b32 v2, 63, v0")
    e("s_mul_i32 s23, s22, 640\nv_add_u32 v3, s23, v0\nv_lshlrev_b32 v3, 7, v3")
    e("v_readfirstlane_b32 s44, v1")
    e("s_lshr_b32 s23, s22, 3\ns_mul_i32 s23, s23, 625\nv_add_u32 v4, s23, v0\nv_lshlrev_b32 v4, 10, v4")
    e("s_waitcnt lgkmcnt(0)")
    stamp(1)
    srd(e,24,4,XBYTES)
    e("s_cmp_ge_u32 s22, 16\ns_cbranch_scc1 K1_pf")
    if opt.get('pfc'):
        e("s_getpc_b64 s[56:57]\nK1_pcb:")
        e(f"s_add_u32 s56, s56, {K2}-K1_pcb\ns_addc_u32 s57, s57, 0")
        e("v_lshlrev_b32 v60, 7, v2\nv_mov_b32 v61, s57\nv_add_co_u32 v60, vcc, s56, v60\nv_addc_co_u32 v61, vcc, 0, v61, vcc")
        e("global_load_dword v62, v[60:61], off")
        e("v_add_co_u32 v60, vcc, 0x2000, v60\nv_addc_co_u32 v61, vcc, 0, v61, vcc")
        e("v_cmp_gt_u32 vcc, 32, v2\ns_and_saveexec_b64 s[58:59], vcc\nglobal_load_dword v63, v[60:61], off\ns_mov_b64 exec, s[58:59]")
    srd(e,28,14,1280)
    srd(e,32,16,256*256)
    srd(e,36,18,384*256)
    srd(e,40,20,WS_USED)
    e("s_mul_i32 s45, s22, 10\ns_add_u32 s45, s45, s44")
    e("s_and_b32 s46, s45, 1")
    e("s_lshr_b32 s47, s45, 1")
    e("s_mul_i32 s48, s47, 52429\ns_lshr_b32 s48, s48, 18")
    e("s_mul_i32 s49, s48, 5\ns_sub_u32 s49, s47, s49")
    e("s_and_b32 s50, s48, 7\ns_lshr_b32 s51, s48, 3")
    e("s_lshl_b32 s52, s51, 6\ns_lshl_b32 s53, s46, 5\ns_add_u32 s52, s52, s53")
    e("v_lshrrev_b32 v5, 4, v2\nv_and_b32 v6, 15, v2")
    e("v_lshlrev_b32 v7, 10, v5\nv_lshl_add_u32 v7, v6, 1, v7")
    e("v_lshlrev_b32 v8, 3, v5")
    e("s_lshl_b32 s53, s49, 7\ns_add_u32 s53, s53, s52\ns_lshl_b32 s53, s53, 1")
    e("buffer_load_dwordx2 v[10:11], v8, s[28:31], s53 offen")
    e("buffer_load_dwordx2 v[12:13], v8, s[28:31], s53 offen offset:32")
    e("s_cmp_ge_u32 s49, 2\ns_cbranch_scc1 K1_w1")
    for (lab,sub,R) in (("",0,32),("K1_w1:",2,36)):
        if lab: e(lab)
        e(f"s_sub_u32 s54, s49, {sub}\ns_lshl_b32 s54, s54, 7\ns_add_u32 s54, s54, s52\ns_lshl_b32 s54, s54, 8")
        e("s_lshl_b32 s55, s50, 5\ns_add_u32 s54, s54, s55\ns_add_u32 s55, s54, 4096")
        for j in range(4): e(f"buffer_load_ushort v{16+j}, v7, s[{R}:{R+3}], s54 offen offset:{j*256}")
        for j in range(4): e(f"buffer_load_ushort v{20+j}, v7, s[{R}:{R+3}], s55 offen offset:{j*256}")
        if not lab: e("s_branch K1_wj")
    e("K1_wj:")
    PF=opt.get('pf',0)
    def pfl():
        if PF>=3: return
        if PF>=1: e("buffer_load_dword v30, v3, s[24:27], 0 offen")
        if PF>=2: e("buffer_load_dword v31, v3, s[24:27], 0 offen offset:64")
        if PF>=1: e("buffer_load_dword v32, v4, s[24:27], 0 offen")
        if PF>=2: e("buffer_load_dword v33, v4, s[24:27], 0 offen offset:64")
    pfl()
    npf=2*PF if PF<3 else 0
    e(f"s_waitcnt vmcnt({npf})")
    for j in range(8):
        src=10+j//2
        if j&1: e(f"v_and_b32 v24, 0xffff0000, v{src}")
        else:   e(f"v_lshlrev_b32 v24, 16, v{src}")
        e(f"v_lshlrev_b32 v{16+j}, 16, v{16+j}")
        e(f"v_mul_f32 v{16+j}, v24, v{16+j}")
    for k in range(4): e(f"v_cvt_pk_bf16_f32 v{40+k}, v{16+2*k}, v{17+2*k}")
    e(f"s_lshl_b32 s54, s45, 10\ns_add_u32 s54, s54, {WF_OFF}")
    e("v_lshlrev_b32 v9, 4, v2")
    e(f"buffer_store_dwordx4 v[40:43], v9, s[40:43], s54 offen{ST}")
    dump()
    e("s_waitcnt vmcnt(0)\ns_endpgm")
    e("K1_pf:")
    if PF==3:
        PFK=opt.get('pfk',2)
        e("s_sub_u32 s23, s2, 144\ns_lshr_b32 s23, s23, 3\ns_mul_i32 s23, s23, 715")
        e("v_add_u32 v3, s23, v0\nv_lshlrev_b32 v3, 10, v3")
        e(f"v_add_u32 v4, {640*1024}, v3\nv_mov_b32 v5, {OOB}\nv_cmp_gt_u32 vcc, 75, v0\nv_cndmask_b32 v4, v5, v4, vcc")
        for k in range(PFK):
            e(f"buffer_load_dword v{30+2*k}, v3, s[24:27], 0 offen offset:{k*256}")
            e(f"buffer_load_dword v{31+2*k}, v4, s[24:27], 0 offen offset:{k*256}")
    else: pfl()
    e("s_waitcnt vmcnt(0)")
    dump()
    e("K1_done:\ns_endpgm")
    return e.text()

vAd=0; vP=2; vT=4; vID=8
vXA=20; vA1=36; vCF=52; vW=76; vA2=116; vSW=164; vSR=165; NV=166
sXR=8; sWS=12; sOUT=16
sWave=20; sNch=21; sRing=22; sOffC=24; sOffN=25; sS=28; sWb=29
sLo=34; sMode=35; sTot=36; sT0=37; sT1=38; sFirst=39
sK1024=50; sB=52; sWo=53
IDS=512
STG=6144

def gen_k2(opt):
    e=A()
    ts=opt.get('ts')
    DPOS=opt.get('dpos',[1,4,7,10,13,16,19,22])
    PRE=opt.get('pre',1)
    def stamp(k):
        if not ts: return
        e(f"s_memrealtime s[56:57]\ns_waitcnt lgkmcnt(0)")
        if isinstance(k,int): e(f"v_writelane_b32 v{NV}, s56, {k}")
        else:
            e(f"s_add_u32 m0, {k[0]}, {k[1]}\nv_writelane_b32 v{NV}, s56, m0")
    adn=[0]
    def dma(c,i,soff):
        ad=vAd+(adn[0]&1); adn[0]+=1
        e(f"s_add_u32 m0, s{sRing}, {(c%3)*4096+i*1024}")
        e(f"v_mad_u32_u16 v{ad}, v{vID+2*c+(i>>1)}, s{sK1024}, v{vP+(i&1)} op_sel:[{i&1},0,0,0]")
        e(f"buffer_load_dwordx4 v{ad}, s[{sXR}:{sXR+3}], s{soff} offen lds")
    def wload(ks_, hexpr):
        e(f"v_mbcnt_lo_u32_b32 v{vAd+1}, -1, 0\nv_mbcnt_hi_u32_b32 v{vAd+1}, -1, v{vAd+1}\nv_lshlrev_b32 v{vAd+1}, 4, v{vAd+1}")
        cur=0
        for k in ks_:
            while cur<k//4:
                e(f"s_add_u32 s{hexpr}, s{hexpr}, 4096"); cur+=1
            e(f"buffer_load_dwordx4 {vr(vW+4*k,4)}, v{vAd+1}, s[{sWS}:{sWS+3}], s{hexpr} offen offset:{(k%4)*1024}")
    AC=[0,1,4,5]; BDE=[2,3,6,7,8,9]
    e(f".globl {K2}\n.p2align 8\n.type {K2},@function\n{K2}:")
    e(f"s_cmp_ge_u32 s2, {NB}\ns_cbranch_scc1 K2_done")
    if ts: e(f"v_mov_b32 v{NV}, 0")
    stamp(0)
    if opt.get('k2exit'):
        e(f"s_load_dwordx2 s[{sWS}:{sWS+1}], s[0:1], 88\nv_lshrrev_b32 v1, 6, v0\ns_mov_b32 s{sB}, s2\ns_nop 1\nv_readfirstlane_b32 s{sWave}, v1\ns_mov_b32 s{sWS+3}, 0x20000\ns_waitcnt lgkmcnt(0)\ns_branch K2_fin")
    e(f"s_load_dwordx2 s[{sXR}:{sXR+1}], s[0:1], 0")
    e(f"s_load_dwordx2 s[{sWS}:{sWS+1}], s[0:1], 88")
    e(f"s_load_dwordx2 s[{sOUT}:{sOUT+1}], s[0:1], 72")
    e("v_lshrrev_b32 v1, 6, v0")
    e(f"s_mov_b32 s{sB}, s2")
    e(f"v_readfirstlane_b32 s{sWave}, v1")
    e(f"s_mov_b32 s{sK1024}, 1024")
    e(f"s_mov_b32 s{sMode}, 0\ns_mov_b32 s{sLo}, 0\ns_mov_b32 s{sTot}, 0")
    e(f"s_mov_b32 s{sXR+2}, {XBYTES}\ns_mov_b32 s{sXR+3}, 0x20000\ns_mov_b32 s{sWS+2}, {WS_USED}\ns_mov_b32 s{sWS+3}, 0x20000")
    e(f"s_mov_b32 s{sOUT+2}, {XBYTES}\ns_mov_b32 s{sOUT+3}, 0x20000")
    for r in range(48): e(f"v_mov_b32 v{vA2+r}, 0")
    e(f"s_mul_i32 s{sRing}, s{sWave}, {RING}")
    e(f"s_mul_i32 s{sWb}, s{sWave}, 10240\ns_add_u32 s{sWb}, s{sWb}, {WF_OFF}")
    e("s_waitcnt lgkmcnt(0)")
    stamp(1)
    e("K2_round:")
    L,TID,P,SUB,TABV,RB,II,HI,CNT,t0,t1,i16,G,r_,cc=range(56,71); CA=75
    BPRE=opt.get('bpre',1)
    PF2=opt.get('pf2',0)
    vPF=vXA+15
    e(f"v_mbcnt_lo_u32_b32 v{L}, -1, 0\nv_mbcnt_hi_u32_b32 v{L}, -1, v{L}")
    e(f"s_lshl_b32 s{sT0}, s{sWave}, 6\nv_add_u32 v{TID}, s{sT0}, v{L}")
    e(f"s_mov_b32 s{sT1}, 52429\nv_mul_u32_u24 v{P}, s{sT1}, v{TID}\nv_lshrrev_b32 v{P}, 18, v{P}")
    e(f"v_lshlrev_b32 v{t0}, 10, v{P}\ns_lshl_b32 s{sT0}, s{sB}, 2")
    e(f"buffer_load_dword v{TABV}, v{t0}, s[{sWS}:{sWS+3}], s{sT0} offen")
    PFW=opt.get('pfw',3); PFWS=opt.get('pfws',[3]); PFE=opt.get('pfe',1280)
    def pfw(base,nlines,per,lab):
        e(f"s_cmp_lg_u32 s{sWave}, 9\ns_cbranch_scc1 {lab}")
        e(f"s_lshr_b32 s{sT0}, s{sB}, 3\ns_mul_i32 s{sT0}, s{sT0}, {per}")
        e(f"v_mbcnt_lo_u32_b32 v77, -1, 0\nv_mbcnt_hi_u32_b32 v77, -1, v77\nv_add_u32 v78, s{sT0}, v77")
        e(f"v_cmp_gt_u32 vcc, {per}, v77\nv_mov_b32 v77, {nlines}\nv_cndmask_b32 v78, v77, v78, vcc")
        e(f"v_cmp_gt_u32 vcc, {nlines}, v78\nv_lshlrev_b32 v78, 7, v78\nv_add_u32 v78, {base}, v78\nv_mov_b32 v77, {OOB}\nv_cndmask_b32 v78, v77, v78, vcc")
        e(f"buffer_load_dword v76, v78, s[{sWS}:{sWS+3}], 0 offen")
        e(f"{lab}:")
    if PFW&1: pfw(WF_OFF,PFE,(PFE+30)//31,"K2_pfw0")
    e(f"v_mul_u32_u24 v{SUB}, 5, v{P}\nv_sub_u32 v{SUB}, v{TID}, v{SUB}")
    Z=vXA
    for r in range(4): e(f"v_mov_b32 v{Z+r}, 0")
    e(f"v_lshlrev_b32 v{t1}, 4, v{L}\nv_add_u32 v{t1}, s{sRing}, v{t1}")
    for k in range(6): e(f"ds_write_b128 v{t1}, {vr(Z,4)} offset:{STG+k*1024}")
    e(f"s_mul_i32 s{sT0}, s{sWave}, {IDS}\ns_add_u32 s{sT0}, s{sT0}, {IDX_OFF}")
    e(f"v_lshlrev_b32 v{Z+4}, 2, v{L}\nv_add_u32 v{Z+4}, s{sT0}, v{Z+4}\nv_mov_b32 v{Z+5}, -1")
    for k in range(2): e(f"ds_write_b32 v{Z+4}, v{Z+5} offset:{k*256}")
    e(f"v_and_b32 v{Z+6}, 15, v{L}\nv_lshlrev_b32 v{Z+6}, 2, v{Z+6}\nv_add_u32 v{Z+6}, {GC_OFF}, v{Z+6}")
    e(f"ds_write_b32 v{Z+6}, v{Z}")
    e(f"v_and_b32 v{i16}, 15, v{L}\nv_lshrrev_b32 v{G}, 4, v{L}\nv_lshrrev_b32 v{r_}, 2, v{i16}\nv_and_b32 v{cc}, 3, v{L}")
    e(f"v_lshl_add_u32 v{t0}, v{G}, 3, v{r_}")
    e(f"v_lshlrev_b32 v{t0}, 7, v{t0}\nv_lshl_add_u32 v{t0}, v{cc}, 3, v{t0}\nv_add_u32 v{t0}, s{sRing}, v{t0}")
    e(f"v_lshrrev_b32 v{t1}, 1, v{r_}\nv_and_b32 v{Z+7}, 1, v{G}\nv_lshl_add_u32 v{t1}, v{Z+7}, 1, v{t1}")
    e(f"v_lshl_add_u32 v{vT}, v{t1}, 5, v{t0}")
    for ct in range(1,4): e(f"v_xor_b32 v{vT+ct}, {ct*32}, v{vT}")
    IB=Z+8
    e(f"v_lshrrev_b32 v{t0}, 3, v{L}\nv_lshlrev_b32 v{t0}, 2, v{t0}\nv_add_u32 v{IB}, s{sT0}, v{t0}")
    e(f"v_and_b32 v{t0}, 7, v{L}\nv_and_b32 v{t1}, 1, v{G}\nv_lshlrev_b32 v{t1}, 1, v{t1}\nv_xor_b32 v{t0}, v{t0}, v{t1}")
    e(f"v_lshlrev_b32 v{vP}, 4, v{t0}\nv_xor_b32 v{vP+1}, 64, v{vP}")
    e(f"s_lshl_b32 s{sT1}, s{sWave}, 2\nv_add_u32 v{t0}, s{sT1}, v{r_}")
    e(f"v_and_b32 v{t1}, 8, v{t0}\nv_lshrrev_b32 v{t1}, 2, v{t1}\nv_xor_b32 v{t1}, v{t1}, v{G}")
    e(f"v_lshlrev_b32 v{t0}, 6, v{t0}\nv_lshl_add_u32 v{t0}, v{t1}, 4, v{t0}")
    e(f"v_mul_u32_u24 v{t1}, {S_T}, v{cc}\nv_add_u32 v{t0}, v{t0}, v{t1}\nv_add_u32 v{vSW}, {S_OFF}, v{t0}")
    e(f"v_and_b32 v{t1}, 8, v{i16}\nv_lshrrev_b32 v{t1}, 2, v{t1}\nv_xor_b32 v{t1}, v{t1}, v{G}")
    e(f"v_lshlrev_b32 v{t0}, 6, v{i16}\nv_lshl_add_u32 v{t0}, v{t1}, 4, v{t0}\nv_add_u32 v{vSR}, {S_OFF}, v{t0}")
    e(f"v_lshlrev_b32 v{CA}, 8, v{G}\nv_lshl_add_u32 v{CA}, v{i16}, 3, v{CA}\nv_add_u32 v{CA}, s{sRing}, v{CA}")
    e("s_waitcnt lgkmcnt(0)\ns_barrier")
    e("s_waitcnt vmcnt(0)")
    stamp(2)
    e(f"v_lshrrev_b32 v{CNT}, 16, v{TABV}\nv_and_b32 v{RB}, 0xffff, v{TABV}")
    e(f"v_mul_u32_u24 v{t0}, {EPW}, v{P}\nv_add_u32 v{RB}, v{RB}, v{t0}\nv_mul_u32_u24 v{RB}, 12, v{RB}")
    e(f"s_cmp_eq_u32 s{sMode}, 0\ns_cbranch_scc0 K2_slowwin")
    e(f"v_mov_b32 v{II}, v{SUB}\nv_mov_b32 v{HI}, v{CNT}")
    e("s_branch K2_winok")
    e("K2_slowwin:")
    e(f"v_lshlrev_b32 v{t0}, 2, v{P}\nv_add_u32 v{t0}, {PREF_OFF}, v{t0}\nds_read_b32 v{t0}, v{t0}")
    e("s_waitcnt lgkmcnt(0)")
    e(f"v_sub_u32 v{t0}, s{sLo}, v{t0}")
    e(f"v_add_u32 v{t1}, {CAP}, v{t0}")
    e(f"v_med3_i32 v{t0}, v{t0}, 0, v{CNT}\nv_med3_i32 v{HI}, v{t1}, 0, v{CNT}")
    e(f"v_add_u32 v{II}, v{t0}, v{SUB}")
    e("K2_winok:")
    e(f"s_mov_b32 s{sFirst}, 1")
    R=36
    e("K2_bin:")
    for r in range(5):
        e(f"v_add_u32 v{t0}, {5*r}, v{II}")
        e(f"v_cmp_lt_u32 vcc, v{t0}, v{HI}")
        e(f"v_mul_u32_u24 v{t0}, 12, v{t0}\nv_add_u32 v{t0}, v{t0}, v{RB}")
        e(f"s_mov_b64 s[{40+2*r}:{41+2*r}], vcc")
        e(f"v_mov_b32 v{t1}, {OOB}\nv_cndmask_b32 v{R+4*r+3}, v{t1}, v{t0}, vcc")
    e(f"s_mov_b32 s{sT0}, {REC_OFF}")
    for r in range(5):
        e(f"buffer_load_dwordx3 v[{R+4*r}:{R+4*r+2}], v{R+4*r+3}, s[{sWS}:{sWS+3}], s{sT0} offen")
    WPOS=opt.get('wpos',1)
    if WPOS: e("s_waitcnt vmcnt(0)")
    e(f"s_cmp_eq_u32 s{sFirst}, 0\ns_cbranch_scc1 K2_bin_w0")
    e(f"s_mov_b32 s{sFirst}, 0")
    def pf2():
        if not PF2: return 0
        e(f"s_lshr_b32 s{sT0}, s{sB}, 3\ns_mul_i32 s{sT0}, s{sT0}, 323")
        e(f"v_mov_b32 v{vAd}, {OOB}")
        if PF2==1:
            e(f"v_add_u32 v{t0}, s{sT0}, v{TID}\nv_lshlrev_b32 v{t0}, 10, v{t0}\nv_add_u32 v{t0}, 256, v{t0}")
            e(f"v_cmp_gt_u32 vcc, 323, v{TID}\nv_cndmask_b32 v{t0}, v{vAd}, v{t0}, vcc")
        else:
            e(f"v_subrev_u32 v{t1}, 323, v{TID}\nv_cmp_gt_u32 vcc, 323, v{TID}")
            e(f"v_cndmask_b32 v{t1}, v{t1}, v{TID}, vcc\nv_add_u32 v{t0}, s{sT0}, v{t1}\nv_lshlrev_b32 v{t0}, 10, v{t0}")
            e(f"v_mov_b32 v{t1}, 512\nv_mov_b32 v{vAd}, 256\nv_cndmask_b32 v{t1}, v{t1}, v{vAd}, vcc\nv_add_u32 v{t0}, v{t0}, v{t1}")
        e(f"buffer_load_dword v{vPF}, v{t0}, s[{sXR}:{sXR+3}], 0 offen")
        return 1
    PFO=opt.get('pf2o',1)
    e(f"s_cmp_ge_u32 s{sWave}, 8\ns_cbranch_scc1 K2_bin_w8")
    npf=0
    if PFO==0: npf=pf2()
    e(f"s_mov_b32 s{sWo}, s{sWb}")
    WL=sorted(AC+BDE) if BPRE else AC
    wload(WL,sWo)
    if PFO==1: npf=pf2()
    if not WPOS: e(f"s_waitcnt vmcnt({len(WL)+npf})")
    e("s_branch K2_bin_go")
    e("K2_bin_w8:")
    npf=pf2()
    if not WPOS: e(f"s_waitcnt vmcnt({npf})")
    e("s_branch K2_bin_go")
    e("K2_bin_w0:")
    e("s_waitcnt vmcnt(0)")
    e("K2_bin_go:")
    stamp(3)
    e(f"v_mov_b32 v{t1}, 1\ns_mov_b32 s{sT1}, {GC_OFF}")
    assert GC_OFF%64==0
    for r in range(5):
        lab=e.lab("K2_ba")
        e(f"s_mov_b64 exec, s[{40+2*r}:{41+2*r}]\ns_cbranch_execz {lab}")
        e(f"v_and_or_b32 v{t0}, v{R+4*r}, 60, s{sT1}")
        e(f"ds_add_rtn_u32 v{R+4*r+3}, v{t0}, v{t1}")
        e(f"{lab}:")
    e("s_mov_b64 exec, -1\ns_waitcnt lgkmcnt(0)")
    e(f"s_movk_i32 s{sT1}, {CAP}")
    for r in range(5):
        lab=e.lab("K2_bw")
        w0=R+4*r; rk=w0+3
        u=Z+10
        e(f"s_mov_b64 exec, s[{40+2*r}:{41+2*r}]\ns_cbranch_execz {lab}")
        e(f"v_cmp_gt_u32 vcc, s{sT1}, v{rk}\ns_and_b64 exec, exec, vcc")
        e(f"v_bfe_u32 v{t0}, v{w0}, 2, 4")
        e(f"v_and_b32 v{u}, 0xf0, v{rk}\nv_lshlrev_b32 v{t1}, 9, v{t0}\nv_lshl_add_u32 v{t1}, v{u}, 1, v{t1}")
        e(f"v_and_b32 v{u}, 7, v{rk}\nv_lshl_add_u32 v{t1}, v{u}, 2, v{t1}")
        e(f"v_bfe_u32 v{u}, v{rk}, 3, 1\nv_lshl_add_u32 v{t1}, v{u}, 1, v{t1}")
        e(f"v_mul_u32_u24 v{t0}, {RING}, v{t0}\nv_lshl_add_u32 v{t0}, v{rk}, 5, v{t0}")
        e(f"v_and_b32 v{rk}, 3, v{w0}\nv_lshl_add_u32 v{t0}, v{rk}, 3, v{t0}")
        e(f"v_lshrrev_b32 v{w0}, 10, v{w0}")
        e(f"v_add_u32 v{t1}, {IDX_OFF}, v{t1}\nds_write_b16 v{t1}, v{w0}")
        e(f"v_add_u32 v{t0}, {STG}, v{t0}")
        e(f"ds_write2_b32 v{t0}, v{w0+1}, v{w0+2} offset0:0 offset1:1")
        e(f"{lab}:")
    e("s_mov_b64 exec, -1")
    e(f"v_add_u32 v{II}, 25, v{II}\nv_cmp_lt_u32 vcc, v{II}, v{HI}")
    e("s_cbranch_vccnz K2_bin")
    e("s_waitcnt lgkmcnt(0)\ns_barrier")
    stamp(4)
    e(f"v_and_b32 v{t0}, 15, v{L}\nv_lshlrev_b32 v{t0}, 2, v{t0}\nv_add_u32 v{t0}, {GC_OFF}, v{t0}\nds_read_b32 v{t0}, v{t0}")
    for c in range(6):
        for p in range(2): e(f"ds_read_b32 v{vID+2*c+p}, v{IB} offset:{64*c+32*p}")
    e("s_waitcnt lgkmcnt(12)")
    e(f"v_cmp_lt_u32 vcc, {CAP}, v{t0}")
    e(f"v_readlane_b32 s{sNch}, v{t0}, s{sWave}")
    e("s_cbranch_vccnz K2_overflow")
    e("K2_nover:")
    for c in range(6):
        e(f"ds_read_b64_tr_b16 {vr(vCF+4*c,2)}, v{CA} offset:{STG+c*1024}")
        e(f"ds_read_b64_tr_b16 {vr(vCF+4*c+2,2)}, v{CA} offset:{STG+c*1024+128}")
    e(f"s_add_u32 s{sNch}, s{sNch}, 31\ns_lshr_b32 s{sNch}, s{sNch}, 5\ns_max_u32 s{sNch}, s{sNch}, 1")
    e(f"s_mov_b32 s{sS}, 0\ns_mov_b32 s{sOffC}, 0")
    e("s_waitcnt lgkmcnt(12)")
    for i in range(4): dma(0,i,sOffC)
    e("s_waitcnt lgkmcnt(0)")
    for c in (1,2):
        for i in range(4): dma(c,i,sOffC)
    stamp(5)
    e("K2_slice:")
    for n in (4,5,3,6,2): e(f"s_cmp_eq_u32 s{sNch}, {n}\ns_cbranch_scc1 K2_n{n}")
    for n in (1,2,3,6,5,4):
        e(f"K2_n{n}:")
        for c in range(n):
            issued=max(n,3) if c==0 else None
            last=min(max(n,3)-1, c+2)
            e(f"s_waitcnt vmcnt({4*(last-c)})")
            for ct in range(4):
                e(f"ds_read_b64_tr_b16 {vr(vXA+4*ct,2)}, v{vT+ct} offset:{(c%3)*4096}")
                e(f"ds_read_b64_tr_b16 {vr(vXA+4*ct+2,2)}, v{vT+ct} offset:{(c%3)*4096+512}")
            for ct in range(4):
                e(f"s_waitcnt lgkmcnt({6-2*ct})")
                C = "0" if c==0 else vr(vA1+4*ct,4)
                e(f"v_mfma_f32_16x16x32_bf16 {vr(vA1+4*ct,4)}, {vr(vXA+4*ct,4)}, {vr(vCF+4*c,4)}, {C}")
            if c+3<n:
                for i in range(4): dma(c+3,i,sOffC)
            if c==0: e("s_barrier")
        if n!=4: e("s_branch K2_gap")
    e("K2_gap:")
    stamp((f"s{sS}",8))
    e(f"s_and_b32 s{sT0}, s{sS}, 3")
    e(f"s_cmp_eq_u32 s{sT0}, 1\ns_cbranch_scc1 K2_gap_1")
    e(f"s_cmp_eq_u32 s{sT0}, 2\ns_cbranch_scc1 K2_gap_2")
    e(f"s_cmp_eq_u32 s{sS}, 3\ns_cbranch_scc1 K2_gap_3")
    e(f"s_cmp_eq_u32 s{sS}, 7\ns_cbranch_scc1 K2_gap_F")
    bufs=[vXA+4*k for k in range(4)]+[vA1+4*k for k in range(4)]
    for var in ('0','1','2','3','F'):
        q=3 if var=='F' else int(var)
        fin = var=='F'
        e(f"K2_gap_{var}:")
        if not fin:
            if q<3: e(f"s_add_u32 s{sOffN}, s{sOffC}, 256")
            else: e(f"s_mov_b32 s{sOffN}, 128")
        if q==0:
            lab=e.lab("K2_nw")
            e(f"s_cmp_ge_u32 s{sWave}, 8\ns_cbranch_scc1 {lab}")
            if BPRE: e(f"s_cmp_eq_u32 s{sS}, 0\ns_cbranch_scc1 {lab}")
            e(f"s_lshr_b32 s{sWo}, s{sS}, 2\ns_mul_i32 s{sWo}, s{sWo}, 81920\ns_add_u32 s{sWo}, s{sWo}, s{sWb}")
            wload(BDE,sWo)
            e(f"{lab}:")
        if q==1:
            lab=e.lab("K2_nw")
            e(f"s_cmp_ge_u32 s{sWave}, 8\ns_cbranch_scc1 {lab}")
            e(f"s_cmp_lg_u32 s{sS}, 1\ns_cbranch_scc1 {lab}")
            e(f"s_add_u32 s{sWo}, s{sWb}, 81920")
            wload(AC,sWo)
            e(f"{lab}:")
        defer=[] if fin else [(c,i) for c in range(3) for i in range(4)]
        pre=defer[:4*PRE]; post=defer[4*PRE:]
        for (c,i) in pre: dma(c,i,sOffN)
        e("s_nop 7" if not pre else "s_nop 1")
        for ks in range(2):
            for hh in range(2):
                a=vA1+4*(2*ks+hh)
                e(f"v_cvt_pk_bf16_f32 v{vXA+4*ks+2*hh}, v{a}, v{a+1}")
                e(f"v_cvt_pk_bf16_f32 v{vXA+4*ks+2*hh+1}, v{a+2}, v{a+3}")
        if q>0:
            tneg={3:1,1:2,2:3}[q]
            msk=(0x11111111<<tneg)&0xffffffff
            e(f"s_mov_b32 exec_lo, {hex(msk)}\ns_mov_b32 exec_hi, {hex(msk)}")
            for k in range(8): e(f"v_xor_b32 v{vXA+k}, 0x80008000, v{vXA+k}")
            e("s_mov_b64 exec, -1")
        e(f"ds_write_b128 v{vSW}, {vr(vXA,4)}")
        e(f"ds_write_b128 v{vSW}, {vr(vXA+4,4)} offset:{S_KS}")
        e("s_waitcnt lgkmcnt(0)\ns_barrier")
        stamp((f"s{sS}",16))
        e(f"s_cmp_ge_u32 s{sWave}, 8\ns_cbranch_scc1 K2_gw_{var}")
        if q==0: plan=[(0,0,0),(1,2,1),(2,2,2),(3,2,3)]
        else:
            k=q-1; plan=[(0,3,q),(q,1,0)]
            for j in range(3):
                if j!=k: plan.append((1+j,4,1+(3-j-k)))
        items=[(t,m,o,ks,mt) for (t,m,o) in plan for ks in range(2) for mt in range(3)]
        n=len(items); assert n==24
        def rd(i):
            t,m,o,ks,mt=items[i]
            e(f"ds_read_b128 {vr(bufs[i%8],4)}, v{vSR} offset:{t*S_T+ks*S_KS+mt*1024}")
        for i in range(7): rd(i)
        npost=len(post)
        pos=[int(round((j+0.5)*24/npost-1)) for j in range(npost)] if (npost and npost!=8) else (DPOS if npost else [])
        pj=0
        for i in range(n):
            t,m,o,ks,mt=items[i]
            e(f"s_waitcnt lgkmcnt({min(6,n-1-i)})")
            acc=vA2+(o*3+mt)*4
            e(f"v_mfma_f32_16x16x32_bf16 {vr(acc,4)}, {vr(vW+(m*2+ks)*4,4)}, {vr(bufs[i%8],4)}, {vr(acc,4)}")
            if i+7<n: rd(i+7)
            while pj<npost and pos[pj]<=i:
                dma(post[pj][0],post[pj][1],sOffN); pj+=1
        assert pj==npost
        e(f"s_branch K2_gn_{var}")
        e(f"K2_gw_{var}:")
        for (c,i) in post: dma(c,i,sOffN)
        for ps in (PFWS if PFW&2 else []):
            if var!=str(ps&3): continue
            lab=e.lab("K2_pfw")
            e(f"s_cmp_lg_u32 s{sS}, {ps}\ns_cbranch_scc1 {lab}")
            pfw(WF_OFF+81920,640,21,lab)
        e(f"K2_gn_{var}:")
        stamp((f"s{sS}",24))
        if not fin:
            e(f"s_mov_b32 s{sOffC}, s{sOffN}\ns_add_u32 s{sS}, s{sS}, 1\ns_branch K2_slice")
    e(f"s_cmp_eq_u32 s{sMode}, 0\ns_cbranch_scc1 K2_epi")
    e(f"s_add_u32 s{sLo}, s{sLo}, {CAP}\ns_cmp_ge_u32 s{sLo}, s{sTot}\ns_cbranch_scc1 K2_epi")
    e("s_waitcnt vmcnt(0)\ns_branch K2_round")
    e("K2_epi:")
    e(f"s_cmp_ge_u32 s{sWave}, 8\ns_cbranch_scc1 K2_fin")
    e(f"v_mbcnt_lo_u32_b32 v2, -1, 0\nv_mbcnt_hi_u32_b32 v2, -1, v2")
    e(f"v_and_b32 v3, 15, v2\nv_lshrrev_b32 v1, 4, v2\nv_lshlrev_b32 v1, 3, v1\nv_lshl_add_u32 v1, v3, 10, v1")
    e(f"v_mov_b32 v0, {OOB}\nv_cmp_gt_u32 vcc, 8, v3\ns_mul_i32 s{sT0}, s{sB}, {NPB*1024}\ns_lshl_b32 s{sT1}, s{sWave}, 5\ns_add_u32 s40, s{sT0}, s{sT1}")
    e(f"v_cndmask_b32 v0, v0, v1, vcc")
    e("s_add_u32 s41, s40, 16384\ns_add_u32 s42, s41, 16384")
    e("s_mov_b32 s43, 0xbfb8aa3b")
    for mt in range(3):
        a0=vA2+mt*4
        g=vXA
        for r in range(4): e(f"v_mul_f32 v{g+r}, s43, v{a0+r}")
        for r in range(4): e(f"v_exp_f32 v{g+r}, v{g+r}")
        e("s_nop 0")
        for r in range(4): e(f"v_add_f32 v{g+r}, 1.0, v{g+r}")
        for r in range(4): e(f"v_rcp_f32 v{g+r}, v{g+r}")
        pk=vA1+mt*8 if mt<2 else vCF
        e(f"v_cvt_pk_bf16_f32 v{pk}, v{a0}, v{a0+1}\nv_cvt_pk_bf16_f32 v{pk+1}, v{a0+2}, v{a0+3}")
        for o in range(1,4):
            a=vA2+(o*3+mt)*4
            for r in range(4): e(f"v_mul_f32 v{a+r}, v{a+r}, v{g+r}")
            e(f"v_cvt_pk_bf16_f32 v{pk+2*o}, v{a}, v{a+1}\nv_cvt_pk_bf16_f32 v{pk+2*o+1}, v{a+2}, v{a+3}")
        for o in range(4):
            e(f"buffer_store_dwordx2 {vr(pk+2*o,2)}, v{0 if mt==2 else 1}, s[{sOUT}:{sOUT+3}], s{40+mt} offen offset:{o*256}")
    e("K2_fin:")
    stamp(6)
    if ts:
        e("s_waitcnt vmcnt(0)")
        stamp(7)
        e(f"v_mbcnt_lo_u32_b32 v2, -1, 0\nv_mbcnt_hi_u32_b32 v2, -1, v2\nv_lshlrev_b32 v2, 2, v2")
        e(f"s_mul_i32 s40, s{sB}, 10\ns_add_u32 s40, s40, s{sWave}\ns_lshl_b32 s40, s40, 8\ns_add_u32 s40, s40, {5<<20}")
        e(f"s_mov_b32 s{sWS+2}, {8<<20}\nbuffer_store_dword v{NV}, v2, s[{sWS}:{sWS+3}], s40 offen")
    e("s_waitcnt vmcnt(0) lgkmcnt(0)\ns_endpgm")
    e("K2_overflow:")
    e(f"s_cmp_lg_u32 s{sMode}, 0\ns_cbranch_scc1 K2_nover")
    e(f"s_mov_b32 s{sMode}, 1\ns_mov_b32 s{sLo}, 0")
    e(f"v_lshlrev_b32 v{t0}, 2, v{P}\nv_add_u32 v{t0}, {PREF_OFF}, v{t0}")
    e(f"ds_write_b32 v{t0}, v{CNT}")
    e("s_waitcnt lgkmcnt(0)\ns_barrier")
    e(f"v_mov_b32 v{RB}, 0\nv_mov_b32 v{HI}, 0\ns_mov_b32 s{sT0}, 0")
    e("K2_pl:")
    e(f"s_lshl_b32 s{sT1}, s{sT0}, 2\ns_add_u32 s{sT1}, s{sT1}, {PREF_OFF}\nv_mov_b32 v{t1}, s{sT1}\nds_read_b32 v{t1}, v{t1}")
    e(f"v_cmp_lt_u32 vcc, s{sT0}, v{P}")
    e("s_waitcnt lgkmcnt(0)")
    e(f"v_add_u32 v{HI}, v{HI}, v{t1}\nv_cndmask_b32 v{t1}, 0, v{t1}, vcc\nv_add_u32 v{RB}, v{RB}, v{t1}")
    e(f"s_add_u32 s{sT0}, s{sT0}, 1\ns_cmp_lt_u32 s{sT0}, 128\ns_cbranch_scc1 K2_pl")
    e("s_barrier")
    e(f"ds_write_b32 v{t0}, v{RB}")
    e(f"v_readfirstlane_b32 s{sTot}, v{HI}")
    e("s_waitcnt vmcnt(0) lgkmcnt(0)\ns_barrier\ns_branch K2_round")
    e("K2_done:\ns_endpgm")
    return e.text()

HEADER=open("standalone__tensor_product_equiv_equiformer__graph.s.ref").read().split("; Override launch geometry")[0]

def desc(name,nv,ns):
    return f""".p2align 6
.amdhsa_kernel {name}
  .amdhsa_next_free_vgpr {nv}
  .amdhsa_next_free_sgpr {ns}
  .amdhsa_accum_offset {(nv+3)//4*4}
  .amdhsa_group_segment_fixed_size 0
  .amdhsa_kernarg_size 96
  .amdhsa_user_sgpr_count 2
  .amdhsa_user_sgpr_kernarg_segment_ptr 1
  .amdhsa_system_sgpr_workgroup_id_x 1
.end_amdhsa_kernel"""

def build(opt={}):
    s=HEADER
    s+=f"; Two launches: (1) bin edges by destination + fold weights + prefetch, (2) gather/aggregate + GEMM + gate.\n"
    K1G=opt.get('k1g',144 if opt.get('pf',0) in (0,4) else 256)
    L1=f"; @launch kernel={K1} grid=({K1G},1,1) block=(640,1,1) lds={K1_LDS}\n"
    L2=f"; @launch kernel={K2} grid=({NB},1,1) block=(640,1,1) lds={K2_LDS}\n"
    L0=f"; @launch kernel=eqf_nop_kernel grid=(1,1,1) block=(64,1,1) lds=0\n"
    seq=opt.get('seq','12')
    for ch in str(seq): s+={'1':L1,'2':L2,'0':L0}[ch]
    s+='.amdgcn_target "amdgcn-amd-amdhsa--gfx950"\n.text\n'
    s+=gen_k1(opt)+"\n"+gen_k2(opt)+"\n"
    if '0' in str(seq): s+=".globl eqf_nop_kernel\n.p2align 8\n.type eqf_nop_kernel,@function\neqf_nop_kernel:\n    s_endpgm\n"
    s+='.section .rodata,"a"\n'+(".p2align 7\n" if opt.get('kdal') else "")+desc(K1,80,64)+"\n"+desc(K2,NV+(1 if opt.get("ts") else 0),64)+"\n"
    if '0' in str(seq): s+=desc("eqf_nop_kernel",8,16)+"\n"
    for m in re.finditer(r"buffer_\w+ .*offset:(\d+)", s):
        assert int(m.group(1))<4096, m.group(0)
    for m in re.finditer(r"ds_\w+ .*offset:(\d+)", s):
        assert int(m.group(1))<65536, m.group(0)
    return s

if __name__=="__main__":
    out=sys.argv[1] if len(sys.argv)>1 else "standalone__tensor_product_equiv_equiformer__graph.s"
    opt={'pf':4,'pfk':1,'kdal':1}
    for a in sys.argv[2:]:
        k,v=a.split("="); opt[k]=eval(v)
    open(out,"w").write(build(opt))
    print("wrote",out)
```
